```python
import torch

def _softmax(x, axis=-1):
    return torch.softmax(x, dim=axis)
def _gelu(x):
    return torch.nn.functional.gelu(x, approximate="tanh")
def _silu(x):
    return torch.nn.functional.silu(x)
def _sigmoid(x):
    return torch.sigmoid(x)
def _layernorm(x, axis=-1, eps=1e-5):
    m = x.mean(dim=axis, keepdim=True)
    v = x.var(dim=axis, keepdim=True, unbiased=False)
    return (x - m) / torch.sqrt(v + eps)
def _scatter_add(tgt, idx, src, axis=0):
    return tgt.clone().index_add_(axis, idx, src)
def _segment_sum(src, seg, n):
    out = torch.zeros((n,) + src.shape[1:], dtype=src.dtype)
    return out.index_add_(0, seg, src)
def _pad(x, pw):
    flat = tuple(v for pair in reversed(pw) for v in pair)
    return torch.nn.functional.pad(x, flat)

kernel_name = 'recurrent_scan__linear_kernel_hedgehog__glu_gated_geglu__prompt'

def setup_inputs():

    _w = (lambda a: (lambda t: t.to(torch.bfloat16) if t.is_floating_point() else t)(torch.as_tensor(a)))
    def _A_setup():
        B, S, D, H = 1, 2048, 512, 32
        Dh = D // H
        return {
            "x": _w((lambda *s: torch.randn(*s, dtype=torch.bfloat16) * 0.05)(B, S, D)),
            "wqkv": _w((lambda *s: torch.randn(*s, dtype=torch.bfloat16) * 0.8)(D, 3 * D)),
            "w_phi": _w((lambda *s: torch.randn(*s, dtype=torch.bfloat16) * 0.8)(H, Dh, Dh) * (Dh ** -0.5)),
            "wo": _w((lambda *s: torch.randn(*s, dtype=torch.bfloat16) * 0.8)(D, D)),
        }
    _A_in = _A_setup()

    def _B_setup():
        B, S, Dm, Df = 1, 2048, 512, 1792
        return {
            "x": _w((lambda *s: torch.randn(*s, dtype=torch.bfloat16) * 0.05)(B, S, Dm)),
            "w_gate": _w((lambda *s: torch.randn(*s, dtype=torch.bfloat16) * 0.2)(Dm, Df) * (Dm ** -0.5)),
            "w_up": _w((lambda *s: torch.randn(*s, dtype=torch.bfloat16) * 0.2)(Dm, Df) * (Dm ** -0.5)),
            "w_down": _w((lambda *s: torch.randn(*s, dtype=torch.bfloat16) * 0.2)(Df, Dm) * (Df ** -0.5)),
        }
    _B_in = _B_setup()

    return {
        "A_x": _A_in["x"],
        "A_wqkv": _A_in["wqkv"],
        "A_w_phi": _A_in["w_phi"],
        "A_wo": _A_in["wo"],
        "B_x": _B_in["x"],
        "B_w_gate": _B_in["w_gate"],
        "B_w_up": _B_in["w_up"],
        "B_w_down": _B_in["w_down"],
    }

def reference(A_x, A_wqkv, A_w_phi, A_wo, B_x, B_w_gate, B_w_up, B_w_down):
    def _A_ref(x, wqkv, w_phi, wo):
        B, S, D = x.shape
        H = 32; Dh = D // H
        qkv = (lambda x, *d: x.permute(*d))((x @ wqkv).reshape(B, S, 3, H, Dh), 2, 0, 3, 1, 4)
        q, k, v = qkv[0], qkv[1], qkv[2]
        pq = torch.einsum("bhsd,hdf->bhsf", q, w_phi)
        pk = torch.einsum("bhsd,hdf->bhsf", k, w_phi)
        phi_q = torch.concatenate([_softmax(pq, axis=-1), _softmax(-pq, axis=-1)], axis=-1)
        phi_k = torch.concatenate([_softmax(pk, axis=-1), _softmax(-pk, axis=-1)], axis=-1)
        kv = torch.einsum("bhsf,bhsd->bhfd", phi_k, v)
        z  = torch.einsum("bhsf->bhf", phi_k)
        num = torch.einsum("bhqf,bhfd->bhqd", phi_q, kv)
        den = torch.einsum("bhqf,bhf->bhq", phi_q, z)[..., None] + 1e-6
        o = num / den
        return (lambda x, *d: x.permute(*d))(o, 0, 2, 1, 3).reshape(B, S, D) @ wo

    def _B_ref(x, w_gate, w_up, w_down):
        g = torch.einsum("bsd,df->bsf", x, w_gate)
        u = torch.einsum("bsd,df->bsf", x, w_up)
        h = _gelu(g) * u
        return torch.einsum("bsf,fd->bsd", h, w_down)

    x = A_x
    xn = _layernorm(x, axis=-1)
    s = _A_ref(xn, A_wqkv, A_w_phi, A_wo)
    g = _silu(_B_ref(xn, B_w_gate, B_w_up, B_w_down))
    return x + s * g
```

```python
KNAME = "recurrent_scan__linear_kernel_hedgehog__glu_gated_geglu__prompt"

class Asm:
    def __init__(self):
        self.lines = []
        self.nlab = 0
    def __call__(self, s):
        for l in s.split("\n"):
            l = l.strip()
            if l:
                self.lines.append(l if l.endswith(":") else "    " + l)
    def label(self, base="L"):
        self.nlab += 1
        return f"{base}_{self.nlab}"
    def text(self):
        return "\n".join(self.lines) + "\n"

def kernel_text(kernels, header_comments=""):
    out = []
    out.append(header_comments)
    if len(kernels) == 1 and kernels[0]["name"] == KNAME + "_kernel":
        k = kernels[0]
        out.append(f"; @launch grid=({k['grid']},1,1) block=({k['block']},1,1) lds={k['lds']}")
    else:
        for k in kernels:
            out.append(f"; @launch kernel={k['name']} grid=({k['grid']},1,1) block=({k['block']},1,1) lds={k['lds']}")
    out.append('.amdgcn_target "amdgcn-amd-amdhsa--gfx950"')
    out.append(".text")
    seen = set()
    for k in kernels:
        if k["name"] in seen: continue
        seen.add(k["name"])
        n = k["name"]
        out.append(f".globl {n}\n.p2align 8\n.type {n},@function\n{n}:")
        out.append(k["body"].rstrip("\n"))
        out.append("    s_endpgm")
    out.append('.section .rodata,"a"')
    seen = set()
    for k in kernels:
        if k["name"] in seen: continue
        seen.add(k["name"])
        out.append(f""".p2align 6
.amdhsa_kernel {k['name']}
  .amdhsa_next_free_vgpr {k['vgpr']}
  .amdhsa_next_free_sgpr {k.get('sgpr',102)}
  .amdhsa_accum_offset {k['accum']}
  .amdhsa_group_segment_fixed_size 0
  .amdhsa_kernarg_size 88
  .amdhsa_user_sgpr_count 2
  .amdhsa_user_sgpr_kernarg_segment_ptr 1
  .amdhsa_system_sgpr_workgroup_id_x 1
.end_amdhsa_kernel""")
    return "\n".join(x for x in out if x) + "\n"
```

```python
import re

def _regs(tok):
    tok = tok.strip()
    tok = tok.lstrip('-').strip('|')
    m = re.fullmatch(r'([vsa])(\d+)', tok)
    if m: return [(m.group(1), int(m.group(2)))]
    m = re.fullmatch(r'([vsa])\[(\d+):(\d+)\]', tok)
    if m: return [(m.group(1), i) for i in range(int(m.group(2)), int(m.group(3)) + 1)]
    if tok == 'vcc': return [('s', 'vcc')]
    if tok in ('vcc_lo', 'vcc_hi'): return [('s', 'vcc')]
    if tok == 'm0': return [('s', 'm0')]
    if tok in ('exec', 'exec_lo', 'exec_hi'): return [('s', 'exec')]
    return []

TRANS = ('v_exp_f32', 'v_log_f32', 'v_rcp_f32', 'v_rsq_f32', 'v_sqrt_f32', 'v_sin_f32', 'v_cos_f32')

class I:
    __slots__ = ('text', 'op', 'kind', 'defs', 'uses', 'srcc', 'passes', 'tag', 'arg', 'wide', 'data', 'cost')
    def __init__(self, text, tag=None):
        self.text = text; self.tag = tag; self.arg = None
        self.srcc = []; self.passes = 0; self.wide = False; self.data = []
        t = text.split(';')[0].strip()
        if t.endswith(':'):
            self.op = 'label'; self.kind = 'label'; self.defs = []; self.uses = []; self.cost = 0; return
        parts = t.split(None, 1)
        op = parts[0]; self.op = op
        rest = parts[1] if len(parts) > 1 else ''
        ops = [o.strip() for o in rest.split(',')] if rest else []
        mods = ''
        if ops:
            l = ops[-1].split(None, 1)
            ops[-1] = l[0]
            mods = l[1] if len(l) > 1 else ''
        R = [_regs(o) for o in ops]
        flat = lambda L: [r for x in L for r in x]
        base = re.sub(r'_(e32|e64|sdwa|dpp)$', '', op)
        self.cost = 1
        if op.startswith('v_mfma'):
            self.kind = 'mfma'; self.defs = R[0]; self.uses = flat(R[1:3]); self.srcc = R[3]
            self.passes = 8 if '32x32' in op else 4
            self.cost = 2
        elif op.startswith('v_cmp'):
            self.kind = 'valu'; self.defs = R[0]; self.uses = flat(R[1:])
        elif base in ('v_permlane16_swap_b32', 'v_permlane32_swap_b32', 'v_swap_b32'):
            self.kind = 'perm' if 'perm' in base else 'valu'; self.defs = flat(R); self.uses = flat(R)
        elif base in ('v_readfirstlane_b32', 'v_readlane_b32'):
            self.kind = 'rfl'; self.defs = R[0]; self.uses = flat(R[1:])
        elif op.startswith('v_'):
            self.kind = 'trans' if base in TRANS else 'valu'
            if self.kind == 'trans': self.cost = 2
            self.defs = R[0]; self.uses = flat(R[1:])
            if base in ('v_fmac_f32', 'v_mac_f32', 'v_dot2c_f32_bf16') or 'UNUSED_PRESERVE' in mods: self.uses = self.uses + R[0]
            if base == 'v_cndmask_b32' and len(ops) == 3: self.uses = self.uses + [('s', 'vcc')]
            if '_co_' in base: self.defs = R[0] + R[1]; self.uses = flat(R[2:])
            if 'dpp' in op or 'row_' in mods or 'quad_perm' in mods: self.kind = 'dpp'; self.uses = self.uses + R[0]
        elif op.startswith('ds_read') or op.startswith('ds_bpermute') or op.startswith('ds_swizzle'):
            self.kind = 'dsr'; self.defs = R[0]; self.uses = flat(R[1:])
        elif op.startswith('ds_'):
            self.kind = 'dsw'; self.defs = []; self.uses = flat(R)
        elif op.startswith('buffer_load') or op.startswith('global_load'):
            if re.search(r'\blds\b', mods):
                self.kind = 'dma'; self.defs = []; self.uses = flat(R) + [('s', 'm0')]
            else:
                self.kind = 'vld'; self.defs = R[0]; self.uses = flat(R[1:])
        elif op.startswith('buffer_store') or op.startswith('global_store'):
            self.kind = 'vst'; self.defs = []; self.uses = flat(R)
            self.data = R[0] if op.startswith('buffer') else R[1]
            self.wide = len(self.data) >= 3
        elif op.startswith('buffer_atomic'):
            if re.search(r'\bsc0\b', mods):
                self.kind = 'vld'; self.defs = R[0]; self.uses = flat(R)
            else:
                self.kind = 'vst'; self.defs = []; self.uses = flat(R)
        elif op in ('buffer_wbl2', 'buffer_inv'):
            self.kind = 'vst'; self.defs = []; self.uses = []
        elif op.startswith('s_load') or op in ('s_memtime', 's_memrealtime') or op.startswith('s_buffer_load'):
            self.kind = 'smem'; self.defs = R[0]; self.uses = flat(R[1:]); self.cost = 0
        elif op == 's_waitcnt':
            self.kind = 'wait'; self.defs = []; self.uses = []; self.cost = 0
        elif op == 's_nop':
            self.kind = 'nop'; self.defs = []; self.uses = []; self.arg = int(ops[0], 0); self.cost = 0
        elif op == 's_barrier':
            self.kind = 'bar'; self.defs = []; self.uses = []; self.cost = 0
        elif op.startswith('s_cbranch') or op == 's_branch' or op == 's_endpgm':
            self.kind = 'br'; self.defs = []; self.uses = []; self.cost = 0
        elif op.startswith('s_cmp') or op.startswith('s_bitcmp'):
            self.kind = 'salu'; self.defs = []; self.uses = flat(R); self.cost = 0
        elif op in ('s_setprio', 's_sleep'):
            self.kind = 'salu'; self.defs = []; self.uses = []; self.cost = 0
        elif op.startswith('s_'):
            self.kind = 'salu'; self.defs = R[0]; self.uses = flat(R[1:]); self.cost = 0
            if 'saveexec' in op: self.defs = self.defs + [('s', 'exec')]
        else:
            raise ValueError('unknown op: ' + text)

class P:
    def __init__(self, kind, arg=None):
        self.kind = kind; self.arg = arg; self.cost = 0; self.text = f'; {kind} {arg}'

class Seq(list):
    def __call__(self, s, tag=None):
        for l in s.split('\n'):
            l = l.strip()
            if l and not l.startswith(';'):
                self.append(I(l, tag))
        return self
    def waitvm(self, tag): self.append(P('waitvm', tag))
    def waitvm0(self): self.append(P('waitvm0'))
    def waitlgkm0(self): self.append(P('waitlgkm0'))
    def waitlg(self, tag): self.append(P('waitlg', tag))
    def gap(self, n): self.append(P('gap', n))
    def comment(self, s): self.append(P('comment', s))

class State:
    def __init__(self):
        self.vm = []
        self.lg = []
        self.hist = []
    def copy(self):
        s = State(); s.vm = list(self.vm); s.lg = list(self.lg); s.hist = list(self.hist); return s

def _need(prod, cons):
    n = 0
    pd = set(prod.defs); cu = set(cons.uses); cd = set(cons.defs); cc = set(cons.srcc)
    pk, ck = prod.kind, cons.kind
    isvalu = lambda k: k in ('valu', 'trans', 'perm', 'rfl', 'dpp')
    if pk == 'mfma':
        big = 12 if prod.passes == 8 else 8
        if ck == 'mfma':
            if pd & cu: n = max(n, big)
            if pd & cc:
                if not (prod.defs == cons.srcc and prod.passes == cons.passes): n = max(n, big - 2)
            elif pd & cd: n = max(n, big)
        elif isvalu(ck) or ck in ('dsr', 'dsw', 'vld', 'vst', 'dma'):
            if pd & (cu | cd): n = max(n, big)
        if isvalu(ck) and set(prod.srcc) & cd: n = max(n, 7 if prod.passes == 8 else 3)
        if ck in ('dsr', 'vld') and set(prod.srcc) & cd: n = max(n, 7 if prod.passes == 8 else 3)
    if isvalu(pk):
        vd = {r for r in pd if r[0] != 's'}; sd = {r for r in pd if r[0] == 's'}
        if ck == 'mfma' and vd & (cu | cc): n = max(n, 2)
        if ck in ('perm', 'dpp') and vd & cu: n = max(n, 2)
        if ck == 'rfl' and vd & cu: n = max(n, 1)
        if pk == 'trans' and isvalu(ck) and ck != 'trans' and vd & cu: n = max(n, 1)
        if pk == 'trans' and ck in ('dsw', 'vst') and vd & cu: n = max(n, 1)
        if isvalu(ck) and sd & cu: n = max(n, 4 if ck == 'rfl' else 2)
        if ck in ('vld', 'vst', 'dma') and sd & cu: n = max(n, 5)
        if 'sdwa' in prod.op and isvalu(ck) and vd & (cu | cd): n = max(n, 1)
    if pk == 'salu' and ('s', 'm0') in pd and ck == 'dma': n = max(n, 1)
    if pk == 'salu' and ('s', 'exec') in pd and ck in ('dpp',): n = max(n, 1)
    if pk == 'vst' and prod.wide and set(prod.data) & cd: n = max(n, 2)
    if pk == 'dsw' and len(prod.uses) >= 4 and set(prod.uses) & cd and isvalu(ck): n = max(n, 2)
    return n

def finalize(seq, st=None, stats=None):
    st = st.copy() if st else State()
    out = []
    def emit(ins):
        need = 0
        if ins.kind not in ('wait', 'nop', 'label'):
            for (p, dist) in st.hist:
                k = _need(p, ins) - dist
                if k > need: need = k
        if need > 0:
            nop = I(f's_nop {need-1}')
            out.append('    ' + nop.text)
            st.hist = [(p, d + need) for (p, d) in st.hist]
            if stats is not None: stats['nops'] = stats.get('nops', 0) + need
        out.append(ins.text if ins.kind == 'label' else '    ' + ins.text)
        if ins.kind == 'label': return
        adv = ins.arg + 1 if ins.kind == 'nop' else 1
        st.hist = [(p, d + adv) for (p, d) in st.hist if d + adv < 13]
        st.hist.append((ins, 0))
    def dowait(vm=None, lg=None):
        parts = []
        if vm is not None and vm < len(st.vm):
            vm = min(vm, 63); parts.append(f'vmcnt({vm})'); st.vm = st.vm[len(st.vm) - vm:] if vm else []
        if lg is not None and lg < len(st.lg):
            lg = min(lg, 15); parts.append(f'lgkmcnt({lg})'); st.lg = st.lg[len(st.lg) - lg:] if lg else []
        if parts: emit(I('s_waitcnt ' + ' '.join(parts)))
    for ins in seq:
        if isinstance(ins, P):
            if ins.kind == 'waitvm':
                idx = [i for i, (d, t) in enumerate(st.vm) if t == ins.arg]
                if idx: dowait(vm=len(st.vm) - 1 - idx[-1])
            elif ins.kind == 'waitvm0': dowait(vm=0)
            elif ins.kind == 'waitlgkm0': dowait(lg=0)
            elif ins.kind == 'waitlg':
                idx = [i for i, (d, sm, t) in enumerate(st.lg) if t == ins.arg]
                if idx: dowait(lg=(0 if any(x[1] for x in st.lg) else len(st.lg) - 1 - idx[-1]))
            elif ins.kind == 'skip_begin': saved = st.copy(); nb = len(out)
            elif ins.kind == 'skip_end':
                old = {id(p) for (p, d) in saved.hist}
                st.hist = saved.hist + [(p, d) for (p, d) in st.hist if id(p) not in old]
                st.vm = saved.vm; st.lg = saved.lg
            elif ins.kind == 'comment': out.append(f'    ; {ins.arg}')
            continue
        if ins.kind == 'wait':
            m = re.search(r'vmcnt\((\d+)\)', ins.text)
            if m:
                n = int(m.group(1)); st.vm = st.vm[max(0, len(st.vm) - n):] if n else []
            m = re.search(r'lgkmcnt\((\d+)\)', ins.text)
            if m:
                n = int(m.group(1)); st.lg = st.lg[max(0, len(st.lg) - n):] if n else []
            emit(ins); continue
        touched = set(ins.uses) | set(ins.defs) | set(ins.srcc)
        vm = lg = None
        for i, (d, t) in enumerate(st.vm):
            if d & touched: vm = len(st.vm) - 1 - i
        for i, (d, sm, t) in enumerate(st.lg):
            if d & touched: lg = len(st.lg) - 1 - i
        if lg is not None and any(x[1] for x in st.lg): lg = 0
        if ins.kind == 'dsr' and lg is not None and not any(x[0] & set(ins.uses) for x in st.lg) and not any(x[1] for x in st.lg): lg = None
        if ins.kind == 'vld' and vm is not None and not any(d & set(ins.uses) for (d, t) in st.vm): vm = None
        dowait(vm, lg)
        emit(ins)
        if ins.kind in ('vld', 'vst', 'dma'): st.vm.append((set(ins.defs), ins.tag))
        if ins.kind in ('dsr', 'dsw'): st.lg.append((set(ins.defs), False, ins.tag))
        if ins.kind == 'smem': st.lg.append((set(ins.defs), True, ins.tag))
    return out, st

def interleave(main, fill, rate, lead=0):
    out = Seq(); credit = 0.0; hold = lead; fi = 0
    for ins in main:
        out.append(ins)
        if isinstance(ins, I) and ins.kind == 'mfma':
            if hold > 0:
                hold -= 1
                continue
            credit += rate
            while fi < len(fill) and hold == 0:
                f = fill[fi]
                if isinstance(f, P) and f.kind == 'gap':
                    hold = f.arg; fi += 1; credit = min(credit, rate); break
                if f.cost > credit: break
                credit -= f.cost; out.append(f); fi += 1
    rest = Seq(x for x in fill[fi:] if not (isinstance(x, P) and x.kind == 'gap'))
    return out, rest

def vr(base, n=1):
    return f'v{base}' if n == 1 else f'v[{base}:{base+n-1}]'
def sr(base, n=1):
    return f's{base}' if n == 1 else f's[{base}:{base+n-1}]'
```

```python
import math, struct, sys
from g import *
from asmgen import kernel_text, KNAME

def f2u(x): return '0x%08x' % struct.unpack('<I', struct.pack('<f', x))[0]
LOG2E = 1.4426950408889634
C0 = -2.0 * LOG2E * math.sqrt(2.0 / math.pi)

H_TILE = 144 * 1024
KV_OFF = 64 * H_TILE
KV_PITCH = 9216
KV_HEAD = 17 * 128
KV_CNT = 68 * 128
KV_ONES = 69 * 128
WS_SIZE = KV_OFF + 8 * KV_PITCH
STAMP_OFF = 12 << 20
OOB = 0x7ff00000

X = lambda rs, s: 128 + s * 8 + rs * 4
ACC = [96, 64]
WF = 40
vL, vQ, vG, vHS = 0, 1, 2, 3
aT = {(0, 0): 4, (0, 1): 5, (1, 0): 6, (1, 1): 7}
SEL = [8, 12]; CS = 16
BX = [20, 22]
LNC = [24, 27]
vSC, vR32 = 30, 31
T = list(range(32, 40))
vXD = [64, 65]; aX = {(0, 0): 66, (0, 1): 67, (1, 0): 68, (1, 1): 69}
ONES = 72; SUM = 88; GRAM = 92
sX, sWQ, sWG, sWU, sWS, sPH, sDB = 4, 8, 12, 16, 20, 24, 28
sW, sR, sC, sRB, sGI, sTY, sM0, sROT = 32, 33, 34, 35, 36, 37, 38, 39
sKX, sKQ, sKG, sKH = 40, 48, 56, 64
sH0, sH1, sT0, sT1, sT2, sT3 = 68, 69, 70, 71, 72, 73
sCSW, sCSR = 74, 75
sMASK = 76
sM_l1, sM_l2, sM_l3, sM_hi32, sM_b4, sM_s0, sM_s1 = 76, 78, 80, 82, 84, 86, 88
sKV, sPC = 90, 91
sU0 = 92
sSTL = [94, 96, 98, 100, 24, 26]
SLOT = 32768
REC = 98304; RECP = 112; RECH = 128 * RECP
MISC = 155648
L_ST = MISC; L_DUM = MISC + 1024; L_CS = MISC + 2048; L_PH = MISC + 2048 + 3 * 1024
LDS_BYTES = 163840

def srd(a, d, off, size):
    a(f's_load_dwordx2 s[{d}:{d+1}], s[0:1], {off}')
    return f's_mov_b32 s{d+2}, {size}\ns_mov_b32 s{d+3}, 0x20000'

def m64(a, s, val):
    a(f's_mov_b32 s{s}, 0x{val & 0xffffffff:x}\ns_mov_b32 s{s+1}, 0x{val >> 32:x}')

class K1:
    def __init__(self, rate=(0, 2.0, 3.0), rot=True, stamps=False, sc=' sc0 sc1'):
        self.rate = rate; self.rot = rot; self.stamps = stamps; self.sc = sc
        self.nst = 0
        self.nlab = 0
    def lab(self, b):
        self.nlab += 1
        return f'K1_{b}_{self.nlab}'
    def stamp(self, a):
        if self.stamps:
            a(f's_memtime s[{sSTL[self.nst]}:{sSTL[self.nst]+1}]'); self.nst += 1

    def prologue(self):
        a = Seq()
        a('s_cmp_lt_u32 s2, 256\ns_cbranch_scc1 K1_GO\ns_endpgm\nK1_GO:')
        post = [srd(a, sX, 0, 2097152), srd(a, sWQ, 8, 1572864), srd(a, sWG, 40, 1835008), srd(a, sWU, 48, 1835008),
                srd(a, sWS, 80, (16 << 20) if self.stamps else WS_SIZE), srd(a, sPH, 16, 16384), srd(a, sDB, 72, 256)]
        self.stamp(a)
        a(f'''
        v_lshrrev_b32 v{T[0]}, 6, v0
        v_and_b32 v{vL}, 63, v0
        v_readfirstlane_b32 s{sW}, v{T[0]}
        s_and_b32 s{sT0}, s2, 3
        s_lshl_b32 s{sT0}, s{sT0}, 2
        s_bfe_u32 s{sT1}, s2, 0x20003
        s_add_u32 s{sRB}, s{sT0}, s{sT1}
        s_bfe_u32 s{sT0}, s2, 0x10002
        s_lshl_b32 s{sT0}, s{sT0}, 2
        s_lshr_b32 s{sT1}, s2, 6
        s_add_u32 s{sGI}, s{sT0}, s{sT1}
        s_bfe_u32 s{sTY}, s2, 0x10005
        ''')
        for p in post: a(p)
        if self.rot:
            a(f's_lshr_b32 s{sT0}, s2, 5\ns_lshl_b32 s{sT1}, s{sRB}, 1\ns_add_u32 s{sROT}, s{sT0}, s{sT1}')
        else:
            a(f's_mov_b32 s{sROT}, 0')
        a(f'''
        s_and_b32 s{sR}, s{sW}, 3
        s_lshr_b32 s{sC}, s{sW}, 2
        s_lshl_b32 s{sM0}, s{sW}, 10
        s_lshl_b32 s{sT2}, s{sRB}, 17
        ''')
        for j in range(8):
            a(f'''
            s_add_u32 s{sT0}, s{sROT}, {j}
            s_and_b32 s{sT0}, s{sT0}, 7
            s_lshl_b32 s{sT1}, s{sT0}, 7
            s_add_u32 s{sKX+j}, s{sT1}, s{sT2}
            s_mul_i32 s{sKQ+j}, s{sT0}, {64*3072}
            s_mul_i32 s{sKG+j}, s{sT0}, {64*3584}
            ''')
        a(f'''
        v_lshrrev_b32 v{T[0]}, 3, v{vL}
        s_lshl_b32 s{sT0}, s{sW}, 3
        v_add_u32 v{T[0]}, s{sT0}, v{T[0]}
        v_and_b32 v{T[1]}, 7, v{vL}
        v_lshrrev_b32 v{T[2]}, 4, v{vL}
        s_and_b32 s{sT0}, s{sW}, 1
        s_lshl_b32 s{sT0}, s{sT0}, 2
        v_or_b32 v{T[3]}, s{sT0}, v{T[2]}
        v_xor_b32 v{T[3]}, v{T[3]}, v{T[1]}
        v_lshlrev_b32 v{T[3]}, 4, v{T[3]}
        v_lshl_add_u32 v{vXD[0]}, v{T[0]}, 10, v{T[3]}
        v_add_u32 v{vXD[1]}, 0x10000, v{vXD[0]}
        v_and_b32 v{T[3]}, 1, v{T[2]}
        v_lshl_or_b32 v{T[3]}, v{T[3]}, 1, s{sT0}
        v_xor_b32 v{T[3]}, v{T[3]}, v{T[1]}
        v_lshlrev_b32 v{T[3]}, 4, v{T[3]}
        s_movk_i32 s{sT0}, 3072
        s_movk_i32 s{sT1}, 3584
        v_mad_u32_u24 v{vQ}, v{T[0]}, s{sT0}, v{T[3]}
        v_mad_u32_u24 v{vG}, v{T[0]}, s{sT1}, v{T[3]}
        s_lshl_b32 s{sT0}, s{sGI}, 7
        s_lshl_b32 s{sT1}, s{sGI}, 8
        s_add_u32 s{sT1}, s{sT1}, 1024
        s_add_u32 s{sT2}, s{sT0}, 1024
        s_cmp_eq_u32 s{sTY}, 0
        s_cselect_b32 s{sT2}, s{sT2}, s{sT0}
        s_cselect_b32 s{sT1}, s{sT0}, s{sT1}
        v_add_u32 v{vQ}, s{sT2}, v{vQ}
        v_add_u32 v{vG}, s{sT1}, v{vG}
        ''')
        return a

    def setup2(self, a):
        a(f'''
        v_lshrrev_b32 v{T[0]}, 4, v{vL}
        v_bfe_u32 v{T[1]}, v{vL}, 2, 2
        v_lshl_add_u32 v{T[2]}, v{T[0]}, 3, v{T[1]}
        v_lshlrev_b32 v{T[2]}, 7, v{T[2]}
        v_bfe_u32 v{T[3]}, v{vL}, 3, 2
        s_lshl_b32 s{sT0}, s{sC}, 1
        s_and_b32 s{sT1}, s{sR}, 1
        s_or_b32 s{sT0}, s{sT0}, s{sT1}
        v_xor_b32 v{T[3]}, s{sT0}, v{T[3]}
        v_lshl_add_u32 v{T[2]}, v{T[3]}, 5, v{T[2]}
        v_and_b32 v{T[3]}, 3, v{vL}
        v_lshl_add_u32 v{T[2]}, v{T[3]}, 3, v{T[2]}
        s_lshr_b32 s{sT1}, s{sR}, 1
        s_lshl_b32 s{sT2}, s{sT1}, 12
        v_add_u32 v{aT[0,0]}, s{sT2}, v{T[2]}
        v_xor_b32 v{aT[0,1]}, 32, v{aT[0,0]}
        v_xor_b32 v{aT[1,0]}, 0x1000, v{aT[0,0]}
        v_xor_b32 v{aT[1,1]}, 0x1020, v{aT[0,0]}
        v_and_b32 v{T[1]}, 15, v{vL}
        s_lshl_b32 s{sT2}, s{sR}, 5
        s_lshl_b32 s{sT3}, s{sC}, 4
        s_add_u32 s{sT2}, s{sT2}, s{sT3}
        v_add_u32 v{T[2]}, s{sT2}, v{T[1]}
        s_lshl_b32 s{sT1}, s{sT1}, 2
        v_or_b32 v{T[3]}, s{sT1}, v{T[0]}
        v_lshrrev_b32 v{T[4]}, 1, v{T[1]}
        v_xor_b32 v{T[3]}, v{T[3]}, v{T[4]}
        v_lshlrev_b32 v{T[3]}, 4, v{T[3]}
        v_lshl_add_u32 v{aX[0,0]}, v{T[2]}, 7, v{T[3]}
        v_xor_b32 v{aX[0,1]}, 64, v{aX[0,0]}
        v_xor_b32 v{aX[1,0]}, 0x800, v{aX[0,0]}
        v_xor_b32 v{aX[1,1]}, 0x840, v{aX[0,0]}
        v_xor_b32 v{vHS}, s{sT3}, v{vL}
        v_lshlrev_b32 v{vHS}, 4, v{vHS}
        ''')
        m64(a, sM_l1, 0x2222222222222222); m64(a, sM_l2, 0x4444444444444444); m64(a, sM_l3, 0x8888888888888888)
        m64(a, sM_hi32, 0xFFFFFFFF00000000); m64(a, sM_b4, 0xFFFF0000FFFF0000)
        m64(a, sM_s0, 0x0F0F0F0F0F0F0F0F); m64(a, sM_s1, 0xF0F0F0F0F0F0F0F0)
        a(f's_mov_b32 vcc_lo, 0x00ff00ff\ns_mov_b32 vcc_hi, 0x00ff00ff')
        a(f'v_mov_b32 v{ONES}, 0x3f803f80')
        for i in range(1, 4): a(f'v_mov_b32 v{ONES+i}, v{ONES}')
        a(f'v_cndmask_b32 v{SEL[0]}, 0, v{ONES}, vcc')
        a(f'v_xor_b32 v{SEL[1]}, v{SEL[0]}, v{ONES}')
        for i in range(1, 4): a(f'v_mov_b32 v{SEL[0]+i}, v{SEL[0]}\nv_mov_b32 v{SEL[1]+i}, v{SEL[1]}')
        a(f'''
        s_lshl_b32 s{sT0}, s{sRB}, 2
        s_add_u32 s{sT0}, s{sT0}, s{sR}
        s_mul_i32 s{sT0}, s{sT0}, {H_TILE}
        s_lshl_b32 s{sT1}, s{sC}, 11
        s_add_u32 s{sT0}, s{sT0}, s{sT1}
        s_and_b32 s{sT1}, s{sR}, 1
        s_lshl_b32 s{sT2}, s{sT1}, 10
        s_add_u32 s{sH0}, s{sT0}, s{sT2}
        s_xor_b32 s{sT2}, s{sT2}, 1024
        s_add_u32 s{sH1}, s{sT0}, s{sT2}
        s_lshl_b32 s{sT0}, s{sC}, 9
        s_lshl_b32 s{sT1}, s{sT1}, 7
        s_add_u32 s{sT0}, s{sT0}, s{sT1}
        s_add_u32 s{sCSR}, s{sT0}, {L_CS}
        s_lshr_b32 s{sT1}, s{sR}, 1
        s_lshl_b32 s{sT1}, s{sT1}, 6
        s_add_u32 s{sCSW}, s{sCSR}, s{sT1}
        s_mul_i32 s{sKV}, s{sGI}, {KV_PITCH}
        s_add_u32 s{sKV}, s{sKV}, {KV_OFF}
        ''')

    def dma(self, srdreg, voff, soff, lds, tag, imm=0):
        s = Seq()
        s(f's_add_u32 m0, s{sM0}, {lds - imm}')
        s(f'buffer_load_dwordx4 v{voff}, s[{srdreg}:{srdreg+3}], s{soff} offen{" offset:%d" % imm if imm else ""} lds', tag)
        return s

    def stage_dmas(self, ty, j, base):
        tag = f'st{j}'; L = []
        if j < 8:
            L.append(self.dma(sX, vXD[0], sKX + j, base, tag))
            if ty == 0:
                L.append(self.dma(sWQ, vQ, sKQ + j, base + 16384, tag))
            else:
                L.append(self.dma(sWG, vG, sKG + j, base + 16384, tag))
            L.append(self.dma(sX, vXD[1], sKX + j, base + 8192, tag))
            if ty == 0:
                L.append(self.dma(sWQ, vQ, sKQ + j, base + 24576, tag, imm=1024))
            else:
                L.append(self.dma(sWU, vG, sKG + j, base + 24576, tag))
        elif j < 12:
            imm = 0
            for h in range(2):
                ch = 2 * (j - 8) + h
                L.append(self.dma(sWG, vG, sKG + ch, base + h * 16384, tag, imm=imm))
                L.append(self.dma(sWU, vG, sKG + ch, base + h * 16384 + 8192, tag, imm=imm))
        else:
            if ty == 1:
                for h in range(4):
                    L.append(self.dma(sWQ, vQ, sKQ + 4 * (j - 12) + h, base + h * 8192, tag))
            else:
                for h in range(2):
                    p = 2 * (j - 12) + h
                    L.append(self.dma(sWG, vQ, sKH + p, base + h * 8192, tag))
                    L.append(self.dma(sWU, vQ, sKH + p, base + 16384 + h * 8192, tag))
        return L

    def groups(self, ty):
        G = []
        for j in range(8):
            for (blk, sig) in ((0, 0), (1, 0), (0, 1), (1, 1)):
                G.append(dict(stage=j, phase=0, ch=j, blk=blk, sig=sig, off=16384 + blk * 8192, ts=512))
        for j in range(8, 12):
            for h in range(2):
                for (blk, sig) in ((0, 0), (1, 0), (0, 1), (1, 1)):
                    G.append(dict(stage=j, phase=1, ch=2 * (j - 8) + h, blk=blk, sig=sig, off=h * 16384 + blk * 8192, ts=512))
        for j in range(12, 14):
            for h in range(4):
                for u in range(2):
                    if ty == 1: G.append(dict(stage=j, phase=2, ch=4 * (j - 12) + h, blk=0, sig=u, off=h * 8192, ts=512))
                    else: G.append(dict(stage=j, phase=2, ch=4 * (j - 12) + h, blk=u, sig=0, off=u * 16384 + h * 4096, ts=256))
        return G

    def body(self, ty):
        slot = [j % 4 for j in range(8)] + [0, 1, 2, 0, 1, 2]
        issue_after = {}
        last = {}
        first = []
        for j in range(14):
            if slot[j] in last: issue_after.setdefault(last[slot[j]] + 1, []).append(j)
            else: first.append(j)
            last[slot[j]] = j
        pre = Seq()
        for j in first:
            for d in self.stage_dmas(ty, j, slot[j] * SLOT): pre += d
        pre(f'''
        v_lshlrev_b32 v{T[0]}, 4, v{vL}
        s_lshl_b32 s{sT0}, s{sGI}, 11
        s_and_b32 s{sT1}, s{sM0}, 1024
        s_add_u32 s{sT0}, s{sT0}, s{sT1}
        s_add_u32 m0, s{sT1}, {L_PH}
        ''')
        pre(f'buffer_load_dwordx4 v{T[0]}, s[{sPH}:{sPH+3}], s{sT0} offen lds', 'ph')
        self.setup2(pre)
        if ty == 1:
            pre(f'''
            v_lshl_add_u32 v{T[0]}, v{vL}, 4, s{sM0}
            s_cmp_eq_u32 s{sRB}, 0
            s_cselect_b32 s{sT0}, s{sKV}, {OOB}
            v_mov_b32 v{T[4]}, 0
            v_mov_b32 v{T[5]}, 0
            v_mov_b32 v{T[6]}, 0
            v_mov_b32 v{T[7]}, 0
            ''')
            pre(f'buffer_store_dwordx4 v[{T[4]}:{T[7]}], v{T[0]}, s[{sWS}:{sWS+3}], s{sT0} offen sc0 sc1', 'zero')
            pre(f'''
            v_cmp_lt_u32 vcc, 639, v{T[0]}
            v_cndmask_b32 v{T[4]}, 0, 1.0, vcc
            v_mov_b32 v{T[5]}, v{T[4]}
            v_mov_b32 v{T[6]}, v{T[4]}
            v_mov_b32 v{T[7]}, v{T[4]}
            v_add_u32 v{T[1]}, 8192, v{T[0]}
            v_mov_b32 v{T[2]}, {OOB}
            v_cmp_gt_u32 vcc, 768, v{T[0]}
            v_cndmask_b32 v{T[1]}, v{T[2]}, v{T[1]}, vcc
            ''')
            pre(f'buffer_store_dwordx4 v[{T[4]}:{T[7]}], v{T[1]}, s[{sWS}:{sWS+3}], s{sT0} offen sc0 sc1', 'zero')
        else:
            s = pre
            for p in range(4):
                s(f's_cmp_eq_u32 s{sC}, 0\ns_cselect_b32 s{sKH+p}, s{sKG+2*p}, s{sKG+2*p+1}')

        G = self.groups(ty)
        win = {'t': 0, 'x': 0}
        def setwin(s, which, regs, base):
            w = base // 65536
            if win[which] != w:
                d = (w - win[which]) * 65536
                for r in regs: s(f'v_add_u32 v{r}, 0x{d & 0xffffffff:x}, v{r}')
                win[which] = w
            return base - w * 65536
        def reads(gi):
            g = G[gi]; L = []
            hd = Seq()
            if ty == 0 and g['phase'] == 2 and G[gi - 1]['phase'] == 1:
                hd(f'''
                v_lshrrev_b32 v{aT[0,1]}, 4, v{vL}
                v_bfe_u32 v{aT[1,1]}, v{vL}, 2, 2
                v_lshl_add_u32 v{aT[0,0]}, v{aT[0,1]}, 3, v{aT[1,1]}
                v_lshlrev_b32 v{aT[0,0]}, 6, v{aT[0,0]}
                v_and_b32 v{aT[0,1]}, 1, v{aT[0,1]}
                v_xor_b32 v{aT[0,1]}, s{sC}, v{aT[0,1]}
                v_lshl_add_u32 v{aT[0,0]}, v{aT[0,1]}, 5, v{aT[0,0]}
                v_and_b32 v{aT[0,1]}, 3, v{vL}
                v_lshl_add_u32 v{aT[0,0]}, v{aT[0,1]}, 3, v{aT[0,0]}
                s_lshr_b32 s{sU0}, s{sR}, 1
                s_lshl_b32 s{sU0}, s{sU0}, 11
                v_add_u32 v{aT[0,0]}, s{sU0}, v{aT[0,0]}
                v_xor_b32 v{aT[1,0]}, 0x800, v{aT[0,0]}
                ''')
                win['t'] = 0
            b = setwin(hd, 't', list(aT.values()), slot[g['stage']] * SLOT) + g['off']
            buf = WF + 8 * (gi % 3)
            for kp in range(2):
                for t in range(2):
                    s = Seq()
                    if not L: s += hd
                    s(f'ds_read_b64_tr_b16 v[{buf+4*kp+2*t}:{buf+4*kp+2*t+1}], v{aT[kp, g["sig"]]} offset:{b + t * g["ts"]}')
                    L.append(s)
            return L
        def boundary(j):
            s = Seq()
            s.waitvm(f'st{j}')
            if j == 4 and ty == 1: s.waitvm('zero')
            if j == 4: s.waitvm('ph')
            s.waitlgkm0()
            s('s_barrier')
            if j < 8:
                b = setwin(s, 'x', list(aX.values()), slot[j] * SLOT)
                for rs in range(2):
                    for sp in range(2):
                        r = X(rs, 2 * j + sp)
                        s(f'ds_read_b128 v[{r}:{r+3}], v{aX[rs, sp]} offset:{b}')
            if j == 4 and ty == 1:
                s(f'''
                s_lshl_b32 s{sT0}, s{sGI}, 5
                s_or_b32 s{sT1}, s{sRB}, s{sW}
                s_cmp_eq_u32 s{sT1}, 0
                s_cselect_b32 s{sT0}, s{sT0}, {OOB}
                v_lshlrev_b32 v{T[0]}, 8, v{vL}
                v_mov_b32 v{T[1]}, 1
                buffer_store_dword v{T[1]}, v{T[0]}, s[{sDB}:{sDB+3}], s{sT0} offen sc0 sc1
                ''')
            return s
        def mfmas(gi):
            g = G[gi]; ph = g['phase']; A = ACC[ph & 1]; buf = WF + 8 * (gi % 3); L = []
            firstk = g['ch'] == 0
            for rs in range(2):
                d = A + g['blk'] * 16 + g['sig'] * 8 + rs * 4
                for kp in range(2):
                    c = '0' if (firstk and kp == 0) else vr(d, 4)
                    x = X(rs, 2 * g['ch'] + kp)
                    L.append(f'v_mfma_f32_16x16x32_bf16 {vr(d,4)}, {vr(buf+4*kp,4)}, {vr(x,4)}, {c}')
            if g['sig'] == 0:
                c = '0' if (firstk and g['blk'] == 0) else vr(CS, 4)
                L.append(f'v_mfma_f32_16x16x32_bf16 {vr(CS,4)}, {vr(SEL[g["blk"]],4)}, {vr(buf,4)}, {c}')
            elif ph == 0:
                d, acc = (SUM, ONES) if g['blk'] == 0 else (GRAM, None)
                for kp in range(2):
                    x = X(0, 2 * g['ch'] + kp)
                    c = '0' if (firstk and kp == 0) else vr(d, 4)
                    L.insert(kp, f'v_mfma_f32_16x16x32_bf16 {vr(d,4)}, {vr(acc if acc else x,4)}, {vr(x,4)}, {c}')
            return L

        phases = [Seq(), Seq(), Seq()]
        head = Seq()
        head += boundary(0)
        self.stamp(head)
        pend = []
        for d in issue_after.get(0, []): pend += self.stage_dmas(ty, d, slot[d] * SLOT)
        for gi in (0, 1):
            for r in reads(gi): head += r
        for gi in range(len(G)):
            m = phases[G[gi]['phase']]
            M = mfmas(gi)
            nxt = gi + 2
            R = []; bnd = None
            if nxt < len(G):
                if G[nxt]['stage'] != G[nxt - 1]['stage']:
                    bnd = boundary(G[nxt]['stage'])
                R = reads(nxt)
            if bnd is None:
                for k, t in enumerate(M):
                    m(t)
                    if k < len(R): m += R[k]
                    if k == 1 and pend: m += pend.pop(0)
                    if k == 3 and pend and G[gi]['phase'] == 0: m += pend.pop(0)
            else:
                for p in pend: m += p
                pend = []
                m(M[0]); m(M[1]); m += bnd
                j = G[nxt]['stage']
                if ty == 1 and j == 5: m(f'v_add_u32 v{vG}, 128, v{vG}')
                if ty == 0 and j == 5:
                    m(f'''
                    v_lshrrev_b32 v{T[0]}, 2, v{vL}
                    s_lshl_b32 s{sT0}, s{sR}, 4
                    v_add_u32 v{T[0]}, s{sT0}, v{T[0]}
                    v_lshrrev_b32 v{T[1]}, 5, v{vL}
                    v_lshlrev_b32 v{T[1]}, 1, v{T[1]}
                    v_and_b32 v{T[2]}, 3, v{vL}
                    v_xor_b32 v{T[1]}, v{T[1]}, v{T[2]}
                    s_lshl_b32 s{sT0}, s{sGI}, 6
                    s_add_u32 s{sT0}, s{sT0}, {24*128}
                    v_lshl_add_u32 v{T[1]}, v{T[1]}, 4, s{sT0}
                    s_movk_i32 s{sT0}, 3584
                    v_mad_u32_u24 v{vQ}, v{T[0]}, s{sT0}, v{T[1]}
                    ''')
                for d in issue_after.get(j, []): pend += self.stage_dmas(ty, d, slot[d] * SLOT)
                m += R[0]; m += R[1]; m(M[2]); m += R[2]; m += R[3]
                for t in M[3:]: m(t)
            if gi + 1 == len(G) or G[gi + 1]['phase'] != G[gi]['phase']:
                self.phase_end(m, G[gi]['phase'])
        assert not pend
        out = Seq(); out += pre; out += head
        out += phases[0]
        self.stamp(out)
        E0 = self.epi_head(0)
        E0 += self.ln_consts(ty)
        E0 += self.corr(0, [(0, 0), (1, 0), (0, 1), (1, 1)])
        if ty == 0: E0 += self.epi_kv()
        else: E0 += self.gelu(ACC[0], 2, lambda s, sig: s(f's_lshl_b32 s{sT0}, s{sGI}, 13\ns_add_u32 s{sT0}, s{sT0}, {8*4096}\ns_add_u32 s{sT0}, s{sT0}, s{sH1 if sig else sH0}'))
        o, rest = interleave(phases[1], E0, self.rate[1]); out += self.place(o, rest)
        self.stamp(out)
        E1 = Seq()
        if ty == 0: E1.waitvm('kvat')
        E1 += self.epi_head(1)
        if ty == 0: E1 += self.kv_signal()
        E1 += self.corr(1, [(0, 0), (1, 0), (0, 1), (1, 1)])
        if ty == 0: E1 += self.gelu(ACC[1], 2, lambda s, sig: s(f's_lshl_b32 s{sT0}, s{sGI}, 12\ns_add_u32 s{sT0}, s{sT0}, s{sH1 if sig else sH0}'))
        else: E1 += self.gelu(ACC[1], 2, lambda s, sig: s(f's_lshl_b32 s{sT0}, s{sGI}, 13\ns_add_u32 s{sT0}, s{sT0}, {9*4096}\ns_add_u32 s{sT0}, s{sT0}, s{sH1 if sig else sH0}'))
        o, rest = interleave(phases[2], E1, self.rate[2]); out += self.place(o, rest)
        self.stamp(out)
        E2 = Seq()
        if ty == 1: E2 += self.kv_fetch()
        E2 += self.epi_head(2)
        if ty == 0:
            E2 += self.corr(2, [(0, 0), (1, 0)])
            def ad(s, sig):
                s(f'''
                s_min_u32 s{sT0}, s{sH0}, s{sH1}
                s_lshl_b32 s{sT1}, s{sC}, 10
                s_sub_u32 s{sT0}, s{sT0}, s{sT1}
                s_lshl_b32 s{sT1}, s{sGI}, 11
                s_add_u32 s{sT0}, s{sT0}, s{sT1}
                s_add_u32 s{sT0}, s{sT0}, {24*4096}
                ''')
            E2 += self.gelu(ACC[0], 1, ad)
        else:
            E2 += self.corr(2, [(0, 0), (0, 1)])
            E2 += self.epi_q()
        out += Seq(x for x in E2 if not (isinstance(x, P) and x.kind == 'gap'))
        self.stamp(out)
        if self.stamps:
            out(f'v_mov_b32 v{T[0]}, 0')
            out(f's_lshl_b32 s{sT0}, s2, 3\ns_add_u32 s{sT0}, s{sT0}, s{sW}\ns_lshl_b32 s{sT0}, s{sT0}, 6\ns_add_u32 s{sT0}, s{sT0}, {STAMP_OFF}')
            out.waitlgkm0()
            for i in range(self.nst):
                out(f'v_mov_b32 v{T[1]}, s{sSTL[i]}')
                out(f'buffer_store_dword v{T[1]}, v{T[0]}, s[{sWS}:{sWS+3}], s{sT0} offen offset:{4*i}')
        return out

    def place(self, o, rest):
        k = max(i for i, x in enumerate(o) if isinstance(x, P) and x.kind == 'comment' and x.arg == 'phase end')
        r = Seq(o[:k]); r += rest; r += o[k:]
        return r

    def phase_end(self, m, ph):
        m.comment('phase end')
        m(f'''
        v_and_b32 v{T[0]}, 15, v{vL}
        v_lshrrev_b32 v{T[1]}, 5, v{vL}
        v_lshl_add_u32 v{T[0]}, v{T[0]}, 2, s{sCSW}
        v_lshl_add_u32 v{T[0]}, v{T[1]}, 8, v{T[0]}
        v_cvt_pk_bf16_f32 v{T[1]}, v{CS}, v{CS}
        v_lshlrev_b32 v{T[1]}, 16, v{T[1]}
        v_sub_f32 v{T[1]}, v{CS}, v{T[1]}
        v_cvt_pk_bf16_f32 v{T[1]}, v{CS}, v{T[1]}
        ''')
        m(f'ds_write_b32 v{T[0]}, v{T[1]} offset:{ph*1024}', 'xch')
        if ph == 0:
            m(f'''
            v_and_b32 v{T[2]}, 15, v{vL}
            s_lshl_b32 s{sT0}, s{sR}, 8
            s_lshl_b32 s{sT1}, s{sC}, 7
            s_add_u32 s{sT0}, s{sT0}, s{sT1}
            s_add_u32 s{sT0}, s{sT0}, {L_ST}
            v_lshl_add_u32 v{T[2]}, v{T[2]}, 3, s{sT0}
            s_mov_b32 vcc_lo, 0x00f0000f
            s_mov_b32 vcc_hi, 0xf0000f00
            v_mov_b32 v{T[3]}, {L_DUM}
            v_cndmask_b32 v{T[3]}, v{T[3]}, v{T[2]}, vcc
            v_cndmask_b32 v{SUM+1}, v{GRAM}, v{GRAM+1}, s[{sM_l1}:{sM_l1+1}]
            v_cndmask_b32 v{SUM+1}, v{SUM+1}, v{GRAM+2}, s[{sM_l2}:{sM_l2+1}]
            v_cndmask_b32 v{SUM+1}, v{SUM+1}, v{GRAM+3}, s[{sM_l3}:{sM_l3+1}]
            ''')
            m(f'ds_write_b64 v{T[3]}, v[{SUM}:{SUM+1}]', 'xch')

    def epi_head(self, ph):
        s = Seq()
        s.gap(2)
        s.waitlg('xch')
        s('s_barrier')
        return s

    def ln_consts(self, ty):
        s = Seq()
        s(f'''
        v_xor_b32 v{T[3]}, 128, v{T[2]}
        ds_read_b64 v[{T[4]}:{T[5]}], v{T[2]}
        ds_read_b64 v[{T[6]}:{T[7]}], v{T[3]}
        ''')
        s.gap(3)
        for rs in range(2):
            S, Q = T[4 + 2 * rs], T[5 + 2 * rs]; c0, c1, ve = LNC[rs], LNC[rs] + 1, LNC[rs] + 2
            r = T[rs]
            s(f'''
            v_mul_f32 v{S}, {f2u(-1.0/512)}, v{S}
            v_mul_f32 v{Q}, {f2u(1.0/512)}, v{Q}
            v_fma_f32 v{Q}, -v{S}, v{S}, v{Q}
            v_max_f32 v{Q}, 0, v{Q}
            v_add_f32 v{ve}, {f2u(1e-5)}, v{Q}
            v_rsq_f32 v{r}, v{ve}
            v_cvt_pk_bf16_f32 v{Q}, v{S}, v{S}
            v_lshlrev_b32 v{T[2]}, 16, v{Q}
            v_sub_f32 v{T[2]}, v{S}, v{T[2]}
            v_cvt_pk_bf16_f32 v{T[2]}, v{T[2]}, v{T[2]}
            v_cndmask_b32 v{BX[rs]}, v{Q}, v{T[2]}, s[{sM_hi32}:{sM_hi32+1}]
            v_mov_b32 v{BX[rs]+1}, 0
            v_mul_f32 v{c0}, {f2u(C0)}, v{r}
            v_mul_f32 v{c1}, v{r}, v{r}
            v_mul_f32 v{c1}, v{c1}, v{c0}
            v_mul_f32 v{c1}, {f2u(0.044715)}, v{c1}
            ''')
        s(f'''
        v_cndmask_b32 v{vR32}, v{T[0]}, v{T[1]}, s[{sM_b4}:{sM_b4+1}]
        v_mul_f32 v{vSC}, {f2u(LOG2E)}, v{vR32}
        ''')
        return s

    def corr(self, ph, tiles):
        s = Seq(); A = ACC[ph & 1]
        s(f'''
        v_and_b32 v{T[1]}, 31, v{vL}
        v_lshl_add_u32 v{T[1]}, v{T[1]}, 2, s{sCSR}
        v_xor_b32 v{T[3]}, 128, v{T[1]}
        ''')
        for k, (blk, sig) in enumerate(tiles):
            s(f'ds_read_b32 v{T[2*k]}, v{T[3] if sig else T[1]} offset:{ph*1024 + blk*256}')
        for k in range(len(tiles)): s(f'v_mov_b32 v{T[2*k+1]}, 0')
        s.gap(3)
        for k, (blk, sig) in enumerate(tiles):
            for rs in range(2):
                d = A + blk * 16 + sig * 8 + rs * 4
                s(f'v_mfma_f32_16x16x16_bf16 {vr(d,4)}, {vr(T[2*k],2)}, {vr(BX[rs],2)}, {vr(d,4)}')
        s.gap(2)
        return s

    def gelu(self, A, nsig, addr):
        s = Seq()
        for sig in range(nsig):
            for rs in range(2):
                a = A + sig * 8 + rs * 4; b = a + 16; c0, c1, ve = LNC[rs], LNC[rs] + 1, LNC[rs] + 2
                for i in range(4): s(f'v_mul_f32 v{T[i]}, v{a+i}, v{a+i}')
                for i in range(4): s(f'v_fma_f32 v{T[i]}, v{T[i]}, v{c1}, v{c0}')
                for i in range(4):
                    s(f'v_mul_f32 v{b+i}, v{a+i}, v{b+i}')
                    s(f'v_mul_f32 v{a+i}, v{T[i]}, v{a+i}')
                for i in range(4): s(f'v_exp_f32 v{a+i}, v{a+i}')
                for i in range(4): s(f'v_fma_f32 v{a+i}, v{a+i}, v{ve}, v{ve}')
                for i in range(4): s(f'v_rcp_f32 v{a+i}, v{a+i}')
                for i in range(4): s(f'v_mul_f32 v{b+i}, v{b+i}, v{a+i}')
                d = A + sig * 8 + rs * 2
                s(f'v_cvt_pk_bf16_f32 v{d}, v{b}, v{b+1}\nv_cvt_pk_bf16_f32 v{d+1}, v{b+2}, v{b+3}')
            d = A + sig * 8
            addr(s, sig)
            s(f'v_permlane16_swap_b32 v{d}, v{d+2}\nv_permlane16_swap_b32 v{d+1}, v{d+3}')
            s(f'buffer_store_dwordx4 {vr(d,4)}, v{vHS}, s[{sWS}:{sWS+3}], s{sT0} offen{self.sc}', 'hst')
        return s

    def qk_logits(self, s, K, L):
        for sig in range(2):
            k = K + 8 * sig
            for i in range(4): s(f'v_cvt_pk_bf16_f32 v{k+i}, v{k+2*i}, v{k+2*i+1}')
        s(f'''
        v_lshrrev_b32 v{T[0]}, 5, v{vL}
        v_bfe_u32 v{T[1]}, v{vL}, 2, 2
        v_lshl_add_u32 v{T[0]}, v{T[0]}, 3, v{T[1]}
        v_lshlrev_b32 v{T[0]}, 5, v{T[0]}
        v_bfe_u32 v{T[1]}, v{vL}, 4, 1
        v_lshl_add_u32 v{T[0]}, v{T[1]}, 4, v{T[0]}
        v_bfe_u32 v{T[1]}, v{vL}, 1, 1
        v_lshl_add_u32 v{T[0]}, v{T[1]}, 3, v{T[0]}
        v_xor_b32 v{T[1]}, s{sR}, v{vL}
        v_and_b32 v{T[1]}, 1, v{T[1]}
        v_lshl_add_u32 v{T[0]}, v{T[1]}, 9, v{T[0]}
        s_lshl_b32 s{sT0}, s{sC}, 10
        s_add_u32 s{sT0}, s{sT0}, {L_PH}
        v_add_u32 v{T[0]}, s{sT0}, v{T[0]}
        ds_read_b64_tr_b16 v[{T[4]}:{T[5]}], v{T[0]}
        ds_read_b64_tr_b16 v[{T[6]}:{T[7]}], v{T[0]} offset:128
        ''')
        for sig in range(2):
            k = K + 8 * sig
            s(f'v_permlane16_swap_b32 v{k}, v{k+2}\nv_permlane16_swap_b32 v{k+1}, v{k+3}')
        s.gap(2)
        for sig, m in ((0, sM_s0), (1, sM_s1)):
            for i in range(4): s(f'v_cndmask_b32 v{K+8*sig+4+i}, 0, v{T[4+i]}, s[{m}:{m+1}]')
        s(f'v_mfma_f32_32x32x16_bf16 {vr(L,16)}, {vr(K+4,4)}, {vr(K,4)}, 0')
        s(f'v_mfma_f32_32x32x16_bf16 {vr(L,16)}, {vr(K+12,4)}, {vr(K+8,4)}, {vr(L,16)}')
        s.gap(3)

    def exps(self, s, L, E):
        mx, mn = T[0], T[1]
        s(f'v_max3_f32 v{mx}, v{L}, v{L+1}, v{L+2}\nv_min3_f32 v{mn}, v{L}, v{L+1}, v{L+2}')
        for i in range(3, 15, 2):
            s(f'v_max3_f32 v{mx}, v{mx}, v{L+i}, v{L+i+1}\nv_min3_f32 v{mn}, v{mn}, v{L+i}, v{L+i+1}')
        s(f'v_max_f32 v{mx}, v{mx}, v{L+15}\nv_min_f32 v{mn}, v{mn}, v{L+15}')
        s(f'v_mul_f32 v{mx}, v{mx}, v{vSC}\nv_mul_f32 v{mn}, v{mn}, v{vSC}')
        for i in range(0, 16, 2):
            for u in (i, i + 1):
                s(f'v_fma_f32 v{E+u}, v{L+u}, v{vSC}, -v{mx}')
                s(f'v_fma_f32 v{L+u}, -v{L+u}, v{vSC}, v{mn}')
            for u in (i, i + 1):
                s(f'v_exp_f32 v{E+u}, v{E+u}\nv_exp_f32 v{L+u}, v{L+u}')

    def epi_kv(self):
        s = Seq(); K = ACC[0]; V = K + 16
        s(f'''
        v_and_b32 v{T[0]}, 15, v{vL}
        v_lshrrev_b32 v{T[1]}, 4, v{vL}
        v_lshlrev_b32 v{T[1]}, 3, v{T[1]}
        s_movk_i32 s{sT0}, {RECP}
        v_mad_u32_u24 v{T[0]}, v{T[0]}, s{sT0}, v{T[1]}
        s_mul_i32 s{sT0}, s{sR}, {32*RECP}
        s_mul_i32 s{sT1}, s{sC}, {2*RECH}
        s_add_u32 s{sT0}, s{sT0}, s{sT1}
        s_add_u32 s{sPC}, s{sT0}, {REC}
        s_and_b32 s{sT1}, s{sR}, 1
        s_mul_i32 s{sT1}, s{sT1}, {RECH}
        s_add_u32 s{sT2}, s{sPC}, s{sT1}
        s_sub_u32 s{sT3}, s{sPC}, s{sT1}
        s_add_u32 s{sT3}, s{sT3}, {RECH}
        v_add_u32 v{T[1]}, s{sT3}, v{T[0]}
        v_add_u32 v{T[0]}, s{sT2}, v{T[0]}
        ''')
        for sig in range(2):
            for rs in range(2):
                v = V + sig * 8 + rs * 4
                s(f'v_cvt_pk_bf16_f32 v{v}, v{v}, v{v+1}\nv_cvt_pk_bf16_f32 v{v+1}, v{v+2}, v{v+3}')
                s(f'ds_write_b64 v{T[sig]}, {vr(v,2)} offset:{64 + rs*16*RECP}')
        self.qk_logits(s, K, V)
        self.exps(s, V, K)
        sp, sm = T[2], T[3]
        s(f'v_add_f32 v{sp}, v{K}, v{K+1}\nv_add_f32 v{sm}, v{V}, v{V+1}')
        for i in range(2, 16): s(f'v_add_f32 v{sp}, v{sp}, v{K+i}\nv_add_f32 v{sm}, v{sm}, v{V+i}')
        s(f'''
        v_rcp_f32 v{sp}, v{sp}
        v_rcp_f32 v{sm}, v{sm}
        v_cndmask_b32 v{T[4]}, v{LNC[0]+2}, v{LNC[1]+2}, s[{sM_b4}:{sM_b4+1}]
        v_mul_f32 v{sp}, v{sp}, v{vR32}
        v_mul_f32 v{sm}, v{sm}, v{vR32}
        v_mul_f32 v{T[4]}, v{T[4]}, v{vR32}
        v_cvt_pk_bf16_f32 v{T[4]}, v{T[4]}, v{T[4]}
        v_and_b32 v{T[0]}, 31, v{vL}
        v_lshrrev_b32 v{T[1]}, 5, v{vL}
        v_xor_b32 v{T[1]}, s{sR}, v{T[1]}
        v_and_b32 v{T[1]}, 1, v{T[1]}
        v_mul_u32_u24 v{T[1]}, {RECH}, v{T[1]}
        s_movk_i32 s{sT0}, {RECP}
        v_mad_u32_u24 v{T[0]}, v{T[0]}, s{sT0}, v{T[1]}
        v_add_u32 v{T[0]}, s{sPC}, v{T[0]}
        ds_write_b32 v{T[0]}, v{T[4]} offset:96
        ''')
        for (E, sc, off) in ((K, sp, 0), (V, sm, 32)):
            for h in range(2):
                for i in range(8 * h, 8 * h + 8): s(f'v_mul_f32 v{E+i}, v{E+i}, v{sc}')
                for i in range(4 * h, 4 * h + 4): s(f'v_cvt_pk_bf16_f32 v{E+i}, v{E+2*i}, v{E+2*i+1}')
                s(f'ds_write_b128 v{T[0]}, {vr(E+4*h,4)} offset:{off+16*h}', 'rec')
        s(f's_lshl_b32 s{sT0}, s{sGI}, 5\nv_mov_b32 v{T[7]}, 0')
        s(f'buffer_load_dword v{T[6]}, v{T[7]}, s[{sDB}:{sDB+3}], s{sT0} offen sc0 sc1')
        s(f'''
        v_lshrrev_b32 v{T[0]}, 5, v{vL}
        v_bfe_u32 v{T[1]}, v{vL}, 2, 2
        v_lshl_add_u32 v{T[0]}, v{T[0]}, 3, v{T[1]}
        s_mul_i32 s{sT1}, s{sR}, {RECH}
        s_mul_i32 s{sT2}, s{sC}, {64*RECP}
        s_add_u32 s{sT1}, s{sT1}, s{sT2}
        s_add_u32 s{sT1}, s{sT1}, {REC}
        v_mul_u32_u24 v{T[0]}, {RECP}, v{T[0]}
        v_add_u32 v{T[0]}, s{sT1}, v{T[0]}
        v_and_b32 v{T[1]}, 3, v{vL}
        v_lshl_add_u32 v{T[1]}, v{T[1]}, 3, v{T[0]}
        v_add_u32 v{T[0]}, 32, v{T[0]}
        v_cndmask_b32 v{T[0]}, v{T[1]}, v{T[0]}, s[{sM_b4}:{sM_b4+1}]
        v_bfe_u32 v{T[2]}, v{vL}, 4, 1
        v_lshl_add_u32 v{T[1]}, v{T[2]}, 5, v{T[1]}
        ''')
        s.gap(2)
        s.waitlg('rec')
        s('s_barrier')
        for half in range(2):
            for kk in range(2):
                k = 2 * half + kk
                for t in range(2):
                    o = (16 * k + 4 * t) * RECP
                    s(f'ds_read_b64_tr_b16 {vr(K+8*kk+2*t,2)}, v{T[0]} offset:{o+64}')
                    s(f'ds_read_b64_tr_b16 {vr(K+8*kk+4+2*t,2)}, v{T[1]} offset:{o}')
            s.gap(3)
            for kk in range(2):
                c = '0' if (half == 0 and kk == 0) else vr(V, 16)
                s(f'v_mfma_f32_32x32x16_bf16 {vr(V,16)}, {vr(K+8*kk,4)}, {vr(K+8*kk+4,4)}, {c}')
        s(f'''
        v_and_b32 v{T[0]}, 31, v{vL}
        v_lshlrev_b32 v{T[0]}, 2, v{T[0]}
        v_mov_b32 v{T[2]}, {OOB}
        v_cndmask_b32 v{T[1]}, v{T[0]}, v{T[2]}, s[{sM_hi32}:{sM_hi32+1}]
        v_lshrrev_b32 v{T[2]}, 5, v{vL}
        v_lshl_add_u32 v{T[0]}, v{T[2]}, 9, v{T[0]}
        ''')
        self.poll(s, T[6], T[7], sDB, f's_lshl_b32 s{sT0}, s{sGI}, 5', 1)
        s(f's_mul_i32 s{sT0}, s{sR}, {KV_HEAD}\ns_add_u32 s{sPC}, s{sT0}, s{sKV}')
        s.gap(2)
        for j in range(2):
            for i in range(4):
                s(f'buffer_atomic_add_f32 v{V+4*j+i}, v{T[0]}, s[{sWS}:{sWS+3}], s{sPC} offen offset:{(8*j+i)*128} sc1', 'kvat')
        s(f'buffer_atomic_add_f32 v{V+8}, v{T[1]}, s[{sWS}:{sWS+3}], s{sPC} offen offset:{16*128} sc1', 'kvat')
        return s

    def poll(self, s, vd, vz, srdreg, soffcode, want):
        l1, l2 = self.lab('poll'), self.lab('ok')
        b = Seq()
        b(f'v_readfirstlane_b32 s{sT1}, v{vd}')
        b(f's_cmp_ge_u32 s{sT1}, {want}\ns_cbranch_scc1 {l2}')
        b.append(P('skip_begin'))
        b(soffcode)
        b(f's_mov_b32 s{sT2}, 0\n{l1}:')
        b(f's_sleep 1')
        b(f'buffer_load_dword v{vd}, v{vz}, s[{srdreg}:{srdreg+3}], s{sT0} offen sc0 sc1')
        b(f's_waitcnt vmcnt(0)')
        b(f'v_readfirstlane_b32 s{sT1}, v{vd}')
        b(f's_add_u32 s{sT2}, s{sT2}, 1\ns_cmp_ge_u32 s{sT2}, 0x40000\ns_cbranch_scc1 {l2}')
        b(f's_cmp_lt_u32 s{sT1}, {want}\ns_cbranch_scc1 {l1}\n{l2}:')
        b.append(P('skip_end'))
        for x in b: x.cost = 0
        s += b

    def kv_signal(self):
        s = Seq()
        s(f'''
        s_cmp_eq_u32 s{sW}, 0
        s_cselect_b32 s{sT0}, s{sKV}, {OOB}
        v_lshlrev_b32 v{T[0]}, 24, v{vL}
        v_mov_b32 v{T[1]}, 1
        s_add_u32 s{sT0}, s{sT0}, {KV_CNT}
        buffer_atomic_add v{T[1]}, v{T[0]}, s[{sWS}:{sWS+3}], s{sT0} offen sc1
        ''')
        return s

    KVF = 128
    def kv_fetch(self):
        s = Seq(); F = self.KVF
        s(f'v_mov_b32 v{T[7]}, 0\ns_lshl_b32 s{sT0}, s{sGI}, 5')
        s(f'buffer_load_dword v{T[6]}, v{T[7]}, s[{sDB}:{sDB+3}], s{sT0} offen sc0 sc1')
        self.poll(s, T[6], T[7], sDB, f's_lshl_b32 s{sT0}, s{sGI}, 5', 1)
        s(f's_add_u32 s{sT0}, s{sKV}, {KV_CNT}')
        s(f'buffer_load_dword v{T[6]}, v{T[7]}, s[{sWS}:{sWS+3}], s{sT0} offen sc0 sc1')
        self.poll(s, T[6], T[7], sWS, f's_add_u32 s{sT0}, s{sKV}, {KV_CNT}', 16)
        a0, a1 = F + 32, F + 33
        s(f'''
        v_and_b32 v{T[4]}, 3, v{vL}
        v_bfe_u32 v{T[5]}, v{vL}, 2, 1
        v_lshl_add_u32 v{T[4]}, v{T[5]}, 3, v{T[4]}
        v_bfe_u32 v{T[5]}, v{vL}, 3, 1
        v_lshl_add_u32 v{T[4]}, v{T[5]}, 2, v{T[4]}
        v_cndmask_b32 v{T[4]}, v{T[4]}, 16, s[{sM_b4}:{sM_b4+1}]
        v_lshlrev_b32 v{T[4]}, 7, v{T[4]}
        s_lshl_b32 s{sT0}, s{sC}, 1
        s_and_b32 s{sT1}, s{sR}, 1
        s_or_b32 s{sT0}, s{sT0}, s{sT1}
        s_mul_i32 s{sT1}, s{sT0}, {KV_HEAD}
        s_xor_b32 s{sT0}, s{sT0}, 1
        s_mul_i32 s{sT0}, s{sT0}, {KV_HEAD}
        v_add_u32 v{a0}, s{sT1}, v{T[4]}
        v_add_u32 v{a1}, s{sT0}, v{T[4]}
        s_mov_b32 vcc_lo, 0xaaaa0000
        s_mov_b32 vcc_hi, 0xaaaa0000
        v_mov_b32 v{T[4]}, {KV_ONES}
        v_cndmask_b32 v{a0}, v{a0}, v{T[4]}, vcc
        v_cndmask_b32 v{a1}, v{a1}, v{T[4]}, vcc
        v_and_b32 v{T[4]}, 32, v{vL}
        v_add_u32 v{a0}, v{a0}, v{T[4]}
        v_add_u32 v{a1}, v{a1}, v{T[4]}
        ''')
        for sig in range(2):
            for sg in range(2):
                for h in range(2):
                    r = F + sig * 16 + sg * 8 + h * 4
                    s(f'buffer_load_dwordx4 {vr(r,4)}, v{a1 if sig else a0}, s[{sWS}:{sWS+3}], s{sKV} offen offset:{sg*64+h*16} sc0 sc1')
        return s

    def epi_q(self):
        s = Seq(); Q = ACC[0]; L = Q + 16; F = self.KVF; C = 176
        self.qk_logits(s, Q, L)
        for k in range(4):
            for i in range(4): s(f'v_cvt_pk_bf16_f32 v{F+8*k+i}, v{F+8*k+2*i}, v{F+8*k+2*i+1}')
        self.exps(s, L, Q)
        for E in (Q, L):
            for i in range(8): s(f'v_cvt_pk_bf16_f32 v{E+i}, v{E+2*i}, v{E+2*i+1}')
            for i in range(4): s(f'v_permlane32_swap_b32 v{E+i}, v{E+4+i}')
        for sig in range(2):
            for sg, E in enumerate((Q, L)):
                s(f'v_mfma_f32_32x32x16_bf16 {vr(C+32*sig+16*sg,16)}, {vr(F+16*sig+8*sg,4)}, {vr(E+4*sig,4)}, 0')
        for sig in range(2):
            p = C + 32 * sig; m = p + 16
            s(f'''
            v_rcp_f32 v{p+9}, v{p+9}
            v_rcp_f32 v{m+9}, v{m+9}
            v_fmaak_f32 v{p+8}, v{p+8}, v{p+9}, {f2u(1e-6)}
            v_fmac_f32 v{p+8}, v{m+8}, v{m+9}
            v_rcp_f32 v{p+8}, v{p+8}
            v_mul_f32 v{p+9}, v{p+9}, v{p+8}
            v_mul_f32 v{m+9}, v{m+9}, v{p+8}
            ''')
            for i in range(8): s(f'v_mul_f32 v{p+i}, v{p+i}, v{p+9}')
            for i in range(8): s(f'v_fmac_f32 v{p+i}, v{m+i}, v{m+9}')
            for i in range(4): s(f'v_cvt_pk_bf16_f32 v{p+i}, v{p+2*i}, v{p+2*i+1}')
            s(f's_lshl_b32 s{sT0}, s{sGI}, 12\ns_add_u32 s{sT0}, s{sT0}, {112*1024}\ns_add_u32 s{sT0}, s{sT0}, s{sH1 if sig else sH0}')
            s(f'buffer_store_dwordx4 {vr(p,4)}, v{vHS}, s[{sWS}:{sWS+3}], s{sT0} offen{self.sc}', 'hst')
        return s

    def text(self):
        stats = {}
        pro = self.prologue()
        pro(f's_cmp_eq_u32 s{sTY}, 1')
        pro.waitlgkm0()
        pro('s_cbranch_scc1 K1_TYPEB')
        l0, st = finalize(pro, None, stats)
        n0 = self.nst
        A = self.body(0); A('s_endpgm')
        self.nst = n0
        B = self.body(1)
        la, _ = finalize(A, st, stats); lb, _ = finalize(B, st, stats)
        self.stats = stats
        return '\n'.join(l0 + la + ['K1_TYPEB:'] + lb) + '\n'

class K2:
    NREG = 20; HWIN = 10
    START = [0, 40, 76, 112]; LEN = [40, 36, 36, 32]
    def __init__(self, stamps=False):
        self.stamps = stamps
    def text(self):
        a = Seq()
        sXo, sWD, sWO, sOUT, sWS2 = 4, 8, 12, 16, 20
        sW, sT_, sRO, sM0, sHB, sT0, sT1, sT2, sHS, sR1, sR2, sROW = 32, 33, 34, 35, 36, 37, 38, 39, 40, 41, 42, 43
        WR, AC, HW = 96, 64, 24
        vL, vD, vH, vXO = 0, 1, 2, 3
        a1 = [4, 5]; a2 = [6, 7]; XR = 8; T = list(range(12, 24))
        a('s_cmp_lt_u32 s2, 256\ns_cbranch_scc1 K2_GO\ns_endpgm\nK2_GO:')
        post = [srd(a, sXo, 0, 2097152), srd(a, sWD, 56, 1835008), srd(a, sWO, 24, 524288), srd(a, sOUT, 64, 2097152),
                srd(a, sWS2, 80, (16 << 20) if self.stamps else WS_SIZE)]
        if self.stamps: a('s_memtime s[50:51]')
        a(f'''
        v_lshrrev_b32 v{T[0]}, 6, v0
        v_and_b32 v{vL}, 63, v0
        v_readfirstlane_b32 s{sW}, v{T[0]}
        s_and_b32 s{sT0}, s2, 3
        s_lshl_b32 s{sT0}, s{sT0}, 3
        s_and_b32 s{sT1}, s2, 4
        s_add_u32 s{sT0}, s{sT0}, s{sT1}
        s_bfe_u32 s{sT1}, s2, 0x20003
        s_add_u32 s{sROW}, s{sT0}, s{sT1}
        s_lshr_b32 s{sT_}, s{sW}, 2
        s_mul_i32 s{sT0}, s{sT_}, 3
        s_and_b32 s{sRO}, s{sW}, 3
        s_xor_b32 s{sRO}, s{sRO}, s{sT0}
        s_lshl_b32 s{sM0}, s{sW}, 10
        s_lshl_b32 s{sROW}, s{sROW}, 1
        s_add_u32 s{sROW}, s{sROW}, s{sT_}
        v_lshrrev_b32 v{T[0]}, 3, v{vL}
        s_lshl_b32 s{sT0}, s{sW}, 3
        v_add_u32 v{T[0]}, s{sT0}, v{T[0]}
        v_and_b32 v{T[1]}, 7, v{vL}
        v_bfe_u32 v{T[2]}, v{vL}, 4, 1
        v_lshlrev_b32 v{T[2]}, 2, v{T[2]}
        v_xor_b32 v{T[1]}, v{T[1]}, v{T[2]}
        s_lshr_b32 s{sT0}, s2, 5
        s_lshl_b32 s{sT0}, s{sT0}, 7
        v_lshl_add_u32 v{T[1]}, v{T[1]}, 4, s{sT0}
        v_lshl_add_u32 v{vD}, v{T[0]}, 10, v{T[1]}
        ''')
        for p in post: a(p)
        a.waitlgkm0()
        def dma(ro, step0, u, lds, tag):
            k = self.START[ro] + step0
            srdr, row = (sWD, 16 * k) if ro < 3 else (sWO, 16 * (k - 112))
            a(f's_mov_b32 s{sT0}, {(row + 64 * u) * 1024}\ns_add_u32 m0, s{sM0}, {lds + u * 8192}')
            a(f'buffer_load_dwordx4 v{vD}, s[{srdr}:{srdr+3}], s{sT0} offen lds', tag)
        for u in range(5):
            for ro in range(4): dma(ro, 0, u, ro * 40960, 'w1')
        R2 = [0, 40960, 73728, 106496]
        a(f'''
        v_lshrrev_b32 v{T[0]}, 5, v{vL}
        v_bfe_u32 v{T[1]}, v{vL}, 2, 2
        v_lshl_add_u32 v{T[0]}, v{T[0]}, 3, v{T[1]}
        v_lshlrev_b32 v{T[0]}, 7, v{T[0]}
        v_bfe_u32 v{T[1]}, v{vL}, 3, 1
        v_bfe_u32 v{T[2]}, v{vL}, 4, 1
        v_lshl_or_b32 v{T[1]}, v{T[1]}, 1, v{T[2]}
        v_xor_b32 v{T[1]}, s{sRO}, v{T[1]}
        v_lshl_add_u32 v{T[0]}, v{T[1]}, 5, v{T[0]}
        v_and_b32 v{T[1]}, 1, v{vL}
        v_lshl_add_u32 v{T[0]}, v{T[1]}, 4, v{T[0]}
        v_bfe_u32 v{T[1]}, v{vL}, 1, 1
        v_lshl_add_u32 v{T[0]}, v{T[1]}, 3, v{T[0]}
        s_mul_i32 s{sR1}, s{sRO}, 40960
        s_lshl_b32 s{sR2}, s{sRO}, 15
        s_add_u32 s{sR2}, s{sR2}, 8192
        s_cmp_eq_u32 s{sRO}, 0
        s_cselect_b32 s{sR2}, 0, s{sR2}
        v_add_u32 v{a1[0]}, s{sR1}, v{T[0]}
        v_xor_b32 v{a1[1]}, 64, v{a1[0]}
        v_add_u32 v{a2[0]}, s{sR2}, v{T[0]}
        v_xor_b32 v{a2[1]}, 64, v{a2[0]}
        v_lshlrev_b32 v{vH}, 4, v{vL}
        s_mul_i32 s{sT0}, s{sRO}, 36
        s_add_u32 s{sT0}, s{sT0}, 4
        s_cmp_eq_u32 s{sRO}, 0
        s_cselect_b32 s{sT0}, 0, s{sT0}
        s_lshl_b32 s{sT0}, s{sT0}, 10
        s_mul_i32 s{sHB}, s{sROW}, {H_TILE}
        s_add_u32 s{sHB}, s{sHB}, s{sT0}
        v_and_b32 v{T[0]}, 31, v{vL}
        v_lshrrev_b32 v{T[1]}, 5, v{vL}
        v_lshlrev_b32 v{T[1]}, 4, v{T[1]}
        v_lshl_add_u32 v{T[0]}, v{T[0]}, 10, v{T[1]}
        s_lshl_b32 s{sT0}, s{sROW}, 15
        s_lshr_b32 s{sT1}, s2, 5
        s_lshl_b32 s{sT1}, s{sT1}, 7
        s_add_u32 s{sT0}, s{sT0}, s{sT1}
        s_lshl_b32 s{sT1}, s{sRO}, 5
        s_add_u32 s{sT0}, s{sT0}, s{sT1}
        v_add_u32 v{vXO}, s{sT0}, v{T[0]}
        buffer_load_dwordx4 {vr(XR,4)}, v{vXO}, s[{sXo}:{sXo+3}], 0 offen
        ''')
        def hload(i):
            if i % 4 == 0:
                a(f's_add_u32 s{sHS}, s{sHB}, {i*1024}')
                if i == 32: a(f's_cmp_lt_u32 s{sRO}, 3\ns_cselect_b32 s{sHS}, s{sHS}, {OOB}')
                if i == 36: a(f's_cmp_eq_u32 s{sRO}, 0\ns_cselect_b32 s{sHS}, s{sHS}, {OOB}')
            r = HW + 4 * (i % self.HWIN)
            a(f'buffer_load_dwordx4 {vr(r,4)}, v{vH}, s[{sWS2}:{sWS2+3}], s{sHS} offen offset:{(i%4)*1024}')
        for i in range(self.HWIN): hload(i)
        a.waitvm('w1'); a('s_barrier')
        for i in range(self.NREG):
            for u in range(2):
                for t in range(2):
                    r = WR + 8 * i + 4 * u + 2 * t
                    a(f'ds_read_b64_tr_b16 {vr(r,2)}, v{a1[u]} offset:{i*2048 + t*512}')
        a.waitlgkm0(); a('s_barrier')
        for u in range(5):
            for ro in range(4):
                if u < (self.LEN[ro] - self.NREG) // 4: dma(ro, self.NREG, u, R2[ro], 'w2')
        def reads(i):
            L = []
            for u in range(2):
                for t in range(2):
                    r = WR + 8 * (i - self.NREG) + 4 * u + 2 * t
                    L.append(f'ds_read_b64_tr_b16 {vr(r,2)}, v{a2[u]} offset:{(i-self.NREG)*2048 + t*512}')
            return L
        for i in range(40):
            if i == 32: a(f's_cmp_eq_u32 s{sRO}, 3\ns_cbranch_scc1 K2_RED')
            if i == 36: a(f's_cmp_lg_u32 s{sRO}, 0\ns_cbranch_scc1 K2_RED')
            if i + 2 == self.NREG:
                a.waitvm('w2'); a('s_barrier')
            R = reads(i + 2) if self.NREG <= i + 2 < 40 else []
            w = WR + 8 * (i if i < self.NREG else i - self.NREG); h = HW + 4 * (i % self.HWIN)
            for u in range(2):
                c = '0' if i == 0 else vr(AC + 16 * u, 16)
                a(f'v_mfma_f32_32x32x16_bf16 {vr(AC+16*u,16)}, {vr(w+4*u,4)}, {vr(h,4)}, {c}')
                for x in R[2 * u:2 * u + 2]: a(x)
            if i + self.HWIN < 40: hload(i + self.HWIN)
        a('K2_RED:')
        a('s_waitcnt vmcnt(0) lgkmcnt(0)')
        a(f'''
        s_lshl_b32 s{sT0}, s{sT_}, 15
        s_lshl_b32 s{sT1}, s{sRO}, 13
        s_add_u32 s{sT0}, s{sT0}, s{sT1}
        v_add_u32 v{T[0]}, s{sT0}, v{vH}
        s_lshl_b32 s{sT1}, s{sRO}, 11
        v_add_u32 v{T[1]}, s{sT1}, v{T[0]}
        v_xor_b32 v{T[2]}, 0x2000, v{T[1]}
        v_xor_b32 v{T[3]}, 0x4000, v{T[1]}
        v_xor_b32 v{T[4]}, 0x6000, v{T[1]}
        s_cmp_eq_u32 s{sRO}, 0
        s_cselect_b32 s{sT0}, 2048, 0
        s_cmp_le_u32 s{sRO}, 1
        s_cselect_b32 s{sT1}, 2, 1
        s_cmp_le_u32 s{sRO}, 2
        s_cselect_b32 s{sT2}, 3, 2
        s_lshl_b32 s{sT1}, s{sT1}, 11
        s_lshl_b32 s{sT2}, s{sT2}, 11
        v_add_u32 v{T[5]}, s{sT0}, v{T[0]}
        v_add_u32 v{T[6]}, s{sT1}, v{T[0]}
        v_add_u32 v{T[7]}, s{sT2}, v{T[0]}
        s_barrier
        ''')
        for u in range(1, 4):
            for h in range(2):
                a(f'ds_write_b128 v{T[1+u]}, {vr(AC+8*u+4*h,4)} offset:{h*1024}')
        a.waitlgkm0(); a('s_barrier')
        PA, PB, PC = 96, 104, 112
        for k, r in enumerate((PA, PB, PC)):
            for h in range(2): a(f'ds_read_b128 {vr(r+4*h,4)}, v{T[5+k]} offset:{h*1024}')
        XU = 120
        for i in range(4):
            a(f'v_lshlrev_b32 v{XU+2*i}, 16, v{XR+i}\nv_and_b32 v{XU+2*i+1}, 0xffff0000, v{XR+i}')
        for i in range(8): a(f'v_add_f32 v{PA+i}, v{PA+i}, v{PB+i}')
        a.waitlgkm0()
        a(f's_cmp_lg_u32 s{sRO}, 3\ns_cbranch_scc1 K2_FIN')
        for i in range(8): a(f'v_swap_b32 v{AC+i}, v{PC+i}')
        a('K2_FIN:')
        for i in range(8): a(f'v_add_f32 v{PA+i}, v{PA+i}, v{AC+i}')
        for i in range(8): a(f'v_mul_f32 v{PB+i}, {f2u(-LOG2E)}, v{PA+i}')
        for i in range(8): a(f'v_exp_f32 v{PB+i}, v{PB+i}')
        for i in range(8): a(f'v_mul_f32 v{PA+i}, v{PA+i}, v{PC+i}')
        for i in range(8): a(f'v_add_f32 v{PB+i}, 1.0, v{PB+i}')
        for i in range(8): a(f'v_rcp_f32 v{PB+i}, v{PB+i}')
        for i in range(8): a(f'v_fmac_f32 v{XU+i}, v{PA+i}, v{PB+i}')
        for i in range(4): a(f'v_cvt_pk_bf16_f32 v{XU+i}, v{XU+2*i}, v{XU+2*i+1}')
        a(f'buffer_store_dwordx4 {vr(XU,4)}, v{vXO}, s[{sOUT}:{sOUT+3}], 0 offen')
        lines, _ = finalize(a)
        return '\n'.join(lines) + '\n'

HEADER = open('cdna_kernels/' + KNAME + '.s.ref').read().split('; Override')[0].rstrip('\n') if __import__('os').path.exists('cdna_kernels/' + KNAME + '.s.ref') else ''

def two_kernels(path, **kw):
    k1 = K1(**kw); k2 = K2()
    txt = kernel_text([dict(name='hh_k1_kernel', body=k1.text(), grid=256, block=512, lds=LDS_BYTES, vgpr=256, accum=256),
                       dict(name='hh_k2_kernel', body=k2.text(), grid=256, block=512, lds=LDS_BYTES, vgpr=256, accum=256)], HEADER)
    open(path, 'w').write(txt)

if __name__ == '__main__':
    two_kernels(sys.argv[1])
```

```python
import math, struct, sys
from g import *
from asmgen import kernel_text, KNAME

def f2u(x): return '0x%08x' % struct.unpack('<I', struct.pack('<f', x))[0]
LOG2E = 1.4426950408889634
C0 = -2.0 * LOG2E * math.sqrt(2.0 / math.pi)

H_TILE = 144 * 1024
KV_OFF = 64 * H_TILE
KV_PITCH = 10240
KV_HEAD = 17 * 128
KV_CNT = 68 * 128
KV_ONES = 69 * 128
F_CNT = 70 * 128
WS_SIZE = KV_OFF + 8 * KV_PITCH
STAMP_OFF = 12 << 20
OOB = 0x7ff00000

X = lambda rs, s: 128 + s * 8 + rs * 4
ACC = [96, 64]
WF = 40
vL, vQ, vG, vHS = 0, 1, 2, 3
aT = {(0, 0): 4, (0, 1): 5, (1, 0): 6, (1, 1): 7}
SEL = [8, 12]; CS = 16
BX = [20, 22]
LNC = [24, 27]
vD, vP = 30, 31
T = list(range(32, 40))
vSC, vR32 = T[5], T[6]
vH, vP2 = vG, vQ
vXD = 64; aX = {(0, 0): 66, (0, 1): 67, (1, 0): 68, (1, 1): 69}
ONES = 72; SUM = 88; GRAM = 92
sX, sWQ, sWG, sWU, sWS, sPH, sDB = 4, 8, 12, 16, 20, 24, 28
sW, sR, sC, sRB, sGI, sTY, sM0, sA = 32, 33, 34, 35, 36, 37, 38, 39
sWD, sWO, sOUT = 40, 44, 48
sH0, sH1, sT0, sT1, sT2, sT3 = 68, 69, 70, 71, 72, 73
sCSW, sCSR = 74, 75
sMASK = 76
sM_l1, sM_l2, sM_l3, sM_hi32, sM_b4, sM_s0, sM_s1 = 76, 78, 80, 82, 84, 86, 88
sKV, sPC = 90, 91
sU0, sU1, sHB1, sHB2, sFC, sFP, sXO = 92, 93, 94, 95, 96, 97, 98
sSTL = [52, 54, 56, 58, 60, 62, 64, 66, 100, 24, 26, 8, 10, 12, 14, 16]
SLOT = 32768
REC = 98304; RECP = 112; RECH = 128 * RECP
MISC = 155648
L_ST = MISC; L_DUM = MISC + 1024; L_CS = MISC + 2048; L_PH = MISC + 2048 + 3 * 1024
LDS_BYTES = 163840

def srd(a, d, off, size):
    a(f's_load_dwordx2 s[{d}:{d+1}], s[0:1], {off}')
    return f's_mov_b32 s{d+2}, {size}\ns_mov_b32 s{d+3}, 0x20000'

def m64(a, s, val):
    a(f's_mov_b32 s{s}, 0x{val & 0xffffffff:x}\ns_mov_b32 s{s+1}, 0x{val >> 32:x}')

class KF:
    def __init__(self, rate=(0, 8.0, 30.0), stamps=False, sc=' sc0 sc1', scl=' sc0 sc1', nfirst=1, jE0=10, jS0=11, jS1=13, f1pos=1, jW=(10, 11), jT=99, jT1=99, th=0, kvg=4, spread=10, pace=2, dbg=''):
        self.pace = pace
        self.jT = jT; self.jT1 = jT1; self.th = th; self.kvg = kvg; self.spread = spread
        self.dbg = dbg
        self.nfirst = nfirst
        self.rate = rate; self.stamps = stamps; self.sc = sc; self.scl = scl
        self.jE0 = jE0; self.jS0 = jS0; self.jS1 = jS1; self.f1pos = f1pos; self.jW = jW
        self.nst = 0
        self.nlab = 0
    def lab(self, b):
        self.nlab += 1
        return f'K1_{b}_{self.nlab}'
    def stamp(self, a):
        if self.stamps:
            a(f'{"s_memtime" if self.stamps == 2 else "s_memrealtime"} s[{sSTL[self.nst]}:{sSTL[self.nst]+1}]'); self.nst += 1

    def prologue(self):
        a = Seq()
        a('s_cmp_lt_u32 s2, 256\ns_cbranch_scc1 K1_GO\ns_endpgm\nK1_GO:')
        post = [srd(a, sX, 0, 2097152), srd(a, sWQ, 8, 1572864), srd(a, sWG, 40, 1835008), srd(a, sWU, 48, 1835008)]
        self.post2 = [srd(a, sWS, 80, (16 << 20) if self.stamps else WS_SIZE), srd(a, sPH, 16, 16384), srd(a, sDB, 72, 256),
                      srd(a, sWD, 56, 1835008), srd(a, sWO, 24, 524288), srd(a, sOUT, 64, 2097152)]
        self.stamp(a)
        a(f'''
        v_lshrrev_b32 v{T[5]}, 6, v0
        v_lshrrev_b32 v{T[0]}, 3, v0
        v_readfirstlane_b32 s{sW}, v{T[5]}
        v_and_b32 v{T[1]}, 7, v0
        v_bfe_u32 v{T[2]}, v0, 4, 3
        s_and_b32 s{sT0}, s2, 3
        s_lshl_b32 s{sT0}, s{sT0}, 2
        s_bfe_u32 s{sT1}, s2, 0x20003
        s_add_u32 s{sRB}, s{sT0}, s{sT1}
        s_and_b32 s{sT0}, s2, 4
        s_lshr_b32 s{sT1}, s2, 6
        s_add_u32 s{sGI}, s{sT0}, s{sT1}
        s_bfe_u32 s{sTY}, s2, 0x10005
        s_lshl_b32 s{sT2}, s{sRB}, 17
        v_xor_b32 v{T[3]}, v{T[2]}, v{T[1]}
        v_lshl_add_u32 v{T[3]}, v{T[3]}, 4, s{sT2}
        v_lshl_add_u32 v{vXD}, v{T[0]}, 10, v{T[3]}
        v_and_b32 v{T[3]}, 4, v{T[2]}
        v_and_b32 v{T[2]}, 1, v{T[2]}
        v_lshl_or_b32 v{T[3]}, v{T[2]}, 1, v{T[3]}
        v_xor_b32 v{T[3]}, v{T[3]}, v{T[1]}
        s_lshl_b32 s{sT0}, s{sGI}, 7
        s_lshl_b32 s{sT1}, s{sGI}, 8
        s_add_u32 s{sT1}, s{sT1}, 1024
        s_cmp_eq_u32 s{sTY}, 0
        s_cselect_b32 s{sT1}, s{sT0}, s{sT1}
        v_lshl_add_u32 v{T[4]}, v{T[3]}, 4, s{sT0}
        v_lshl_add_u32 v{T[3]}, v{T[3]}, 4, s{sT1}
        s_movk_i32 s{sT0}, 3072
        s_movk_i32 s{sT1}, 3584
        v_mad_u32_u24 v{vQ}, v{T[0]}, s{sT0}, v{T[4]}
        v_mad_u32_u24 v{vG}, v{T[0]}, s{sT1}, v{T[3]}
        s_lshl_b32 s{sM0}, s{sW}, 10
        ''')
        for p in post: a(p)
        return a

    def setup1(self, a):
        for p in self.post2: a(p)
        a(f'''
        v_and_b32 v{vL}, 63, v0
        s_and_b32 s{sR}, s{sW}, 3
        s_lshr_b32 s{sC}, s{sW}, 2
        v_lshlrev_b32 v{T[2]}, 2, v{T[2]}
        v_xor_b32 v{T[1]}, v{T[1]}, v{T[2]}
        s_lshr_b32 s{sT0}, s2, 5
        s_lshl_b32 s{sT0}, s{sT0}, 7
        v_lshl_add_u32 v{T[1]}, v{T[1]}, 4, s{sT0}
        v_lshl_add_u32 v{vD}, v{T[0]}, 10, v{T[1]}
        s_mul_i32 s{sKV}, s{sGI}, {KV_PITCH}
        s_add_u32 s{sKV}, s{sKV}, {KV_OFF}
        ''')

    def setup2(self, a):
        a(f'''
        v_lshrrev_b32 v{T[0]}, 4, v{vL}
        v_bfe_u32 v{T[1]}, v{vL}, 2, 2
        v_lshl_add_u32 v{T[2]}, v{T[0]}, 3, v{T[1]}
        v_lshlrev_b32 v{T[2]}, 7, v{T[2]}
        v_bfe_u32 v{T[3]}, v{vL}, 3, 2
        s_lshl_b32 s{sT0}, s{sC}, 1
        s_and_b32 s{sT1}, s{sR}, 1
        s_or_b32 s{sT0}, s{sT0}, s{sT1}
        v_xor_b32 v{T[3]}, s{sT0}, v{T[3]}
        v_lshl_add_u32 v{T[2]}, v{T[3]}, 5, v{T[2]}
        v_and_b32 v{T[3]}, 3, v{vL}
        v_lshl_add_u32 v{T[2]}, v{T[3]}, 3, v{T[2]}
        s_lshr_b32 s{sT1}, s{sR}, 1
        s_lshl_b32 s{sT2}, s{sT1}, 12
        v_add_u32 v{aT[0,0]}, s{sT2}, v{T[2]}
        v_xor_b32 v{aT[0,1]}, 32, v{aT[0,0]}
        v_xor_b32 v{aT[1,0]}, 0x1000, v{aT[0,0]}
        v_xor_b32 v{aT[1,1]}, 0x1020, v{aT[0,0]}
        v_and_b32 v{T[1]}, 15, v{vL}
        s_lshl_b32 s{sT2}, s{sR}, 5
        s_lshl_b32 s{sT3}, s{sC}, 4
        s_add_u32 s{sT2}, s{sT2}, s{sT3}
        v_add_u32 v{T[2]}, s{sT2}, v{T[1]}
        s_lshl_b32 s{sT1}, s{sT1}, 2
        v_or_b32 v{T[3]}, s{sT1}, v{T[0]}
        v_lshrrev_b32 v{T[4]}, 1, v{T[1]}
        v_xor_b32 v{T[3]}, v{T[3]}, v{T[4]}
        v_lshlrev_b32 v{T[3]}, 4, v{T[3]}
        v_lshl_add_u32 v{aX[0,0]}, v{T[2]}, 7, v{T[3]}
        v_xor_b32 v{aX[0,1]}, 64, v{aX[0,0]}
        v_xor_b32 v{aX[1,0]}, 0x800, v{aX[0,0]}
        v_xor_b32 v{aX[1,1]}, 0x840, v{aX[0,0]}
        v_xor_b32 v{vHS}, s{sT3}, v{vL}
        v_lshlrev_b32 v{vHS}, 4, v{vHS}
        ''')
        m64(a, sM_l1, 0x2222222222222222); m64(a, sM_l2, 0x4444444444444444); m64(a, sM_l3, 0x8888888888888888)
        m64(a, sM_hi32, 0xFFFFFFFF00000000); m64(a, sM_b4, 0xFFFF0000FFFF0000)
        m64(a, sM_s0, 0x0F0F0F0F0F0F0F0F); m64(a, sM_s1, 0xF0F0F0F0F0F0F0F0)
        a(f's_mov_b32 vcc_lo, 0x00ff00ff\ns_mov_b32 vcc_hi, 0x00ff00ff')
        a(f'v_mov_b32 v{ONES}, 0x3f803f80')
        for i in range(1, 4): a(f'v_mov_b32 v{ONES+i}, v{ONES}')
        a(f'v_cndmask_b32 v{SEL[0]}, 0, v{ONES}, vcc')
        a(f'v_xor_b32 v{SEL[1]}, v{SEL[0]}, v{ONES}')
        for i in range(1, 4): a(f'v_mov_b32 v{SEL[0]+i}, v{SEL[0]}\nv_mov_b32 v{SEL[1]+i}, v{SEL[1]}')
        a(f'''
        s_lshl_b32 s{sT0}, s{sRB}, 2
        s_add_u32 s{sT0}, s{sT0}, s{sR}
        s_mul_i32 s{sT0}, s{sT0}, {H_TILE}
        s_lshl_b32 s{sT1}, s{sC}, 11
        s_add_u32 s{sT0}, s{sT0}, s{sT1}
        s_and_b32 s{sT1}, s{sR}, 1
        s_lshl_b32 s{sT2}, s{sT1}, 10
        s_add_u32 s{sH0}, s{sT0}, s{sT2}
        s_xor_b32 s{sT2}, s{sT2}, 1024
        s_add_u32 s{sH1}, s{sT0}, s{sT2}
        s_lshl_b32 s{sT0}, s{sC}, 9
        s_lshl_b32 s{sT1}, s{sT1}, 7
        s_add_u32 s{sT0}, s{sT0}, s{sT1}
        s_add_u32 s{sCSR}, s{sT0}, {L_CS}
        s_lshr_b32 s{sT1}, s{sR}, 1
        s_lshl_b32 s{sT1}, s{sT1}, 6
        s_add_u32 s{sCSW}, s{sCSR}, s{sT1}
        s_lshr_b32 s{sT0}, s{sRB}, 1
        s_mul_i32 s{sT0}, s{sT0}, {KV_PITCH}
        s_and_b32 s{sT1}, s{sRB}, 1
        s_mul_i32 s{sT1}, s{sT1}, 384
        s_add_u32 s{sT0}, s{sT0}, s{sT1}
        s_add_u32 s{sFP}, s{sT0}, {KV_OFF + F_CNT}
        s_cmp_eq_u32 s{sW}, 0
        s_cselect_b32 s{sFP}, s{sFP}, {OOB}
        s_and_b32 s{sT0}, s2, 3
        s_lshl_b32 s{sT0}, s{sT0}, 3
        s_and_b32 s{sT1}, s2, 4
        s_add_u32 s{sT0}, s{sT0}, s{sT1}
        s_bfe_u32 s{sT1}, s2, 0x20003
        s_add_u32 s{sT0}, s{sT0}, s{sT1}
        s_lshr_b32 s{sT1}, s{sT0}, 2
        s_mul_i32 s{sT1}, s{sT1}, {KV_PITCH}
        s_bfe_u32 s{sT2}, s{sT0}, 0x10001
        s_mul_i32 s{sT2}, s{sT2}, 384
        s_add_u32 s{sT1}, s{sT1}, s{sT2}
        s_add_u32 s{sFC}, s{sT1}, {KV_OFF + F_CNT}
        s_lshl_b32 s{sT0}, s{sT0}, 1
        s_add_u32 s{sT0}, s{sT0}, s{sC}
        s_mul_i32 s{sT1}, s{sT0}, {H_TILE}
        s_lshl_b32 s{sT2}, s{sR}, 12
        s_add_u32 s{sHB1}, s{sT1}, s{sT2}
        s_add_u32 s{sHB2}, s{sHB1}, s{sT2}
        s_lshl_b32 s{sT0}, s{sT0}, 15
        s_lshr_b32 s{sT1}, s2, 5
        s_lshl_b32 s{sT1}, s{sT1}, 7
        s_add_u32 s{sT0}, s{sT0}, s{sT1}
        s_lshl_b32 s{sT1}, s{sR}, 5
        s_add_u32 s{sXO}, s{sT0}, s{sT1}
        ''')

    def dma(self, srdreg, voff, soff, lds, tag):
        s = Seq()
        s(f's_add_u32 m0, s{sM0}, {lds}')
        if soff: s(f's_mov_b32 s{sA}, {soff}')
        s(f'buffer_load_dwordx4 v{voff}, s[{srdreg}:{srdreg+3}], {"s%d" % sA if soff else "0"} offen lds', tag)
        return s

    PB = [(8, 2), (16, 2), (9, 2), (17, 2), (0, 1), (4, 1), (24, 1), (28, 1), (32, 1)]
    SLOTS = [j % 4 for j in range(8)] + [0, 1, 2, 0, 1, 2] + [3, 0, 1, 2, 4, 3, 0, 1, 2]
    def stage_dmas(self, ty, j):
        tag = f'st{j}'; L = []; base = self.SLOTS[j] * SLOT
        KQ, KG = 64 * 3072, 64 * 3584
        if 'nodma' in self.dbg and 4 <= j < 14: return L
        if 'samek' in self.dbg and j < 14:
            for d in range(4): L.append(self.dma(sWG, vG, (d + 4 * (j & 1)) * KG, base + d * 8192, tag))
            return L
        if j < 8:
            L.append(self.dma(sX, vXD, j * 128, base, tag))
            if ty == 0: L.append(self.dma(sWQ, vQ, j * KQ + 1024, base + 16384, tag))
            else: L.append(self.dma(sWG, vG, j * KG, base + 16384, tag))
            L.append(self.dma(sX, vXD, j * 128 + 65536, base + 8192, tag))
            if ty == 0: L.append(self.dma(sWQ, vQ, j * KQ + 2048, base + 24576, tag))
            else: L.append(self.dma(sWU, vG, j * KG, base + 24576, tag))
        elif j < 12:
            for h in range(2):
                ch = 2 * (j - 8) + h
                L.append(self.dma(sWG, vG, ch * KG + 128 * ty, base + h * 16384, tag))
                L.append(self.dma(sWU, vG, ch * KG + 128 * ty, base + h * 16384 + 8192, tag))
        elif j < 14:
            if ty == 1:
                for h in range(4):
                    L.append(self.dma(sWQ, vQ, (4 * (j - 12) + h) * KQ, base + h * 8192, tag))
            else:
                for h in range(2):
                    p = 2 * (j - 12) + h
                    L.append(self.dma(sWG, vQ, 2 * p * KG, base + h * 8192, tag))
                    L.append(self.dma(sWU, vQ, 2 * p * KG, base + 16384 + h * 8192, tag))
        else:
            b, m = self.PB[j - 14]
            if 'now2' in self.dbg and j >= 19: return L
            for q in range(4):
                p = b + m * q
                L.append(self.dma(sWD if p < 28 else sWO, vD, (p if p < 28 else p - 28) * 65536, base + q * 8192, tag))
        return L

    def groups(self, ty):
        G = []
        for j in range(8):
            for (blk, sig) in ((0, 0), (1, 0), (0, 1), (1, 1)):
                G.append(dict(stage=j, phase=0, ch=j, blk=blk, sig=sig, off=16384 + blk * 8192, ts=512))
        for j in range(8, 12):
            for h in range(2):
                for (blk, sig) in ((0, 0), (1, 0), (0, 1), (1, 1)):
                    G.append(dict(stage=j, phase=1, ch=2 * (j - 8) + h, blk=blk, sig=sig, off=h * 16384 + blk * 8192, ts=512))
        for j in range(12, 14):
            for h in range(4):
                for u in range(2):
                    if ty == 1: G.append(dict(stage=j, phase=2, ch=4 * (j - 12) + h, blk=0, sig=u, off=h * 8192, ts=512))
                    else: G.append(dict(stage=j, phase=2, ch=4 * (j - 12) + h, blk=u, sig=0, off=u * 16384 + h * 4096, ts=256))
        return G

    def body(self, ty):
        slot = self.SLOTS
        issue_after = {}
        last = {}
        first = []
        for j in range(14):
            if slot[j] in last: issue_after.setdefault(last[slot[j]] + 1, []).extend(self.stage_dmas(ty, j))
            else: first.append(j)
            last[slot[j]] = j
        assert min(self.jW) >= self.jE0 or ty == 1
        issue_after.setdefault(self.jW[0], []).extend(self.stage_dmas(ty, 14))
        issue_after.setdefault(self.jW[1], []).extend(self.stage_dmas(ty, 18)[:3])
        issue_after.setdefault(12, []).extend(self.stage_dmas(ty, 15))
        issue_after.setdefault(13, []).extend(self.stage_dmas(ty, 16))
        pre = Seq()
        for j in first[:self.nfirst]:
            for d in self.stage_dmas(ty, j): pre += d
        self.setup1(pre)
        if ty == 1:
            pre(f"""
            v_lshl_add_u32 v{T[0]}, v{vL}, 4, s{sM0}
            s_cmp_eq_u32 s{sRB}, 0
            s_cselect_b32 s{sT0}, s{sKV}, {OOB}
            v_mov_b32 v{T[4]}, 0
            v_mov_b32 v{T[5]}, 0
            v_mov_b32 v{T[6]}, 0
            v_mov_b32 v{T[7]}, 0
            """)
            pre(f'buffer_store_dwordx4 v[{T[4]}:{T[7]}], v{T[0]}, s[{sWS}:{sWS+3}], s{sT0} offen sc0 sc1', 'zero')
            pre(f"""
            v_lshrrev_b32 v{T[1]}, 7, v{T[0]}
            v_cmp_eq_u32 vcc, 5, v{T[1]}
            v_cndmask_b32 v{T[4]}, 0, 1.0, vcc
            v_mov_b32 v{T[5]}, v{T[4]}
            v_mov_b32 v{T[6]}, v{T[4]}
            v_mov_b32 v{T[7]}, v{T[4]}
            s_cmp_lt_u32 s{sW}, 2
            s_cselect_b32 s{sT0}, s{sT0}, {OOB}
            s_add_u32 s{sT0}, s{sT0}, 8192
            """)
            pre(f'buffer_store_dwordx4 v[{T[4]}:{T[7]}], v{T[0]}, s[{sWS}:{sWS+3}], s{sT0} offen sc0 sc1', 'zero')
        self.setup2(pre)
        for j in first[self.nfirst:]:
            for d in self.stage_dmas(ty, j): pre += d
        pre(f"""
        v_lshlrev_b32 v{T[0]}, 4, v{vL}
        s_lshl_b32 s{sT0}, s{sGI}, 11
        s_and_b32 s{sT1}, s{sM0}, 1024
        s_add_u32 s{sT0}, s{sT0}, s{sT1}
        s_add_u32 m0, s{sT1}, {L_PH}
        """)
        pre(f'buffer_load_dwordx4 v{T[0]}, s[{sPH}:{sPH+3}], s{sT0} offen lds', 'ph')
        G = self.groups(ty)
        win = {'t': 0, 'x': 0}
        def setwin(s, which, regs, base):
            w = base // 65536
            if win[which] != w:
                d = (w - win[which]) * 65536
                for r in regs: s(f'v_add_u32 v{r}, 0x{d & 0xffffffff:x}, v{r}')
                win[which] = w
            return base - w * 65536
        def reads(gi):
            g = G[gi]; L = []
            hd = Seq()
            if ty == 0 and g['phase'] == 2 and G[gi - 1]['phase'] == 1:
                hd(f"""
                v_lshrrev_b32 v{aT[0,1]}, 4, v{vL}
                v_bfe_u32 v{aT[1,1]}, v{vL}, 2, 2
                v_lshl_add_u32 v{aT[0,0]}, v{aT[0,1]}, 3, v{aT[1,1]}
                v_lshlrev_b32 v{aT[0,0]}, 6, v{aT[0,0]}
                v_and_b32 v{aT[0,1]}, 1, v{aT[0,1]}
                v_xor_b32 v{aT[0,1]}, s{sC}, v{aT[0,1]}
                v_lshl_add_u32 v{aT[0,0]}, v{aT[0,1]}, 5, v{aT[0,0]}
                v_and_b32 v{aT[0,1]}, 3, v{vL}
                v_lshl_add_u32 v{aT[0,0]}, v{aT[0,1]}, 3, v{aT[0,0]}
                s_lshr_b32 s{sU0}, s{sR}, 1
                s_lshl_b32 s{sU0}, s{sU0}, 11
                v_add_u32 v{aT[0,0]}, s{sU0}, v{aT[0,0]}
                v_xor_b32 v{aT[1,0]}, 0x800, v{aT[0,0]}
                """)
                win['t'] = 0
            b = setwin(hd, 't', list(aT.values()), slot[g['stage']] * SLOT) + g['off']
            buf = WF + 8 * (gi % 3)
            for kp in range(2):
                for t in range(2):
                    s = Seq()
                    if not L: s += hd
                    s(f'ds_read_b64_tr_b16 v[{buf+4*kp+2*t}:{buf+4*kp+2*t+1}], v{aT[kp, g["sig"]]} offset:{b + t * g["ts"]}')
                    L.append(s)
            return L
        JZ = 2
        xq = []
        def boundary(j):
            s = Seq()
            s.waitvm(f'st{j}')
            if j == JZ and ty == 1: s.waitvm('zero')
            if j == 4: s.waitvm('ph')
            if j == self.jS0: s.waitvm('kvat' if ty == 0 else 'hst0')
            if j == self.jS1: s.waitvm('hst1')
            if 'nolg' not in self.dbg: s.waitlgkm0()
            s('s_barrier')
            if j < 8:
                b = setwin(s, 'x', list(aX.values()), slot[j] * SLOT)
                for rs in range(2):
                    for sp in range(2):
                        r = X(rs, 2 * j + sp)
                        x = Seq(); x(f'ds_read_b128 v[{r}:{r+3}], v{aX[rs, sp]} offset:{b}')
                        if self.pace > 1 and j > 0: xq.append(x)
                        elif 'noxr' not in self.dbg: s += x
            if j == JZ and ty == 1:
                s(f"""
                s_lshl_b32 s{sT0}, s{sGI}, 5
                s_or_b32 s{sT1}, s{sRB}, s{sW}
                s_cmp_eq_u32 s{sT1}, 0
                s_cselect_b32 s{sT0}, s{sT0}, {OOB}
                v_lshlrev_b32 v{T[0]}, 8, v{vL}
                v_mov_b32 v{T[1]}, 1
                buffer_store_dword v{T[1]}, v{T[0]}, s[{sDB}:{sDB+3}], s{sT0} offen sc0 sc1
                """)
            if j == 6:
                s(f'v_lshlrev_b32 v{T[7]}, 5, v{vL}')
                s(f'buffer_load_dword v{vP}, v{T[7]}, s[{sDB}:{sDB+3}], 0 offen sc0 sc1')
            if j == 8: self.zpoll(s)
            if j == self.jS0:
                if ty == 0:
                    s(f's_cmp_eq_u32 s{sW}, 0\ns_cselect_b32 s{sU0}, s{sKV}, {OOB}\ns_add_u32 s{sU0}, s{sU0}, {KV_CNT}')
                    s += self.signal(sU0, 0)
                else: s += self.signal(sFP, 0)
            if j == self.jS1: s += self.signal(sFP, 128)
            if j == 12: s(f'v_lshlrev_b32 v{vH}, 4, v{vL}')
            if j == self.jT: s += self.touch_w2()
            if j == self.jT1: s += self.touch_w1(ty)
            if j == 13 and ty == 1: s(f's_add_u32 s{sU0}, s{sKV}, {KV_CNT}\nbuffer_load_dword v{vP2}, off, s[{sWS}:{sWS+3}], s{sU0} sc0 sc1')
            return s
        def mfmas(gi):
            g = G[gi]; ph = g['phase']; A = ACC[ph & 1]; buf = WF + 8 * (gi % 3); L = []
            firstk = g['ch'] == 0
            for rs in range(2):
                d = A + g['blk'] * 16 + g['sig'] * 8 + rs * 4
                for kp in range(2):
                    c = '0' if (firstk and kp == 0) else vr(d, 4)
                    x = X(rs, 2 * g['ch'] + kp)
                    L.append(f'v_mfma_f32_16x16x32_bf16 {vr(d,4)}, {vr(buf+4*kp,4)}, {vr(x,4)}, {c}')
            if g['sig'] == 0:
                c = '0' if (firstk and g['blk'] == 0) else vr(CS, 4)
                L.append(f'v_mfma_f32_16x16x32_bf16 {vr(CS,4)}, {vr(SEL[g["blk"]],4)}, {vr(buf,4)}, {c}')
            elif ph == 0:
                d, acc = (SUM, ONES) if g['blk'] == 0 else (GRAM, None)
                for kp in range(2):
                    x = X(0, 2 * g['ch'] + kp)
                    c = '0' if (firstk and kp == 0) else vr(d, 4)
                    L.insert(kp, f'v_mfma_f32_16x16x32_bf16 {vr(d,4)}, {vr(acc if acc else x,4)}, {vr(x,4)}, {c}')
            return L

        phases = [Seq(), Seq(), Seq()]
        head = Seq()
        head += boundary(0)
        self.stamp(head)
        pend = []
        for gi in (0, 1):
            for r in reads(gi): head += r
        g13 = min(i for i, g in enumerate(G) if g['stage'] == 13)
        for gi in range(len(G)):
            m = phases[G[gi]['phase']]
            M = mfmas(gi)
            nxt = gi + 2
            R = []; bnd = None
            if nxt < len(G):
                if G[nxt]['stage'] != G[nxt - 1]['stage']:
                    bnd = boundary(G[nxt]['stage'])
                R = reads(nxt)
            if gi == (g13 if ty == 0 else len(G) - self.kvg):
                if ty == 1:
                    for p in pend: m += p
                    pend = []
                    m += self.kv_fetch()
                self.poll(m, vP, sFC, 0, 8)
                m += self.touch_h(0)
                if self.f1pos == 0 and ty == 1: m(f'buffer_load_dword v{vP2}, off, s[{sWS}:{sWS+3}], s{sFC} offset:128 sc0 sc1')
                pend += [self.hloads(0)[:3], self.hloads(0)[3:], self.hloads(1)[:3], self.hloads(1)[3:]]
            if gi == len(G) - 2:
                for p in pend: m += p
                pend = []
                if self.f1pos == 0 and ty == 0: m(f'buffer_load_dword v{vP2}, off, s[{sWS}:{sWS+3}], s{sFC} offset:128 sc0 sc1')
            if bnd is None:
                for k, t in enumerate(M):
                    m(t)
                    if k < len(R): m += R[k]
                    if k == 1 and pend: m += pend.pop(0)
                    if k == 3 and pend and (G[gi]['phase'] != 1 or len(pend) > 5) and not (self.pace and G[gi]['phase'] == 0): m += pend.pop(0)
                    if k == 2 and xq: m += xq.pop(0)
                    if k == 4 and xq: m += xq.pop(0)
            else:
                for p in pend: m += p
                pend = []
                m(M[0]); m(M[1]); m += bnd
                j = G[nxt]['stage']
                if ty == 0 and j == 5:
                    m(f"""
                    v_lshrrev_b32 v{T[0]}, 2, v{vL}
                    s_lshl_b32 s{sT0}, s{sW}, 4
                    v_add_u32 v{T[0]}, s{sT0}, v{T[0]}
                    v_lshrrev_b32 v{T[1]}, 5, v{vL}
                    v_lshlrev_b32 v{T[1]}, 1, v{T[1]}
                    v_and_b32 v{T[2]}, 3, v{vL}
                    v_xor_b32 v{T[1]}, v{T[1]}, v{T[2]}
                    s_lshl_b32 s{sT0}, s{sGI}, 6
                    s_add_u32 s{sT0}, s{sT0}, {24*128}
                    v_lshl_add_u32 v{T[1]}, v{T[1]}, 4, s{sT0}
                    s_movk_i32 s{sT0}, 3584
                    v_mad_u32_u24 v{vQ}, v{T[0]}, s{sT0}, v{T[1]}
                    """)
                pend += issue_after.get(j, [])
                if self.pace and G[gi]['phase'] == 0:
                    m += R[0]; m(M[2]); m += R[1]
                    if xq: m += xq.pop(0)
                    m(M[3]); m += R[2]
                    if pend: m += pend.pop(0)
                    m(M[4]); m += R[3]
                    if xq: m += xq.pop(0)
                    m(M[5])
                else:
                    m += R[0]; m += R[1]; m(M[2]); m += R[2]; m += R[3]
                    for t in M[3:]: m(t)
            if gi + 1 == len(G) or G[gi + 1]['phase'] != G[gi]['phase']:
                self.phase_end(m, G[gi]['phase'])
        assert not pend
        def weave(ph, E, rate, j):
            k = [i for i, x in enumerate(ph) if isinstance(x, P) and x.kind == 'comment' and x.arg == f'bnd {j}'][0]
            o, rest = interleave(ph[:k], E, rate)
            o += rest; o += ph[k:]
            return o
        out = Seq(); out += pre; out += head
        out += phases[0]
        self.stamp(out)
        E0 = self.epi_head(0)
        E0 += self.ln_consts(ty)
        E0 += self.corr(0, [(0, 0), (1, 0), (0, 1), (1, 1)])
        if ty == 0: E0 += self.epi_kv()
        else: E0 += self.gelu(ACC[0], 2, lambda s, sig: s(f's_lshl_b32 s{sT0}, s{sGI}, 13\ns_add_u32 s{sT0}, s{sT0}, {8*4096}\ns_add_u32 s{sT0}, s{sT0}, s{sH1 if sig else sH0}'), 'hst0')
        self.stamp(E0)
        out += weave(phases[1], E0, self.rate[1], self.jE0)
        self.stamp(out)
        E1 = Seq()
        E1 += self.epi_head(1)
        E1 += self.corr(1, [(0, 0), (1, 0), (0, 1), (1, 1)])
        if ty == 0: E1 += self.gelu(ACC[1], 2, lambda s, sig: s(f's_lshl_b32 s{sT0}, s{sGI}, 12\ns_add_u32 s{sT0}, s{sT0}, s{sH1 if sig else sH0}'), 'hst1')
        else: E1 += self.gelu(ACC[1], 2, lambda s, sig: s(f's_lshl_b32 s{sT0}, s{sGI}, 13\ns_add_u32 s{sT0}, s{sT0}, {9*4096}\ns_add_u32 s{sT0}, s{sT0}, s{sH1 if sig else sH0}'), 'hst1')
        E1(f'buffer_load_dword v{vP}, off, s[{sWS}:{sWS+3}], s{sFC} sc0 sc1')
        self.stamp(E1)
        out += weave(phases[2], E1, self.rate[2], 13)
        self.stamp(out)
        def f1():
            s = Seq()
            self.poll(s, vP2, sFC, 128, 16)
            s += self.touch_h(1)
            if self.f1pos == 1 or not self.spread:
                for u in range(2, 6): s += self.hloads(u)
            return s
        E2 = Seq()
        E2.waitvm('st15')
        if self.jS1 == 14: E2.waitvm('hst1')
        E2 += self.epi_head(2)
        if self.jS1 == 14: E2 += self.signal(sFP, 128)
        for d in self.stage_dmas(ty, 17): E2 += d
        if self.f1pos == 0: E2 += f1()
        self.stamp(E2)
        k0 = len(E2)
        pl = Seq()
        if self.f1pos == 1: pl(f'buffer_load_dword v{vP2}, off, s[{sWS}:{sWS+3}], s{sFC} offset:128 sc0 sc1')
        if ty == 0:
            E2 += self.corr(2, [(0, 0), (1, 0)])
            def ad(s, sig):
                s(f"""
                s_min_u32 s{sT0}, s{sH0}, s{sH1}
                s_lshl_b32 s{sT1}, s{sC}, 10
                s_sub_u32 s{sT0}, s{sT0}, s{sT1}
                s_lshl_b32 s{sT1}, s{sGI}, 11
                s_add_u32 s{sT0}, s{sT0}, s{sT1}
                s_add_u32 s{sT0}, s{sT0}, {24*4096}
                """)
            E2 += pl
            E2 += self.gelu(ACC[0], 1, ad, 'hst2')
        else:
            E2 += self.corr(2, [(0, 0), (0, 1)])
            E2 += self.epi_q(pl)
        if self.f1pos == 1: E2 += f1()
        elif self.spread:
            L = []
            for u in range(2, 6):
                h = self.hloads(u); L += [h[:2]] + [[x] for x in h[2:]]
            body = E2[k0:]; E2 = Seq(E2[:k0]); n = 0
            for x in body:
                if isinstance(x, I) and x.kind in ('valu', 'trans'):
                    if n % self.spread == 0 and L: E2 += L.pop(0)
                    n += 1
                E2.append(x)
            for p in L: E2 += p
        out += Seq(x for x in E2 if not (isinstance(x, P) and x.kind == 'gap'))
        self.stamp(out)
        out += self.gemm2(ty)
        if self.stamps:
            out.waitvm0()
            self.stamp(out)
            out(f'v_mov_b32 v{T[0]}, 0')
            out(f's_lshl_b32 s{sT0}, s2, 3\ns_add_u32 s{sT0}, s{sT0}, s{sW}\ns_lshl_b32 s{sT0}, s{sT0}, 6\ns_add_u32 s{sT0}, s{sT0}, {STAMP_OFF}')
            out.waitlgkm0()
            for i in range(self.nst):
                out(f'v_mov_b32 v{T[1]}, s{sSTL[i]}')
                out(f'buffer_store_dword v{T[1]}, v{T[0]}, s[{sWS}:{sWS+3}], s{sT0} offen offset:{4*i}')
        return out

    HREG = [160, 176, 192, 208, 224, 240, 64, 128, 144]
    def hloads(self, u):
        s = Seq(); b, m = self.PB[u]
        if 'nohall' in self.dbg or ('noh2' in self.dbg and u >= 6): return Seq([I('s_nop 0')] * 5)
        s(f's_add_u32 s{sU1}, s{sHB2 if m == 2 else sHB1}, {b * 4096}')
        for i in range(4):
            s(f'buffer_load_dwordx4 {vr(self.HREG[u] + 4*i, 4)}, v{vH}, s[{sWS}:{sWS+3}], s{sU1} offen offset:{i*1024}{self.scl}')
        return s

    def touch_h(self, k):
        s = Seq()
        if not self.th: return s
        for (u, sh, n) in ([(0, 15, 8)], [(2, 15, 8), (4, 14, 8)], [(6, 14, 12)])[k]:
            r = self.HREG[u]; b, m = self.PB[u]
            s(f"""
            v_lshrrev_b32 v{r+1}, 2, v{vL}
            v_and_b32 v{r+2}, 3, v{vL}
            v_lshlrev_b32 v{r+1}, {sh}, v{r+1}
            v_lshl_add_u32 v{r+1}, v{r+2}, 10, v{r+1}
            s_and_b32 s{sU1}, s2, 0xe0
            s_lshl_b32 s{sU1}, s{sU1}, 2
            s_add_u32 s{sU1}, s{sU1}, s{sHB2 if m == 2 else sHB1}
            s_add_u32 s{sU1}, s{sU1}, {b * 4096}
            s_mov_b64 exec, {(1 << n) - 1}
            buffer_load_dword v{r}, v{r+1}, s[{sWS}:{sWS+3}], s{sU1} offen{self.scl}
            s_mov_b64 exec, -1
            """)
        return s

    def touch_w2(self):
        s = Seq()
        tb = sum((b if b < 28 else b - 28) << (8 * (w & 3)) for w, (b, m) in enumerate(self.PB[1:5]))
        tb2 = sum((b if b < 28 else b - 28) << (8 * (w & 3)) for w, (b, m) in enumerate(self.PB[5:9]))
        s(f"""
        s_cmp_lt_u32 s{sW}, 3
        s_cselect_b32 s{sU0}, 17, 16
        v_lshrrev_b32 v{vP}, 4, v{vL}
        v_lshlrev_b32 v{vP}, s{sU0}, v{vP}
        v_lshl_add_u32 v{vP}, v{vL}, 10, v{vP}
        s_mov_b32 s{sU1}, 0x{tb2:x}
        s_cmp_eq_u32 s{sC}, 0
        s_cselect_b32 s{sU0}, 0x{tb:x}, s{sU1}
        s_lshl_b32 s{sU1}, s{sR}, 3
        s_lshr_b32 s{sU0}, s{sU0}, s{sU1}
        s_and_b32 s{sU0}, s{sU0}, 0xff
        s_lshl_b32 s{sU0}, s{sU0}, 16
        s_and_b32 s{sU1}, s2, 0xe0
        s_lshl_b32 s{sU1}, s{sU1}, 2
        s_add_u32 s{sU0}, s{sU0}, s{sU1}
        s_and_b32 s{sU1}, s2, 0x18
        s_lshl_b32 s{sU1}, s{sU1}, 11
        v_xor_b32 v{vP}, s{sU1}, v{vP}
        s_cmp_lt_u32 s{sW}, 6
        s_cselect_b32 s{sU1}, s{sU0}, {OOB}
        s_cselect_b32 s{sU0}, {OOB}, s{sU0}
        s_mov_b32 m0, {L_DUM}
        s_nop 0
        buffer_load_dword v{vP}, s[{sWD}:{sWD+3}], s{sU1} offen lds
        buffer_load_dword v{vP}, s[{sWO}:{sWO+3}], s{sU0} offen lds
        """)
        return s

    def touch_w1(self, ty):
        s = Seq()
        s(f"""
        s_and_b32 s{sT0}, s2, 0x18
        s_lshl_b32 s{sT0}, s{sT0}, 1
        s_lshl_b32 s{sT1}, s{sW}, 6
        s_add_u32 s{sT0}, s{sT0}, s{sT1}
        v_and_b32 v{T[2]}, 15, v{vL}
        v_add_u32 v{T[2]}, s{sT0}, v{T[2]}
        v_mul_u32_u24 v{T[3]}, 3584, v{T[2]}
        s_mov_b32 m0, {L_DUM}
        """)
        if ty == 0:
            s(f"""
            s_lshl_b32 s{sT0}, s{sGI}, 7
            s_lshl_b32 s{sT1}, s{sGI}, 6
            s_add_u32 s{sT1}, s{sT1}, {24*128}
            v_mov_b32 v{T[4]}, s{sT0}
            v_mov_b32 v{T[5]}, s{sT1}
            v_cndmask_b32 v{T[4]}, v{T[4]}, v{T[5]}, s[{sM_b4}:{sM_b4+1}]
            v_add_u32 v{T[3]}, v{T[3]}, v{T[4]}
            s_mov_b32 exec_hi, 0
            buffer_load_dword v{T[3]}, s[{sWG}:{sWG+3}], 0 offen lds
            buffer_load_dword v{T[3]}, s[{sWU}:{sWU+3}], 0 offen lds
            s_mov_b64 exec, -1
            """)
        else:
            s(f"""
            s_lshl_b32 s{sT0}, s{sGI}, 8
            s_add_u32 s{sT0}, s{sT0}, {1024+128}
            s_lshl_b32 s{sT1}, s{sGI}, 7
            v_mul_u32_u24 v{T[4]}, 3072, v{T[2]}
            s_mov_b64 exec, 0xffff
            buffer_load_dword v{T[3]}, s[{sWG}:{sWG+3}], s{sT0} offen lds
            buffer_load_dword v{T[3]}, s[{sWU}:{sWU+3}], s{sT0} offen lds
            buffer_load_dword v{T[4]}, s[{sWQ}:{sWQ+3}], s{sT1} offen lds
            s_mov_b64 exec, -1
            """)
        return s

    def gemm2(self, ty):
        a = Seq()
        AD, AS = 96, 160
        aW = [4, 5]; XR = 8; vXO = 12; eW = [13, 14, 15]; eR = 16
        a(f"""
        v_lshrrev_b32 v{T[0]}, 5, v{vL}
        v_bfe_u32 v{T[1]}, v{vL}, 2, 2
        v_lshl_add_u32 v{T[0]}, v{T[0]}, 3, v{T[1]}
        s_lshl_b32 s{sT0}, s{sR}, 13
        s_add_u32 s{sT1}, s{sT0}, 65536
        v_lshl_add_u32 v{T[0]}, v{T[0]}, 7, s{sT1}
        v_bfe_u32 v{T[1]}, v{vL}, 3, 1
        v_bfe_u32 v{T[2]}, v{vL}, 4, 1
        v_lshl_or_b32 v{T[1]}, v{T[1]}, 1, v{T[2]}
        v_xor_b32 v{T[1]}, s{sR}, v{T[1]}
        v_lshl_add_u32 v{T[0]}, v{T[1]}, 5, v{T[0]}
        v_and_b32 v{T[1]}, 1, v{vL}
        v_lshl_add_u32 v{T[0]}, v{T[1]}, 4, v{T[0]}
        v_bfe_u32 v{T[1]}, v{vL}, 1, 1
        v_lshl_add_u32 v{aW[0]}, v{T[1]}, 3, v{T[0]}
        v_xor_b32 v{aW[1]}, 64, v{aW[0]}
        """)
        win = [1]
        def reads(n):
            u, i = divmod(n, 4); L = []
            base = self.SLOTS[14 + u] * SLOT; w = base // 65536
            hd = Seq()
            if w != win[0]:
                d = (w - win[0]) * 65536; win[0] = w
                for r in aW: hd(f'v_add_u32 v{r}, 0x{d & 0xffffffff:x}, v{r}')
            buf = WF + 8 * (n % 3)
            for c in range(2):
                for t in range(2):
                    s = Seq()
                    if not L: s += hd
                    s(f'ds_read_b64_tr_b16 {vr(buf+4*c+2*t,2)}, v{aW[c]} offset:{base - w*65536 + i*2048 + t*512}')
                    L.append(s)
            return L
        for n in (0, 1):
            for r in reads(n): a += r
        a(f"""
        s_lshl_b32 s{sT1}, s{sC}, 15
        s_add_u32 s{sT0}, s{sT0}, s{sT1}
        v_add_u32 v{eR}, s{sT0}, v{vH}
        v_xor_b32 v{eW[0]}, 0x2000, v{eR}
        v_xor_b32 v{eW[1]}, 0x4000, v{eR}
        v_xor_b32 v{eW[2]}, 0x6000, v{eR}
        v_add_u32 v{T[4]}, {3*SLOT}, v{eW[0]}
        v_add_u32 v{T[5]}, {3*SLOT}, v{eW[1]}
        v_add_u32 v{T[6]}, {3*SLOT}, v{eW[2]}
        v_add_u32 v{T[7]}, {3*SLOT}, v{eR}
        v_and_b32 v{T[0]}, 31, v{vL}
        v_lshrrev_b32 v{T[1]}, 5, v{vL}
        v_lshlrev_b32 v{T[1]}, 4, v{T[1]}
        v_lshl_add_u32 v{vXO}, v{T[0]}, 10, v{T[1]}
        """)
        def bar(s, *tags):
            for t in tags: s.waitvm(t)
            s.waitlgkm0(); s('s_barrier')
        def boundary(u):
            s = Seq(); post = []
            if u == 2:
                bar(s, 'hst2', 'st16', 'st17'); s += self.signal(sFP, 256)
                post = self.stage_dmas(ty, 18)[3:] + self.stage_dmas(ty, 19) + self.stage_dmas(ty, 20)
                x = Seq(); x(f'buffer_load_dwordx4 {vr(XR,4)}, v{vXO}, s[{sX}:{sX+3}], s{sXO} offen'); post.append(x)
            elif u == 4:
                bar(s, 'st18')
                s(f'buffer_load_dword v{vP}, off, s[{sWS}:{sWS+3}], s{sFC} offset:256 sc0 sc1')
                post = self.stage_dmas(ty, 21) + self.stage_dmas(ty, 22)
            elif u == 5:
                self.stamp(s)
                self.poll(s, vP, sFC, 256, 16)
                self.stamp(s)
                s += self.touch_h(2)
                for v in (6, 7, 8): s += self.hloads(v)
                bar(s, 'st19', 'st20')
            elif u == 7: bar(s, 'st21', 'st22')
            elif u == 8: bar(s)
            else: return None, []
            if u in (2, 7): self.stamp(s)
            return s, post
        PD, PS, XU = 192, 216, 240
        pend = []
        for n in range(36):
            u, i = divmod(n, 4)
            A = AD if u < 7 else AS
            M = [f'v_mfma_f32_32x32x16_bf16 {vr(A+16*c,16)}, {vr(WF+8*(n%3)+4*c,4)}, {vr(self.HREG[u]+4*i,4)}, {"0" if n in (0, 28) else vr(A+16*c,16)}' for c in range(2)]
            bnd = None
            if n + 2 < 36 and (n + 2) % 4 == 0: bnd, post = boundary((n + 2) // 4)
            R = reads(n + 2) if n + 2 < 36 else [Seq()] * 4
            if n == 28:
                for k in range(3):
                    for h in range(2):
                        x = Seq(); x(f'ds_write_b128 v{T[4+k]}, {vr(AD+8*(k+1)+4*h,4)} offset:{(k+1)*2048 + h*1024}'); pend.append(x)
            if bnd is not None:
                for p in pend: a += p
                a(M[0]); a += bnd; pend = list(post)
                for r in R: a += r
                if n + 2 == 32:
                    for k in range(3):
                        for h in range(2): a(f'ds_read_b128 {vr(PD+8*k+4*h,4)}, v{T[7]} offset:{(k+1)*2048 + h*1024}')
                    z = Seq()
                    for i2 in range(8): z(f'v_add_f32 v{PD+i2}, v{PD+i2}, v{AD+i2}')
                    for i2 in range(8): z(f'v_add_f32 v{PD+8+i2}, v{PD+8+i2}, v{PD+16+i2}')
                    for i2 in range(8): z(f'v_add_f32 v{PD+i2}, v{PD+i2}, v{PD+8+i2}')
                    for i2 in range(8): z(f'v_mul_f32 v{PD+8+i2}, {f2u(-LOG2E)}, v{PD+i2}')
                    for i2 in range(8): z(f'v_exp_f32 v{PD+8+i2}, v{PD+8+i2}')
                    for i2 in range(4): z(f'v_lshlrev_b32 v{XU+2*i2}, 16, v{XR+i2}\nv_and_b32 v{XU+2*i2+1}, 0xffff0000, v{XR+i2}')
                    for i2 in range(8): z(f'v_add_f32 v{PD+8+i2}, 1.0, v{PD+8+i2}')
                    for i2 in range(8): z(f'v_rcp_f32 v{PD+8+i2}, v{PD+8+i2}')
                    for i2 in range(8): z(f'v_mul_f32 v{PD+i2}, v{PD+i2}, v{PD+8+i2}')
                    pend = [Seq()] + [Seq(z[k:k+8]) for k in range(0, len(z), 8)]
                a(M[1])
            else:
                npop = 2 if n >= 28 and n < 30 else 1
                a(M[0]); a += R[0]; a += R[1]
                for _ in range(npop):
                    if pend: a += pend.pop(0)
                a(M[1]); a += R[2]; a += R[3]
                for _ in range(npop):
                    if pend: a += pend.pop(0)
        for p in pend: a += p
        self.stamp(a)
        for k in range(3):
            for h in range(2): a(f'ds_write_b128 v{eW[k]}, {vr(AS+8*(k+1)+4*h,4)} offset:{(k+1)*2048 + h*1024}')
        bar(a)
        for k in range(3):
            for h in range(2): a(f'ds_read_b128 {vr(PS+8*k+4*h,4)}, v{eR} offset:{(k+1)*2048 + h*1024}')
        for i in range(8): a(f'v_add_f32 v{AS+i}, v{AS+i}, v{PS+i}')
        for i in range(8): a(f'v_add_f32 v{AS+i}, v{AS+i}, v{PS+8+i}')
        for i in range(8): a(f'v_add_f32 v{AS+i}, v{AS+i}, v{PS+16+i}')
        for i in range(8): a(f'v_fmac_f32 v{XU+i}, v{AS+i}, v{PD+i}')
        for i in range(4): a(f'v_cvt_pk_bf16_f32 v{XU+i}, v{XU+2*i}, v{XU+2*i+1}')
        self.stamp(a)
        a(f'buffer_store_dwordx4 {vr(XU,4)}, v{vXO}, s[{sOUT}:{sOUT+3}], s{sXO} offen')
        return a

    def phase_end(self, m, ph):
        m.comment('phase end')
        m(f'''
        v_and_b32 v{T[0]}, 15, v{vL}
        v_lshrrev_b32 v{T[1]}, 5, v{vL}
        v_lshl_add_u32 v{T[0]}, v{T[0]}, 2, s{sCSW}
        v_lshl_add_u32 v{T[0]}, v{T[1]}, 8, v{T[0]}
        v_cvt_pk_bf16_f32 v{T[1]}, v{CS}, v{CS}
        v_lshlrev_b32 v{T[1]}, 16, v{T[1]}
        v_sub_f32 v{T[1]}, v{CS}, v{T[1]}
        v_cvt_pk_bf16_f32 v{T[1]}, v{CS}, v{T[1]}
        ''')
        m(f'ds_write_b32 v{T[0]}, v{T[1]} offset:{ph*1024}', 'xch')
        if ph == 0:
            m(f'''
            v_and_b32 v{T[2]}, 15, v{vL}
            s_lshl_b32 s{sT0}, s{sR}, 8
            s_lshl_b32 s{sT1}, s{sC}, 7
            s_add_u32 s{sT0}, s{sT0}, s{sT1}
            s_add_u32 s{sT0}, s{sT0}, {L_ST}
            v_lshl_add_u32 v{T[2]}, v{T[2]}, 3, s{sT0}
            s_mov_b32 vcc_lo, 0x00f0000f
            s_mov_b32 vcc_hi, 0xf0000f00
            v_mov_b32 v{T[3]}, {L_DUM}
            v_cndmask_b32 v{T[3]}, v{T[3]}, v{T[2]}, vcc
            v_cndmask_b32 v{SUM+1}, v{GRAM}, v{GRAM+1}, s[{sM_l1}:{sM_l1+1}]
            v_cndmask_b32 v{SUM+1}, v{SUM+1}, v{GRAM+2}, s[{sM_l2}:{sM_l2+1}]
            v_cndmask_b32 v{SUM+1}, v{SUM+1}, v{GRAM+3}, s[{sM_l3}:{sM_l3+1}]
            ''')
            m(f'ds_write_b64 v{T[3]}, v[{SUM}:{SUM+1}]', 'xch')

    def epi_head(self, ph):
        s = Seq()
        s.gap(2)
        s.waitlg('xch')
        s('s_barrier')
        return s

    def ln_consts(self, ty):
        s = Seq()
        s(f'''
        v_xor_b32 v{T[3]}, 128, v{T[2]}
        ds_read_b64 v[{T[4]}:{T[5]}], v{T[2]}
        ds_read_b64 v[{T[6]}:{T[7]}], v{T[3]}
        ''')
        s.gap(3)
        for rs in range(2):
            S, Q = T[4 + 2 * rs], T[5 + 2 * rs]; c0, c1, ve = LNC[rs], LNC[rs] + 1, LNC[rs] + 2
            r = T[rs]
            s(f'''
            v_mul_f32 v{S}, {f2u(-1.0/512)}, v{S}
            v_mul_f32 v{Q}, {f2u(1.0/512)}, v{Q}
            v_fma_f32 v{Q}, -v{S}, v{S}, v{Q}
            v_max_f32 v{Q}, 0, v{Q}
            v_add_f32 v{ve}, {f2u(1e-5)}, v{Q}
            v_rsq_f32 v{r}, v{ve}
            v_cvt_pk_bf16_f32 v{Q}, v{S}, v{S}
            v_lshlrev_b32 v{T[2]}, 16, v{Q}
            v_sub_f32 v{T[2]}, v{S}, v{T[2]}
            v_cvt_pk_bf16_f32 v{T[2]}, v{T[2]}, v{T[2]}
            v_cndmask_b32 v{BX[rs]}, v{Q}, v{T[2]}, s[{sM_hi32}:{sM_hi32+1}]
            v_mov_b32 v{BX[rs]+1}, 0
            v_mul_f32 v{c0}, {f2u(C0)}, v{r}
            v_mul_f32 v{c1}, v{r}, v{r}
            v_mul_f32 v{c1}, v{c1}, v{c0}
            v_mul_f32 v{c1}, {f2u(0.044715)}, v{c1}
            ''')
        return s

    def corr(self, ph, tiles):
        s = Seq(); A = ACC[ph & 1]
        s(f'''
        v_and_b32 v{T[1]}, 31, v{vL}
        v_lshl_add_u32 v{T[1]}, v{T[1]}, 2, s{sCSR}
        v_xor_b32 v{T[3]}, 128, v{T[1]}
        ''')
        for k, (blk, sig) in enumerate(tiles):
            s(f'ds_read_b32 v{T[2*k]}, v{T[3] if sig else T[1]} offset:{ph*1024 + blk*256}')
        for k in range(len(tiles)): s(f'v_mov_b32 v{T[2*k+1]}, 0')
        s.gap(3)
        for k, (blk, sig) in enumerate(tiles):
            for rs in range(2):
                d = A + blk * 16 + sig * 8 + rs * 4
                s(f'v_mfma_f32_16x16x16_bf16 {vr(d,4)}, {vr(T[2*k],2)}, {vr(BX[rs],2)}, {vr(d,4)}')
        s.gap(2)
        return s

    def gelu(self, A, nsig, addr, tag):
        s = Seq()
        for sig in range(nsig):
            for rs in range(2):
                a = A + sig * 8 + rs * 4; b = a + 16; c0, c1, ve = LNC[rs], LNC[rs] + 1, LNC[rs] + 2
                for i in range(4): s(f'v_mul_f32 v{T[i]}, v{a+i}, v{a+i}')
                for i in range(4): s(f'v_fma_f32 v{T[i]}, v{T[i]}, v{c1}, v{c0}')
                for i in range(4):
                    s(f'v_mul_f32 v{b+i}, v{a+i}, v{b+i}')
                    s(f'v_mul_f32 v{a+i}, v{T[i]}, v{a+i}')
                for i in range(4): s(f'v_exp_f32 v{a+i}, v{a+i}')
                for i in range(4): s(f'v_fma_f32 v{a+i}, v{a+i}, v{ve}, v{ve}')
                for i in range(4): s(f'v_rcp_f32 v{a+i}, v{a+i}')
                for i in range(4): s(f'v_mul_f32 v{b+i}, v{b+i}, v{a+i}')
                d = A + sig * 8 + rs * 2
                s(f'v_cvt_pk_bf16_f32 v{d}, v{b}, v{b+1}\nv_cvt_pk_bf16_f32 v{d+1}, v{b+2}, v{b+3}')
            d = A + sig * 8
            addr(s, sig)
            s(f'v_permlane16_swap_b32 v{d}, v{d+2}\nv_permlane16_swap_b32 v{d+1}, v{d+3}')
            s(f'buffer_store_dwordx4 {vr(d,4)}, v{vHS}, s[{sWS}:{sWS+3}], s{sT0} offen{self.sc}', tag)
        return s

    def qk_logits(self, s, K, L):
        for sig in range(2):
            k = K + 8 * sig
            for i in range(4): s(f'v_cvt_pk_bf16_f32 v{k+i}, v{k+2*i}, v{k+2*i+1}')
        s(f'''
        v_lshrrev_b32 v{T[0]}, 5, v{vL}
        v_bfe_u32 v{T[1]}, v{vL}, 2, 2
        v_lshl_add_u32 v{T[0]}, v{T[0]}, 3, v{T[1]}
        v_lshlrev_b32 v{T[0]}, 5, v{T[0]}
        v_bfe_u32 v{T[1]}, v{vL}, 4, 1
        v_lshl_add_u32 v{T[0]}, v{T[1]}, 4, v{T[0]}
        v_bfe_u32 v{T[1]}, v{vL}, 1, 1
        v_lshl_add_u32 v{T[0]}, v{T[1]}, 3, v{T[0]}
        v_xor_b32 v{T[1]}, s{sR}, v{vL}
        v_and_b32 v{T[1]}, 1, v{T[1]}
        v_lshl_add_u32 v{T[0]}, v{T[1]}, 9, v{T[0]}
        s_lshl_b32 s{sT0}, s{sC}, 10
        s_add_u32 s{sT0}, s{sT0}, {L_PH}
        v_add_u32 v{T[0]}, s{sT0}, v{T[0]}
        ds_read_b64_tr_b16 v[{T[4]}:{T[5]}], v{T[0]}
        ds_read_b64_tr_b16 v[{T[6]}:{T[7]}], v{T[0]} offset:128
        ''')
        for sig in range(2):
            k = K + 8 * sig
            s(f'v_permlane16_swap_b32 v{k}, v{k+2}\nv_permlane16_swap_b32 v{k+1}, v{k+3}')
        s.gap(2)
        for sig, m in ((0, sM_s0), (1, sM_s1)):
            for i in range(4): s(f'v_cndmask_b32 v{K+8*sig+4+i}, 0, v{T[4+i]}, s[{m}:{m+1}]')
        s(f'v_mfma_f32_32x32x16_bf16 {vr(L,16)}, {vr(K+4,4)}, {vr(K,4)}, 0')
        s(f'v_mfma_f32_32x32x16_bf16 {vr(L,16)}, {vr(K+12,4)}, {vr(K+8,4)}, {vr(L,16)}')
        s.gap(3)

    def exps(self, s, L, E):
        mx, mn = T[0], T[1]
        s(f'''
        v_cndmask_b32 v{vR32}, v{LNC[0]}, v{LNC[1]}, s[{sM_b4}:{sM_b4+1}]
        v_mul_f32 v{vSC}, {f2u(LOG2E / C0)}, v{vR32}
        v_mul_f32 v{vR32}, {f2u(1.0 / C0)}, v{vR32}
        ''')
        s(f'v_max3_f32 v{mx}, v{L}, v{L+1}, v{L+2}\nv_min3_f32 v{mn}, v{L}, v{L+1}, v{L+2}')
        for i in range(3, 15, 2):
            s(f'v_max3_f32 v{mx}, v{mx}, v{L+i}, v{L+i+1}\nv_min3_f32 v{mn}, v{mn}, v{L+i}, v{L+i+1}')
        s(f'v_max_f32 v{mx}, v{mx}, v{L+15}\nv_min_f32 v{mn}, v{mn}, v{L+15}')
        s(f'v_mul_f32 v{mx}, v{mx}, v{vSC}\nv_mul_f32 v{mn}, v{mn}, v{vSC}')
        for i in range(0, 16, 2):
            for u in (i, i + 1):
                s(f'v_fma_f32 v{E+u}, v{L+u}, v{vSC}, -v{mx}')
                s(f'v_fma_f32 v{L+u}, -v{L+u}, v{vSC}, v{mn}')
            for u in (i, i + 1):
                s(f'v_exp_f32 v{E+u}, v{E+u}\nv_exp_f32 v{L+u}, v{L+u}')

    def epi_kv(self):
        s = Seq(); K = ACC[0]; V = K + 16
        s(f'''
        v_and_b32 v{T[0]}, 15, v{vL}
        v_lshrrev_b32 v{T[1]}, 4, v{vL}
        v_lshlrev_b32 v{T[1]}, 3, v{T[1]}
        s_movk_i32 s{sT0}, {RECP}
        v_mad_u32_u24 v{T[0]}, v{T[0]}, s{sT0}, v{T[1]}
        s_mul_i32 s{sT0}, s{sR}, {32*RECP}
        s_mul_i32 s{sT1}, s{sC}, {2*RECH}
        s_add_u32 s{sT0}, s{sT0}, s{sT1}
        s_add_u32 s{sPC}, s{sT0}, {REC}
        s_and_b32 s{sT1}, s{sR}, 1
        s_mul_i32 s{sT1}, s{sT1}, {RECH}
        s_add_u32 s{sT2}, s{sPC}, s{sT1}
        s_sub_u32 s{sT3}, s{sPC}, s{sT1}
        s_add_u32 s{sT3}, s{sT3}, {RECH}
        v_add_u32 v{T[1]}, s{sT3}, v{T[0]}
        v_add_u32 v{T[0]}, s{sT2}, v{T[0]}
        ''')
        for sig in range(2):
            for rs in range(2):
                v = V + sig * 8 + rs * 4
                s(f'v_cvt_pk_bf16_f32 v{v}, v{v}, v{v+1}\nv_cvt_pk_bf16_f32 v{v+1}, v{v+2}, v{v+3}')
                s(f'ds_write_b64 v{T[sig]}, {vr(v,2)} offset:{64 + rs*16*RECP}')
        self.qk_logits(s, K, V)
        self.exps(s, V, K)
        sp, sm = T[2], T[3]
        s(f'v_add_f32 v{sp}, v{K}, v{K+1}\nv_add_f32 v{sm}, v{V}, v{V+1}')
        for i in range(2, 16): s(f'v_add_f32 v{sp}, v{sp}, v{K+i}\nv_add_f32 v{sm}, v{sm}, v{V+i}')
        s(f'''
        v_rcp_f32 v{sp}, v{sp}
        v_rcp_f32 v{sm}, v{sm}
        v_cndmask_b32 v{T[4]}, v{LNC[0]+2}, v{LNC[1]+2}, s[{sM_b4}:{sM_b4+1}]
        v_mul_f32 v{sp}, v{sp}, v{vR32}
        v_mul_f32 v{sm}, v{sm}, v{vR32}
        v_mul_f32 v{T[4]}, v{T[4]}, v{vR32}
        v_cvt_pk_bf16_f32 v{T[4]}, v{T[4]}, v{T[4]}
        v_and_b32 v{T[0]}, 31, v{vL}
        v_lshrrev_b32 v{T[1]}, 5, v{vL}
        v_xor_b32 v{T[1]}, s{sR}, v{T[1]}
        v_and_b32 v{T[1]}, 1, v{T[1]}
        v_mul_u32_u24 v{T[1]}, {RECH}, v{T[1]}
        s_movk_i32 s{sT0}, {RECP}
        v_mad_u32_u24 v{T[0]}, v{T[0]}, s{sT0}, v{T[1]}
        v_add_u32 v{T[0]}, s{sPC}, v{T[0]}
        ds_write_b32 v{T[0]}, v{T[4]} offset:96
        ''')
        for (E, sc, off) in ((K, sp, 0), (V, sm, 32)):
            for h in range(2):
                for i in range(8 * h, 8 * h + 8): s(f'v_mul_f32 v{E+i}, v{E+i}, v{sc}')
                for i in range(4 * h, 4 * h + 4): s(f'v_cvt_pk_bf16_f32 v{E+i}, v{E+2*i}, v{E+2*i+1}')
                s(f'ds_write_b128 v{T[0]}, {vr(E+4*h,4)} offset:{off+16*h}', 'rec')
        s(f"""
        v_lshrrev_b32 v{T[0]}, 5, v{vL}
        v_bfe_u32 v{T[1]}, v{vL}, 2, 2
        v_lshl_add_u32 v{T[0]}, v{T[0]}, 3, v{T[1]}
        s_mul_i32 s{sT1}, s{sR}, {RECH}
        s_add_u32 s{sT1}, s{sT1}, {REC}
        v_mul_u32_u24 v{T[0]}, {RECP}, v{T[0]}
        v_add_u32 v{T[0]}, s{sT1}, v{T[0]}
        v_and_b32 v{T[2]}, 3, v{vL}
        v_lshl_add_u32 v{T[1]}, v{T[2]}, 3, v{T[0]}
        s_lshl_b32 s{sT2}, s{sC}, 1
        v_xor_b32 v{T[2]}, s{sT2}, v{T[2]}
        v_cndmask_b32 v{T[2]}, v{T[2]}, 4, s[{sM_b4}:{sM_b4+1}]
        v_lshl_add_u32 v{T[0]}, v{T[2]}, 3, v{T[0]}
        v_bfe_u32 v{T[2]}, v{vL}, 4, 1
        v_lshl_add_u32 v{T[1]}, v{T[2]}, 5, v{T[1]}
        """)
        s.gap(2)
        s.waitlg('rec')
        s('s_barrier')
        def rd(k):
            for t in range(2):
                o = (16 * k + 4 * t) * RECP
                s(f'ds_read_b64_tr_b16 {vr(K+8*(k&1)+2*t,2)}, v{T[0]} offset:{o+64}')
                s(f'ds_read_b64_tr_b16 {vr(K+8*(k&1)+4+2*t,2)}, v{T[1]} offset:{o}')
        rd(0); rd(1)
        s(f"""
        v_and_b32 v{T[3]}, 31, v{vL}
        v_lshlrev_b32 v{T[3]}, 2, v{T[3]}
        v_mov_b32 v{T[2]}, {OOB}
        v_cndmask_b32 v{T[4]}, v{T[3]}, v{T[2]}, s[{sM_hi32}:{sM_hi32+1}]
        v_lshrrev_b32 v{T[2]}, 5, v{vL}
        v_lshl_add_u32 v{T[3]}, v{T[2]}, 9, v{T[3]}
        s_mul_i32 s{sT0}, s{sR}, {KV_HEAD}
        s_add_u32 s{sT0}, s{sT0}, s{sKV}
        s_lshl_b32 s{sT1}, s{sC}, 10
        s_add_u32 s{sPC}, s{sT0}, s{sT1}
        s_cmp_eq_u32 s{sC}, 0
        s_cselect_b32 s{sT3}, s{sT0}, {OOB}
        """)
        s.gap(2)
        for k in range(8):
            c = '0' if k == 0 else vr(V, 16)
            s(f'v_mfma_f32_32x32x16_bf16 {vr(V,16)}, {vr(K+8*(k&1),4)}, {vr(K+8*(k&1)+4,4)}, {c}')
            if k + 2 < 8: rd(k + 2); s.gap(1)
        s.gap(2)
        for i in range(4):
            s(f'buffer_atomic_add_f32 v{V+i}, v{T[3]}, s[{sWS}:{sWS+3}], s{sPC} offen offset:{i*128} sc1', 'kvat')
        s(f'buffer_atomic_add_f32 v{V+8}, v{T[4]}, s[{sWS}:{sWS+3}], s{sT3} offen offset:{16*128} sc1', 'kvat')
        return s

    def poll(self, s, vd, soff, imm, want):
        l1, l2 = self.lab('poll'), self.lab('ok')
        if 'nopoll' in self.dbg: want = 0
        b = Seq()
        b(f'v_readfirstlane_b32 s{sT1}, v{vd}')
        b(f's_cmp_ge_u32 s{sT1}, {want}\ns_cbranch_scc1 {l2}')
        b.append(P('skip_begin'))
        b(f's_mov_b32 s{sT2}, 0\n{l1}:')
        b(f's_sleep 1')
        b(f'buffer_load_dword v{vd}, off, s[{sWS}:{sWS+3}], s{soff} offset:{imm} sc0 sc1')
        b(f's_waitcnt vmcnt(0)')
        b(f'v_readfirstlane_b32 s{sT1}, v{vd}')
        b(f's_add_u32 s{sT2}, s{sT2}, 1\ns_cmp_ge_u32 s{sT2}, 0x20000\ns_cbranch_scc1 {l2}')
        b(f's_cmp_lt_u32 s{sT1}, {want}\ns_cbranch_scc1 {l1}\n{l2}:')
        b.append(P('skip_end'))
        for x in b: x.cost = 0
        s += b

    def zpoll(self, s):
        l1, l2 = self.lab('poll'), self.lab('ok')
        s(f'v_cmp_eq_u32 vcc, 1, v{vP}')
        s(f's_nop 3\ns_cmp_eq_u32 vcc_lo, 0xff\ns_cbranch_scc1 {l2}')
        s.append(P('skip_begin'))
        s(f's_mov_b32 s{sT2}, 0\n{l1}:')
        s(f's_sleep 1')
        s(f'buffer_load_dword v{vP}, v{T[7]}, s[{sDB}:{sDB+3}], 0 offen sc0 sc1')
        s(f's_waitcnt vmcnt(0)')
        s(f'v_cmp_eq_u32 vcc, 1, v{vP}')
        s(f's_add_u32 s{sT2}, s{sT2}, 1\ns_cmp_ge_u32 s{sT2}, 0x20000\ns_cbranch_scc1 {l2}')
        s(f's_nop 1\ns_cmp_lg_u32 vcc_lo, 0xff\ns_cbranch_scc1 {l1}\n{l2}:')
        s.append(P('skip_end'))

    def signal(self, soff, imm):
        s = Seq()
        s(f"""
        v_lshlrev_b32 v{T[0]}, 24, v{vL}
        v_mov_b32 v{T[1]}, 1
        buffer_atomic_add v{T[1]}, v{T[0]}, s[{sWS}:{sWS+3}], s{soff} offen offset:{imm} sc1
        """)
        return s

    KVF = 128
    def kv_fetch(self):
        s = Seq(); F = self.KVF
        a0, a1 = T[6], T[7]
        s(f'''
        v_and_b32 v{T[4]}, 3, v{vL}
        v_bfe_u32 v{T[5]}, v{vL}, 2, 1
        v_lshl_add_u32 v{T[4]}, v{T[5]}, 3, v{T[4]}
        v_bfe_u32 v{T[5]}, v{vL}, 3, 1
        v_lshl_add_u32 v{T[4]}, v{T[5]}, 2, v{T[4]}
        v_cndmask_b32 v{T[4]}, v{T[4]}, 16, s[{sM_b4}:{sM_b4+1}]
        v_lshlrev_b32 v{T[4]}, 7, v{T[4]}
        s_lshl_b32 s{sT0}, s{sC}, 1
        s_and_b32 s{sT1}, s{sR}, 1
        s_or_b32 s{sT0}, s{sT0}, s{sT1}
        s_mul_i32 s{sT1}, s{sT0}, {KV_HEAD}
        s_xor_b32 s{sT0}, s{sT0}, 1
        s_mul_i32 s{sT0}, s{sT0}, {KV_HEAD}
        v_add_u32 v{a0}, s{sT1}, v{T[4]}
        v_add_u32 v{a1}, s{sT0}, v{T[4]}
        s_mov_b32 vcc_lo, 0xaaaa0000
        s_mov_b32 vcc_hi, 0xaaaa0000
        v_mov_b32 v{T[4]}, {KV_ONES}
        v_cndmask_b32 v{a0}, v{a0}, v{T[4]}, vcc
        v_cndmask_b32 v{a1}, v{a1}, v{T[4]}, vcc
        v_and_b32 v{T[4]}, 32, v{vL}
        v_add_u32 v{a0}, v{a0}, v{T[4]}
        v_add_u32 v{a1}, v{a1}, v{T[4]}
        ''')
        self.poll(s, vP2, sU0, 0, 16)
        for sig in range(2):
            for sg in range(2):
                for h in range(2):
                    r = F + sig * 16 + sg * 8 + h * 4
                    s(f'buffer_load_dwordx4 {vr(r,4)}, v{a1 if sig else a0}, s[{sWS}:{sWS+3}], s{sKV} offen offset:{sg*64+h*16} sc0 sc1')
        return s

    def epi_q(self, mid):
        s = Seq(); Q = ACC[0]; L = Q + 16; F = self.KVF; C = [(64, 80), (40, 144)]
        self.qk_logits(s, Q, L)
        self.exps(s, L, Q)
        s += mid
        for E in (Q, L):
            for i in range(8): s(f'v_cvt_pk_bf16_f32 v{E+i}, v{E+2*i}, v{E+2*i+1}')
            for i in range(4): s(f'v_permlane32_swap_b32 v{E+i}, v{E+4+i}')
        for k in range(4):
            for i in range(4): s(f'v_cvt_pk_bf16_f32 v{F+4*k+i}, v{F+8*k+2*i}, v{F+8*k+2*i+1}')
        for sig in range(2):
            for sg, E in enumerate((Q, L)):
                s(f'v_mfma_f32_32x32x16_bf16 {vr(C[sig][sg],16)}, {vr(F+8*sig+4*sg,4)}, {vr(E+4*sig,4)}, 0')
        for sig in range(2):
            p, m = C[sig]
            s(f"""
            v_rcp_f32 v{p+9}, v{p+9}
            v_rcp_f32 v{m+9}, v{m+9}
            v_fmaak_f32 v{p+8}, v{p+8}, v{p+9}, {f2u(1e-6)}
            v_fmac_f32 v{p+8}, v{m+8}, v{m+9}
            v_rcp_f32 v{p+8}, v{p+8}
            v_mul_f32 v{p+9}, v{p+9}, v{p+8}
            v_mul_f32 v{m+9}, v{m+9}, v{p+8}
            """)
            for i in range(8): s(f'v_mul_f32 v{p+i}, v{p+i}, v{p+9}')
            for i in range(8): s(f'v_fmac_f32 v{p+i}, v{m+i}, v{m+9}')
            for i in range(4): s(f'v_cvt_pk_bf16_f32 v{p+i}, v{p+2*i}, v{p+2*i+1}')
            s(f's_lshl_b32 s{sT0}, s{sGI}, 12\ns_add_u32 s{sT0}, s{sT0}, {112*1024}\ns_add_u32 s{sT0}, s{sT0}, s{sH1 if sig else sH0}')
            s(f'buffer_store_dwordx4 {vr(p,4)}, v{vHS}, s[{sWS}:{sWS+3}], s{sT0} offen{self.sc}', 'hst2')
        return s

    def text(self):
        stats = {}
        pro = self.prologue()
        pro(f's_cmp_eq_u32 s{sTY}, 1')
        pro.waitlgkm0()
        pro('s_cbranch_scc1 K1_TYPEB')
        l0, st = finalize(pro, None, stats)
        n0 = self.nst
        A = self.body(0); A('s_endpgm')
        self.nst = n0
        B = self.body(1)
        la, _ = finalize(A, st, stats); lb, _ = finalize(B, st, stats)
        self.stats = stats
        return '\n'.join(l0 + la + ['K1_TYPEB:'] + lb) + '\n'


HEADER = open('cdna_kernels/' + KNAME + '.s.ref').read().split('; Override')[0].rstrip('\n') if __import__('os').path.exists('cdna_kernels/' + KNAME + '.s.ref') else ''

def fused(path, **kw):
    k = KF(**kw)
    txt = kernel_text([dict(name=KNAME + '_kernel', body=k.text(), grid=256, block=512, lds=LDS_BYTES, vgpr=256, accum=256)], HEADER)
    open(path, 'w').write(txt)
    return k

if __name__ == '__main__':
    k = fused(sys.argv[1], **(eval(sys.argv[2]) if len(sys.argv) > 2 else {}))
    print(k.stats)
```

```python
import math, struct, sys
from g import *
from asmgen import kernel_text, KNAME

def f2u(x): return '0x%08x' % struct.unpack('<I', struct.pack('<f', x))[0]
LOG2E = 1.4426950408889634
C0 = -2.0 * LOG2E * math.sqrt(2.0 / math.pi)

H_TILE = 144 * 1024
KV_OFF = 64 * H_TILE
KV_PITCH = 10240
KV_HEAD = 17 * 128
KV_CNT = 68 * 128
KV_ONES = 69 * 128
F_CNT = 70 * 128
WS_SIZE = KV_OFF + 8 * KV_PITCH
STAMP_OFF = 12 << 20
OOB = 0x7ff00000

X = lambda rs, s: 128 + s * 8 + rs * 4
ACC = [96, 64]
WF = 40
vL, vQ, vG, vHS = 0, 1, 2, 3
aT = {(0, 0): 4, (0, 1): 5, (1, 0): 6, (1, 1): 7}
SEL = [8, 12]; CS = 16
BX = [20, 22]
LNC = [24, 27]
vD, vP = 30, 31
T = list(range(32, 40))
vSC, vR32 = T[5], T[6]
vH, vP2 = vG, vQ
vXD = 64; aX = {(0, 0): 66, (0, 1): 67, (1, 0): 68, (1, 1): 69}
ONES = 72; SUM = 88; GRAM = 92
sX, sWQ, sWG, sWU, sWS, sPH, sDB = 4, 8, 12, 16, 20, 24, 28
sW, sR, sC, sRB, sGI, sTY, sM0, sA = 32, 33, 34, 35, 36, 37, 38, 39
sWD, sWO, sOUT = 40, 44, 48
sH0, sH1, sT0, sT1, sT2, sT3 = 68, 69, 70, 71, 72, 73
sCSW, sCSR = 74, 75
sMASK = 76
sM_l1, sM_l2, sM_l3, sM_hi32, sM_b4, sM_s0, sM_s1 = 76, 78, 80, 82, 84, 86, 88
sKV, sPC = 90, 91
sU0, sU1, sHB1, sHB2, sFC, sFP, sXO = 92, 93, 94, 95, 96, 97, 98
sSTL = [52, 54, 56, 58, 60, 62, 64, 66, 100, 24, 26, 8, 10, 12, 14, 16]
SLOT = 32768
REC = 98304; RECP = 112; RECH = 128 * RECP
MISC = 155648
L_ST = MISC; L_DUM = MISC + 1024; L_CS = MISC + 2048; L_PH = MISC + 2048 + 3 * 1024
LDS_BYTES = 163840

def srd(a, d, off, size):
    a(f's_load_dwordx2 s[{d}:{d+1}], s[0:1], {off}')
    return f's_mov_b32 s{d+2}, {size}\ns_mov_b32 s{d+3}, 0x20000'

def m64(a, s, val):
    a(f's_mov_b32 s{s}, 0x{val & 0xffffffff:x}\ns_mov_b32 s{s+1}, 0x{val >> 32:x}')

class KF:
    def __init__(self, rate=(0, 8.0, 30.0), stamps=False, sc=' sc0 sc1', scl=' sc0 sc1', nfirst=1, jE0=10, jS0=11, jS1=13, f1pos=1, jW=(10, 11), jT=99, jT1=99, th=0, kvg=4, spread=10, pace=2, osc='', tch={}, dbg=''):
        self.tch = tch
        self.osc = osc
        self.pace = pace
        self.jT = jT; self.jT1 = jT1; self.th = th; self.kvg = kvg; self.spread = spread
        self.dbg = dbg
        self.nfirst = nfirst
        self.rate = rate; self.stamps = stamps; self.sc = sc; self.scl = scl
        self.jE0 = jE0; self.jS0 = jS0; self.jS1 = jS1; self.f1pos = f1pos; self.jW = jW
        self.nst = 0
        self.nlab = 0
    def lab(self, b):
        self.nlab += 1
        return f'K1_{b}_{self.nlab}'
    def stamp(self, a):
        if self.stamps:
            a(f'{"s_memtime" if self.stamps == 2 else "s_memrealtime"} s[{sSTL[self.nst]}:{sSTL[self.nst]+1}]'); self.nst += 1

    def prologue(self):
        a = Seq()
        a('s_cmp_lt_u32 s2, 256\ns_cbranch_scc1 K1_GO\ns_endpgm\nK1_GO:')
        post = [srd(a, sX, 0, 2097152), srd(a, sWQ, 8, 1572864), srd(a, sWG, 40, 1835008), srd(a, sWU, 48, 1835008)]
        self.post2 = [srd(a, sWS, 80, (16 << 20) if self.stamps else WS_SIZE), srd(a, sPH, 16, 16384), srd(a, sDB, 72, 256),
                      srd(a, sWD, 56, 1835008), srd(a, sWO, 24, 524288), srd(a, sOUT, 64, 2097152)]
        self.stamp(a)
        a(f'''
        v_lshrrev_b32 v{T[5]}, 6, v0
        v_lshrrev_b32 v{T[0]}, 3, v0
        v_readfirstlane_b32 s{sW}, v{T[5]}
        v_and_b32 v{T[1]}, 7, v0
        v_bfe_u32 v{T[2]}, v0, 4, 3
        s_and_b32 s{sT0}, s2, 3
        s_lshl_b32 s{sT0}, s{sT0}, 2
        s_bfe_u32 s{sT1}, s2, 0x20003
        s_add_u32 s{sRB}, s{sT0}, s{sT1}
        s_and_b32 s{sT0}, s2, 4
        s_lshr_b32 s{sT1}, s2, 6
        s_add_u32 s{sGI}, s{sT0}, s{sT1}
        s_bfe_u32 s{sTY}, s2, 0x10005
        s_lshl_b32 s{sT2}, s{sRB}, 17
        v_xor_b32 v{T[3]}, v{T[2]}, v{T[1]}
        v_lshl_add_u32 v{T[3]}, v{T[3]}, 4, s{sT2}
        v_lshl_add_u32 v{vXD}, v{T[0]}, 10, v{T[3]}
        v_and_b32 v{T[3]}, 4, v{T[2]}
        v_and_b32 v{T[2]}, 1, v{T[2]}
        v_lshl_or_b32 v{T[3]}, v{T[2]}, 1, v{T[3]}
        v_xor_b32 v{T[3]}, v{T[3]}, v{T[1]}
        s_lshl_b32 s{sT0}, s{sGI}, 7
        s_lshl_b32 s{sT1}, s{sGI}, 8
        s_add_u32 s{sT1}, s{sT1}, 1024
        s_cmp_eq_u32 s{sTY}, 0
        s_cselect_b32 s{sT1}, s{sT0}, s{sT1}
        v_lshl_add_u32 v{T[4]}, v{T[3]}, 4, s{sT0}
        v_lshl_add_u32 v{T[3]}, v{T[3]}, 4, s{sT1}
        s_movk_i32 s{sT0}, 3072
        s_movk_i32 s{sT1}, 3584
        v_mad_u32_u24 v{vQ}, v{T[0]}, s{sT0}, v{T[4]}
        v_mad_u32_u24 v{vG}, v{T[0]}, s{sT1}, v{T[3]}
        s_lshl_b32 s{sM0}, s{sW}, 10
        ''')
        for p in post: a(p)
        return a

    def setup1(self, a):
        for p in self.post2: a(p)
        a(f'''
        v_and_b32 v{vL}, 63, v0
        s_and_b32 s{sR}, s{sW}, 3
        s_lshr_b32 s{sC}, s{sW}, 2
        v_lshlrev_b32 v{T[2]}, 2, v{T[2]}
        v_xor_b32 v{T[1]}, v{T[1]}, v{T[2]}
        s_lshr_b32 s{sT0}, s2, 5
        s_lshl_b32 s{sT0}, s{sT0}, 7
        v_lshl_add_u32 v{T[1]}, v{T[1]}, 4, s{sT0}
        v_lshl_add_u32 v{vD}, v{T[0]}, 10, v{T[1]}
        s_mul_i32 s{sKV}, s{sGI}, {KV_PITCH}
        s_add_u32 s{sKV}, s{sKV}, {KV_OFF}
        ''')

    def setup2(self, a):
        a(f'''
        v_lshrrev_b32 v{T[0]}, 4, v{vL}
        v_bfe_u32 v{T[1]}, v{vL}, 2, 2
        v_lshl_add_u32 v{T[2]}, v{T[0]}, 3, v{T[1]}
        v_lshlrev_b32 v{T[2]}, 7, v{T[2]}
        v_bfe_u32 v{T[3]}, v{vL}, 3, 2
        s_lshl_b32 s{sT0}, s{sC}, 1
        s_and_b32 s{sT1}, s{sR}, 1
        s_or_b32 s{sT0}, s{sT0}, s{sT1}
        v_xor_b32 v{T[3]}, s{sT0}, v{T[3]}
        v_lshl_add_u32 v{T[2]}, v{T[3]}, 5, v{T[2]}
        v_and_b32 v{T[3]}, 3, v{vL}
        v_lshl_add_u32 v{T[2]}, v{T[3]}, 3, v{T[2]}
        s_lshr_b32 s{sT1}, s{sR}, 1
        s_lshl_b32 s{sT2}, s{sT1}, 12
        v_add_u32 v{aT[0,0]}, s{sT2}, v{T[2]}
        v_xor_b32 v{aT[0,1]}, 32, v{aT[0,0]}
        v_xor_b32 v{aT[1,0]}, 0x1000, v{aT[0,0]}
        v_xor_b32 v{aT[1,1]}, 0x1020, v{aT[0,0]}
        v_and_b32 v{T[1]}, 15, v{vL}
        s_lshl_b32 s{sT2}, s{sR}, 5
        s_lshl_b32 s{sT3}, s{sC}, 4
        s_add_u32 s{sT2}, s{sT2}, s{sT3}
        v_add_u32 v{T[2]}, s{sT2}, v{T[1]}
        s_lshl_b32 s{sT1}, s{sT1}, 2
        v_or_b32 v{T[3]}, s{sT1}, v{T[0]}
        v_lshrrev_b32 v{T[4]}, 1, v{T[1]}
        v_xor_b32 v{T[3]}, v{T[3]}, v{T[4]}
        v_lshlrev_b32 v{T[3]}, 4, v{T[3]}
        v_lshl_add_u32 v{aX[0,0]}, v{T[2]}, 7, v{T[3]}
        v_xor_b32 v{aX[0,1]}, 64, v{aX[0,0]}
        v_xor_b32 v{aX[1,0]}, 0x800, v{aX[0,0]}
        v_xor_b32 v{aX[1,1]}, 0x840, v{aX[0,0]}
        v_xor_b32 v{vHS}, s{sT3}, v{vL}
        v_lshlrev_b32 v{vHS}, 4, v{vHS}
        ''')
        m64(a, sM_l1, 0x2222222222222222); m64(a, sM_l2, 0x4444444444444444); m64(a, sM_l3, 0x8888888888888888)
        m64(a, sM_hi32, 0xFFFFFFFF00000000); m64(a, sM_b4, 0xFFFF0000FFFF0000)
        m64(a, sM_s0, 0x0F0F0F0F0F0F0F0F); m64(a, sM_s1, 0xF0F0F0F0F0F0F0F0)
        a(f's_mov_b32 vcc_lo, 0x00ff00ff\ns_mov_b32 vcc_hi, 0x00ff00ff')
        a(f'v_mov_b32 v{ONES}, 0x3f803f80')
        for i in range(1, 4): a(f'v_mov_b32 v{ONES+i}, v{ONES}')
        a(f'v_cndmask_b32 v{SEL[0]}, 0, v{ONES}, vcc')
        a(f'v_xor_b32 v{SEL[1]}, v{SEL[0]}, v{ONES}')
        for i in range(1, 4): a(f'v_mov_b32 v{SEL[0]+i}, v{SEL[0]}\nv_mov_b32 v{SEL[1]+i}, v{SEL[1]}')
        a(f'''
        s_lshl_b32 s{sT0}, s{sRB}, 2
        s_add_u32 s{sT0}, s{sT0}, s{sR}
        s_mul_i32 s{sT0}, s{sT0}, {H_TILE}
        s_lshl_b32 s{sT1}, s{sC}, 11
        s_add_u32 s{sT0}, s{sT0}, s{sT1}
        s_and_b32 s{sT1}, s{sR}, 1
        s_lshl_b32 s{sT2}, s{sT1}, 10
        s_add_u32 s{sH0}, s{sT0}, s{sT2}
        s_xor_b32 s{sT2}, s{sT2}, 1024
        s_add_u32 s{sH1}, s{sT0}, s{sT2}
        s_lshl_b32 s{sT0}, s{sC}, 9
        s_lshl_b32 s{sT1}, s{sT1}, 7
        s_add_u32 s{sT0}, s{sT0}, s{sT1}
        s_add_u32 s{sCSR}, s{sT0}, {L_CS}
        s_lshr_b32 s{sT1}, s{sR}, 1
        s_lshl_b32 s{sT1}, s{sT1}, 6
        s_add_u32 s{sCSW}, s{sCSR}, s{sT1}
        s_lshr_b32 s{sT0}, s{sRB}, 1
        s_mul_i32 s{sT0}, s{sT0}, {KV_PITCH}
        s_and_b32 s{sT1}, s{sRB}, 1
        s_mul_i32 s{sT1}, s{sT1}, 384
        s_add_u32 s{sT0}, s{sT0}, s{sT1}
        s_add_u32 s{sFP}, s{sT0}, {KV_OFF + F_CNT}
        s_cmp_eq_u32 s{sW}, 0
        s_cselect_b32 s{sFP}, s{sFP}, {OOB}
        s_and_b32 s{sT0}, s2, 3
        s_lshl_b32 s{sT0}, s{sT0}, 3
        s_and_b32 s{sT1}, s2, 4
        s_add_u32 s{sT0}, s{sT0}, s{sT1}
        s_bfe_u32 s{sT1}, s2, 0x20003
        s_add_u32 s{sT0}, s{sT0}, s{sT1}
        s_lshr_b32 s{sT1}, s{sT0}, 2
        s_mul_i32 s{sT1}, s{sT1}, {KV_PITCH}
        s_bfe_u32 s{sT2}, s{sT0}, 0x10001
        s_mul_i32 s{sT2}, s{sT2}, 384
        s_add_u32 s{sT1}, s{sT1}, s{sT2}
        s_add_u32 s{sFC}, s{sT1}, {KV_OFF + F_CNT}
        s_lshl_b32 s{sT0}, s{sT0}, 1
        s_add_u32 s{sT0}, s{sT0}, s{sC}
        s_mul_i32 s{sT1}, s{sT0}, {H_TILE}
        s_lshl_b32 s{sT2}, s{sR}, 12
        s_add_u32 s{sHB1}, s{sT1}, s{sT2}
        s_add_u32 s{sHB2}, s{sHB1}, s{sT2}
        s_lshl_b32 s{sT0}, s{sT0}, 15
        s_lshr_b32 s{sT1}, s2, 5
        s_lshl_b32 s{sT1}, s{sT1}, 7
        s_add_u32 s{sT0}, s{sT0}, s{sT1}
        s_lshl_b32 s{sT1}, s{sR}, 5
        s_add_u32 s{sXO}, s{sT0}, s{sT1}
        ''')

    def dma(self, srdreg, voff, soff, lds, tag):
        s = Seq()
        s(f's_add_u32 m0, s{sM0}, {lds}')
        if soff: s(f's_mov_b32 s{sA}, {soff}')
        s(f'buffer_load_dwordx4 v{voff}, s[{srdreg}:{srdreg+3}], {"s%d" % sA if soff else "0"} offen lds', tag)
        return s

    PB = [(8, 2), (16, 2), (9, 2), (17, 2), (0, 1), (4, 1), (24, 1), (28, 1), (32, 1)]
    SLOTS = [j % 4 for j in range(8)] + [0, 1, 2, 0, 1, 2] + [3, 0, 1, 2, 4, 3, 0, 1, 2]
    def stage_dmas(self, ty, j):
        tag = f'st{j}'; L = []; base = self.SLOTS[j] * SLOT
        KQ, KG = 64 * 3072, 64 * 3584
        if 'nodma' in self.dbg and 4 <= j < 14: return L
        if 'samek' in self.dbg and j < 14:
            for d in range(4): L.append(self.dma(sWG, vG, (d + 4 * (j & 1)) * KG, base + d * 8192, tag))
            return L
        if j < 8:
            L.append(self.dma(sX, vXD, j * 128, base, tag))
            if ty == 0: L.append(self.dma(sWQ, vQ, j * KQ + 1024, base + 16384, tag))
            else: L.append(self.dma(sWG, vG, j * KG, base + 16384, tag))
            L.append(self.dma(sX, vXD, j * 128 + 65536, base + 8192, tag))
            if ty == 0: L.append(self.dma(sWQ, vQ, j * KQ + 2048, base + 24576, tag))
            else: L.append(self.dma(sWU, vG, j * KG, base + 24576, tag))
        elif j < 12:
            for h in range(2):
                ch = 2 * (j - 8) + h
                L.append(self.dma(sWG, vG, ch * KG + 128 * ty, base + h * 16384, tag))
                L.append(self.dma(sWU, vG, ch * KG + 128 * ty, base + h * 16384 + 8192, tag))
        elif j < 14:
            if ty == 1:
                for h in range(4):
                    L.append(self.dma(sWQ, vQ, (4 * (j - 12) + h) * KQ, base + h * 8192, tag))
            else:
                for h in range(2):
                    p = 2 * (j - 12) + h
                    L.append(self.dma(sWG, vQ, 2 * p * KG, base + h * 8192, tag))
                    L.append(self.dma(sWU, vQ, 2 * p * KG, base + 16384 + h * 8192, tag))
        else:
            b, m = self.PB[j - 14]
            if 'now2' in self.dbg and j >= 19: return L
            for q in range(4):
                p = b + m * q
                L.append(self.dma(sWD if p < 28 else sWO, vD, (p if p < 28 else p - 28) * 65536, base + q * 8192, tag))
        return L

    def groups(self, ty):
        G = []
        for j in range(8):
            for (blk, sig) in ((0, 0), (1, 0), (0, 1), (1, 1)):
                G.append(dict(stage=j, phase=0, ch=j, blk=blk, sig=sig, off=16384 + blk * 8192, ts=512))
        for j in range(8, 12):
            for h in range(2):
                for (blk, sig) in ((0, 0), (1, 0), (0, 1), (1, 1)):
                    G.append(dict(stage=j, phase=1, ch=2 * (j - 8) + h, blk=blk, sig=sig, off=h * 16384 + blk * 8192, ts=512))
        for j in range(12, 14):
            for h in range(4):
                for u in range(2):
                    if ty == 1: G.append(dict(stage=j, phase=2, ch=4 * (j - 12) + h, blk=0, sig=u, off=h * 8192, ts=512))
                    else: G.append(dict(stage=j, phase=2, ch=4 * (j - 12) + h, blk=u, sig=0, off=u * 16384 + h * 4096, ts=256))
        return G

    def body(self, ty):
        slot = self.SLOTS
        issue_after = {}
        last = {}
        first = []
        for j in range(14):
            if slot[j] in last: issue_after.setdefault(last[slot[j]] + 1, []).extend(self.stage_dmas(ty, j))
            else: first.append(j)
            last[slot[j]] = j
        assert min(self.jW) >= self.jE0 or ty == 1
        issue_after.setdefault(self.jW[0], []).extend(self.stage_dmas(ty, 14))
        issue_after.setdefault(self.jW[1], []).extend(self.stage_dmas(ty, 18)[:3])
        issue_after.setdefault(12, []).extend(self.stage_dmas(ty, 15))
        issue_after.setdefault(13, []).extend(self.stage_dmas(ty, 16))
        pre = Seq()
        for j in first[:self.nfirst]:
            for d in self.stage_dmas(ty, j): pre += d
        self.setup1(pre)
        if ty == 1:
            pre(f"""
            v_lshl_add_u32 v{T[0]}, v{vL}, 4, s{sM0}
            s_cmp_eq_u32 s{sRB}, 0
            s_cselect_b32 s{sT0}, s{sKV}, {OOB}
            v_mov_b32 v{T[4]}, 0
            v_mov_b32 v{T[5]}, 0
            v_mov_b32 v{T[6]}, 0
            v_mov_b32 v{T[7]}, 0
            """)
            pre(f'buffer_store_dwordx4 v[{T[4]}:{T[7]}], v{T[0]}, s[{sWS}:{sWS+3}], s{sT0} offen sc0 sc1', 'zero')
            pre(f"""
            v_lshrrev_b32 v{T[1]}, 7, v{T[0]}
            v_cmp_eq_u32 vcc, 5, v{T[1]}
            v_cndmask_b32 v{T[4]}, 0, 1.0, vcc
            v_mov_b32 v{T[5]}, v{T[4]}
            v_mov_b32 v{T[6]}, v{T[4]}
            v_mov_b32 v{T[7]}, v{T[4]}
            s_cmp_lt_u32 s{sW}, 2
            s_cselect_b32 s{sT0}, s{sT0}, {OOB}
            s_add_u32 s{sT0}, s{sT0}, 8192
            """)
            pre(f'buffer_store_dwordx4 v[{T[4]}:{T[7]}], v{T[0]}, s[{sWS}:{sWS+3}], s{sT0} offen sc0 sc1', 'zero')
        self.setup2(pre)
        for j in first[self.nfirst:]:
            for d in self.stage_dmas(ty, j): pre += d
        pre(f"""
        v_lshlrev_b32 v{T[0]}, 4, v{vL}
        s_lshl_b32 s{sT0}, s{sGI}, 11
        s_and_b32 s{sT1}, s{sM0}, 1024
        s_add_u32 s{sT0}, s{sT0}, s{sT1}
        s_add_u32 m0, s{sT1}, {L_PH}
        """)
        pre(f'buffer_load_dwordx4 v{T[0]}, s[{sPH}:{sPH+3}], s{sT0} offen lds', 'ph')
        pre += self.touch(self.tch.get(-1, ''))
        G = self.groups(ty)
        win = {'t': 0, 'x': 0}
        def setwin(s, which, regs, base):
            w = base // 65536
            if win[which] != w:
                d = (w - win[which]) * 65536
                for r in regs: s(f'v_add_u32 v{r}, 0x{d & 0xffffffff:x}, v{r}')
                win[which] = w
            return base - w * 65536
        def reads(gi):
            g = G[gi]; L = []
            hd = Seq()
            if ty == 0 and g['phase'] == 2 and G[gi - 1]['phase'] == 1:
                hd(f"""
                v_lshrrev_b32 v{aT[0,1]}, 4, v{vL}
                v_bfe_u32 v{aT[1,1]}, v{vL}, 2, 2
                v_lshl_add_u32 v{aT[0,0]}, v{aT[0,1]}, 3, v{aT[1,1]}
                v_lshlrev_b32 v{aT[0,0]}, 6, v{aT[0,0]}
                v_and_b32 v{aT[0,1]}, 1, v{aT[0,1]}
                v_xor_b32 v{aT[0,1]}, s{sC}, v{aT[0,1]}
                v_lshl_add_u32 v{aT[0,0]}, v{aT[0,1]}, 5, v{aT[0,0]}
                v_and_b32 v{aT[0,1]}, 3, v{vL}
                v_lshl_add_u32 v{aT[0,0]}, v{aT[0,1]}, 3, v{aT[0,0]}
                s_lshr_b32 s{sU0}, s{sR}, 1
                s_lshl_b32 s{sU0}, s{sU0}, 11
                v_add_u32 v{aT[0,0]}, s{sU0}, v{aT[0,0]}
                v_xor_b32 v{aT[1,0]}, 0x800, v{aT[0,0]}
                """)
                win['t'] = 0
            b = setwin(hd, 't', list(aT.values()), slot[g['stage']] * SLOT) + g['off']
            buf = WF + 8 * (gi % 3)
            for kp in range(2):
                for t in range(2):
                    s = Seq()
                    if not L: s += hd
                    s(f'ds_read_b64_tr_b16 v[{buf+4*kp+2*t}:{buf+4*kp+2*t+1}], v{aT[kp, g["sig"]]} offset:{b + t * g["ts"]}')
                    L.append(s)
            return L
        JZ = 2
        xq = []
        def boundary(j):
            s = Seq()
            s.waitvm(f'st{j}')
            if j == JZ and ty == 1: s.waitvm('zero')
            if j == 4: s.waitvm('ph')
            if j == self.jS0: s.waitvm('kvat' if ty == 0 else 'hst0')
            if j == self.jS1: s.waitvm('hst1')
            if 'nolg' not in self.dbg: s.waitlgkm0()
            s('s_barrier')
            if j < 8:
                b = setwin(s, 'x', list(aX.values()), slot[j] * SLOT)
                for rs in range(2):
                    for sp in range(2):
                        r = X(rs, 2 * j + sp)
                        x = Seq(); x(f'ds_read_b128 v[{r}:{r+3}], v{aX[rs, sp]} offset:{b}')
                        if self.pace > 1 and j > 0: xq.append(x)
                        elif 'noxr' not in self.dbg: s += x
            if j == JZ and ty == 1:
                s(f"""
                s_lshl_b32 s{sT0}, s{sGI}, 5
                s_or_b32 s{sT1}, s{sRB}, s{sW}
                s_cmp_eq_u32 s{sT1}, 0
                s_cselect_b32 s{sT0}, s{sT0}, {OOB}
                v_lshlrev_b32 v{T[0]}, 8, v{vL}
                v_mov_b32 v{T[1]}, 1
                buffer_store_dword v{T[1]}, v{T[0]}, s[{sDB}:{sDB+3}], s{sT0} offen sc0 sc1
                """)
            if j == 6:
                s(f'v_lshlrev_b32 v{T[7]}, 5, v{vL}')
                s(f'buffer_load_dword v{vP}, v{T[7]}, s[{sDB}:{sDB+3}], 0 offen sc0 sc1')
            if j == 8: self.zpoll(s)
            if j == self.jS0:
                if ty == 0:
                    s(f's_cmp_eq_u32 s{sW}, 0\ns_cselect_b32 s{sU0}, s{sKV}, {OOB}\ns_add_u32 s{sU0}, s{sU0}, {KV_CNT}')
                    s += self.signal(sU0, 0)
                else: s += self.signal(sFP, 0)
            if j == self.jS1: s += self.signal(sFP, 128)
            if j == 12: s(f'v_lshlrev_b32 v{vH}, 4, v{vL}')
            s += self.touch(self.tch.get(j, ''))
            if j == self.jT: s += self.touch_w2()
            if j == self.jT1: s += self.touch_w1(ty)
            if j == 13 and ty == 1: s(f's_add_u32 s{sU0}, s{sKV}, {KV_CNT}\nbuffer_load_dword v{vP2}, off, s[{sWS}:{sWS+3}], s{sU0} sc0 sc1')
            return s
        def mfmas(gi):
            g = G[gi]; ph = g['phase']; A = ACC[ph & 1]; buf = WF + 8 * (gi % 3); L = []
            firstk = g['ch'] == 0
            for rs in range(2):
                d = A + g['blk'] * 16 + g['sig'] * 8 + rs * 4
                for kp in range(2):
                    c = '0' if (firstk and kp == 0) else vr(d, 4)
                    x = X(rs, 2 * g['ch'] + kp)
                    L.append(f'v_mfma_f32_16x16x32_bf16 {vr(d,4)}, {vr(buf+4*kp,4)}, {vr(x,4)}, {c}')
            if g['sig'] == 0:
                c = '0' if (firstk and g['blk'] == 0) else vr(CS, 4)
                L.append(f'v_mfma_f32_16x16x32_bf16 {vr(CS,4)}, {vr(SEL[g["blk"]],4)}, {vr(buf,4)}, {c}')
            elif ph == 0:
                d, acc = (SUM, ONES) if g['blk'] == 0 else (GRAM, None)
                for kp in range(2):
                    x = X(0, 2 * g['ch'] + kp)
                    c = '0' if (firstk and kp == 0) else vr(d, 4)
                    L.insert(kp, f'v_mfma_f32_16x16x32_bf16 {vr(d,4)}, {vr(acc if acc else x,4)}, {vr(x,4)}, {c}')
            return L

        phases = [Seq(), Seq(), Seq()]
        head = Seq()
        head += boundary(0)
        self.stamp(head)
        pend = []
        for gi in (0, 1):
            for r in reads(gi): head += r
        g13 = min(i for i, g in enumerate(G) if g['stage'] == 13)
        for gi in range(len(G)):
            m = phases[G[gi]['phase']]
            M = mfmas(gi)
            nxt = gi + 2
            R = []; bnd = None
            if nxt < len(G):
                if G[nxt]['stage'] != G[nxt - 1]['stage']:
                    bnd = boundary(G[nxt]['stage'])
                R = reads(nxt)
            if gi == (g13 if ty == 0 else len(G) - self.kvg):
                if ty == 1:
                    for p in pend: m += p
                    pend = []
                    m += self.kv_fetch()
                self.poll(m, vP, sFC, 0, 8)
                m += self.touch_h(0)
                if self.f1pos == 0 and ty == 1: m(f'buffer_load_dword v{vP2}, off, s[{sWS}:{sWS+3}], s{sFC} offset:128 sc0 sc1')
                pend += [self.hloads(0)[:3], self.hloads(0)[3:], self.hloads(1)[:3], self.hloads(1)[3:]]
            if gi == len(G) - 2:
                for p in pend: m += p
                pend = []
                if self.f1pos == 0 and ty == 0: m(f'buffer_load_dword v{vP2}, off, s[{sWS}:{sWS+3}], s{sFC} offset:128 sc0 sc1')
            if bnd is None:
                for k, t in enumerate(M):
                    m(t)
                    if k < len(R): m += R[k]
                    if k == 1 and pend: m += pend.pop(0)
                    if k == 3 and pend and (G[gi]['phase'] != 1 or len(pend) > 5) and not (self.pace and G[gi]['phase'] == 0): m += pend.pop(0)
                    if k == 2 and xq: m += xq.pop(0)
                    if k == 4 and xq: m += xq.pop(0)
            else:
                for p in pend: m += p
                pend = []
                m(M[0]); m(M[1]); m += bnd
                j = G[nxt]['stage']
                if ty == 0 and j == 5:
                    m(f"""
                    v_lshrrev_b32 v{T[0]}, 2, v{vL}
                    s_lshl_b32 s{sT0}, s{sW}, 4
                    v_add_u32 v{T[0]}, s{sT0}, v{T[0]}
                    v_lshrrev_b32 v{T[1]}, 5, v{vL}
                    v_lshlrev_b32 v{T[1]}, 1, v{T[1]}
                    v_and_b32 v{T[2]}, 3, v{vL}
                    v_xor_b32 v{T[1]}, v{T[1]}, v{T[2]}
                    s_lshl_b32 s{sT0}, s{sGI}, 6
                    s_add_u32 s{sT0}, s{sT0}, {24*128}
                    v_lshl_add_u32 v{T[1]}, v{T[1]}, 4, s{sT0}
                    s_movk_i32 s{sT0}, 3584
                    v_mad_u32_u24 v{vQ}, v{T[0]}, s{sT0}, v{T[1]}
                    """)
                pend += issue_after.get(j, [])
                if self.pace and G[gi]['phase'] == 0:
                    m += R[0]; m(M[2]); m += R[1]
                    if xq: m += xq.pop(0)
                    m(M[3]); m += R[2]
                    if pend: m += pend.pop(0)
                    m(M[4]); m += R[3]
                    if xq: m += xq.pop(0)
                    m(M[5])
                else:
                    m += R[0]; m += R[1]; m(M[2]); m += R[2]; m += R[3]
                    for t in M[3:]: m(t)
            if gi + 1 == len(G) or G[gi + 1]['phase'] != G[gi]['phase']:
                self.phase_end(m, G[gi]['phase'])
        assert not pend
        def weave(ph, E, rate, j):
            k = [i for i, x in enumerate(ph) if isinstance(x, P) and x.kind == 'comment' and x.arg == f'bnd {j}'][0]
            o, rest = interleave(ph[:k], E, rate)
            o += rest; o += ph[k:]
            return o
        out = Seq(); out += pre; out += head
        out += phases[0]
        self.stamp(out)
        E0 = self.epi_head(0)
        E0 += self.ln_consts(ty)
        E0 += self.corr(0, [(0, 0), (1, 0), (0, 1), (1, 1)])
        if ty == 0: E0 += self.epi_kv()
        else: E0 += self.gelu(ACC[0], 2, lambda s, sig: s(f's_lshl_b32 s{sT0}, s{sGI}, 13\ns_add_u32 s{sT0}, s{sT0}, {8*4096}\ns_add_u32 s{sT0}, s{sT0}, s{sH1 if sig else sH0}'), 'hst0')
        self.stamp(E0)
        out += weave(phases[1], E0, self.rate[1], self.jE0)
        self.stamp(out)
        E1 = Seq()
        E1 += self.epi_head(1)
        E1 += self.corr(1, [(0, 0), (1, 0), (0, 1), (1, 1)])
        if ty == 0: E1 += self.gelu(ACC[1], 2, lambda s, sig: s(f's_lshl_b32 s{sT0}, s{sGI}, 12\ns_add_u32 s{sT0}, s{sT0}, s{sH1 if sig else sH0}'), 'hst1')
        else: E1 += self.gelu(ACC[1], 2, lambda s, sig: s(f's_lshl_b32 s{sT0}, s{sGI}, 13\ns_add_u32 s{sT0}, s{sT0}, {9*4096}\ns_add_u32 s{sT0}, s{sT0}, s{sH1 if sig else sH0}'), 'hst1')
        E1(f'buffer_load_dword v{vP}, off, s[{sWS}:{sWS+3}], s{sFC} sc0 sc1')
        self.stamp(E1)
        out += weave(phases[2], E1, self.rate[2], 13)
        self.stamp(out)
        def f1():
            s = Seq()
            self.poll(s, vP2, sFC, 128, 16)
            s += self.touch_h(1)
            if self.f1pos == 1 or not self.spread:
                for u in range(2, 6): s += self.hloads(u)
            return s
        E2 = Seq()
        E2.waitvm('st15')
        if self.jS1 == 14: E2.waitvm('hst1')
        E2 += self.epi_head(2)
        if self.jS1 == 14: E2 += self.signal(sFP, 128)
        for d in self.stage_dmas(ty, 17): E2 += d
        if self.f1pos == 0: E2 += f1()
        self.stamp(E2)
        k0 = len(E2)
        pl = Seq()
        if self.f1pos == 1: pl(f'buffer_load_dword v{vP2}, off, s[{sWS}:{sWS+3}], s{sFC} offset:128 sc0 sc1')
        if ty == 0:
            E2 += self.corr(2, [(0, 0), (1, 0)])
            def ad(s, sig):
                s(f"""
                s_min_u32 s{sT0}, s{sH0}, s{sH1}
                s_lshl_b32 s{sT1}, s{sC}, 10
                s_sub_u32 s{sT0}, s{sT0}, s{sT1}
                s_lshl_b32 s{sT1}, s{sGI}, 11
                s_add_u32 s{sT0}, s{sT0}, s{sT1}
                s_add_u32 s{sT0}, s{sT0}, {24*4096}
                """)
            E2 += pl
            E2 += self.gelu(ACC[0], 1, ad, 'hst2')
        else:
            E2 += self.corr(2, [(0, 0), (0, 1)])
            E2 += self.epi_q(pl)
        if self.f1pos == 1: E2 += f1()
        elif self.spread:
            L = []
            for u in range(2, 6):
                h = self.hloads(u); L += [h[:2]] + [[x] for x in h[2:]]
            body = E2[k0:]; E2 = Seq(E2[:k0]); n = 0
            for x in body:
                if isinstance(x, I) and x.kind in ('valu', 'trans'):
                    if n % self.spread == 0 and L: E2 += L.pop(0)
                    n += 1
                E2.append(x)
            for p in L: E2 += p
        out += Seq(x for x in E2 if not (isinstance(x, P) and x.kind == 'gap'))
        self.stamp(out)
        out += self.gemm2(ty)
        if self.stamps:
            out.waitvm0()
            self.stamp(out)
            out(f'v_mov_b32 v{T[0]}, 0')
            out(f's_lshl_b32 s{sT0}, s2, 3\ns_add_u32 s{sT0}, s{sT0}, s{sW}\ns_lshl_b32 s{sT0}, s{sT0}, 6\ns_add_u32 s{sT0}, s{sT0}, {STAMP_OFF}')
            out.waitlgkm0()
            for i in range(self.nst):
                out(f'v_mov_b32 v{T[1]}, s{sSTL[i]}')
                out(f'buffer_store_dword v{T[1]}, v{T[0]}, s[{sWS}:{sWS+3}], s{sT0} offen offset:{4*i}')
        return out

    HREG = [160, 176, 192, 208, 224, 240, 64, 128, 144]
    def hloads(self, u):
        s = Seq(); b, m = self.PB[u]
        if 'nohall' in self.dbg or ('noh2' in self.dbg and u >= 6): return Seq([I('s_nop 0')] * 5)
        s(f's_add_u32 s{sU1}, s{sHB2 if m == 2 else sHB1}, {b * 4096}')
        for i in range(4):
            s(f'buffer_load_dwordx4 {vr(self.HREG[u] + 4*i, 4)}, v{vH}, s[{sWS}:{sWS+3}], s{sU1} offen offset:{i*1024}{self.scl}')
        return s

    def touch_h(self, k):
        s = Seq()
        if not self.th: return s
        for (u, sh, n) in ([(0, 15, 8)], [(2, 15, 8), (4, 14, 8)], [(6, 14, 12)])[k]:
            r = self.HREG[u]; b, m = self.PB[u]
            s(f"""
            v_lshrrev_b32 v{r+1}, 2, v{vL}
            v_and_b32 v{r+2}, 3, v{vL}
            v_lshlrev_b32 v{r+1}, {sh}, v{r+1}
            v_lshl_add_u32 v{r+1}, v{r+2}, 10, v{r+1}
            s_and_b32 s{sU1}, s2, 0xe0
            s_lshl_b32 s{sU1}, s{sU1}, 2
            s_add_u32 s{sU1}, s{sU1}, s{sHB2 if m == 2 else sHB1}
            s_add_u32 s{sU1}, s{sU1}, {b * 4096}
            s_mov_b64 exec, {(1 << n) - 1}
            buffer_load_dword v{r}, v{r+1}, s[{sWS}:{sWS+3}], s{sU1} offen{self.scl}
            s_mov_b64 exec, -1
            """)
        return s

    def touch(self, mats):
        s = Seq()
        if not mats: return s
        s(f"""
        v_lshlrev_b32 v{vP}, 7, v{vL}
        s_lshl_b32 s{sU0}, s2, 3
        s_add_u32 s{sU0}, s{sU0}, s{sW}
        s_mov_b32 m0, {L_DUM}
        """)
        for c in mats:
            r, n = dict(q=(sWQ, 6), g=(sWG, 7), u=(sWU, 7), d=(sWD, 7), o=(sWO, 2), x=(sX, 8))[c]
            s(f's_mul_i32 s{sU1}, s{sU0}, {n * 128}\ns_mov_b64 exec, {(1 << n) - 1}')
            s(f'buffer_load_dword v{vP}, s[{r}:{r+3}], s{sU1} offen lds')
        s('s_mov_b64 exec, -1')
        return s

    def touch_w2(self):
        s = Seq()
        tb = sum((b if b < 28 else b - 28) << (8 * (w & 3)) for w, (b, m) in enumerate(self.PB[1:5]))
        tb2 = sum((b if b < 28 else b - 28) << (8 * (w & 3)) for w, (b, m) in enumerate(self.PB[5:9]))
        s(f"""
        s_cmp_lt_u32 s{sW}, 3
        s_cselect_b32 s{sU0}, 17, 16
        v_lshrrev_b32 v{vP}, 4, v{vL}
        v_lshlrev_b32 v{vP}, s{sU0}, v{vP}
        v_lshl_add_u32 v{vP}, v{vL}, 10, v{vP}
        s_mov_b32 s{sU1}, 0x{tb2:x}
        s_cmp_eq_u32 s{sC}, 0
        s_cselect_b32 s{sU0}, 0x{tb:x}, s{sU1}
        s_lshl_b32 s{sU1}, s{sR}, 3
        s_lshr_b32 s{sU0}, s{sU0}, s{sU1}
        s_and_b32 s{sU0}, s{sU0}, 0xff
        s_lshl_b32 s{sU0}, s{sU0}, 16
        s_and_b32 s{sU1}, s2, 0xe0
        s_lshl_b32 s{sU1}, s{sU1}, 2
        s_add_u32 s{sU0}, s{sU0}, s{sU1}
        s_and_b32 s{sU1}, s2, 0x18
        s_lshl_b32 s{sU1}, s{sU1}, 11
        v_xor_b32 v{vP}, s{sU1}, v{vP}
        s_cmp_lt_u32 s{sW}, 6
        s_cselect_b32 s{sU1}, s{sU0}, {OOB}
        s_cselect_b32 s{sU0}, {OOB}, s{sU0}
        s_mov_b32 m0, {L_DUM}
        s_nop 0
        buffer_load_dword v{vP}, s[{sWD}:{sWD+3}], s{sU1} offen lds
        buffer_load_dword v{vP}, s[{sWO}:{sWO+3}], s{sU0} offen lds
        """)
        return s

    def touch_w1(self, ty):
        s = Seq()
        s(f"""
        s_and_b32 s{sT0}, s2, 0x18
        s_lshl_b32 s{sT0}, s{sT0}, 1
        s_lshl_b32 s{sT1}, s{sW}, 6
        s_add_u32 s{sT0}, s{sT0}, s{sT1}
        v_and_b32 v{T[2]}, 15, v{vL}
        v_add_u32 v{T[2]}, s{sT0}, v{T[2]}
        v_mul_u32_u24 v{T[3]}, 3584, v{T[2]}
        s_mov_b32 m0, {L_DUM}
        """)
        if ty == 0:
            s(f"""
            s_lshl_b32 s{sT0}, s{sGI}, 7
            s_lshl_b32 s{sT1}, s{sGI}, 6
            s_add_u32 s{sT1}, s{sT1}, {24*128}
            v_mov_b32 v{T[4]}, s{sT0}
            v_mov_b32 v{T[5]}, s{sT1}
            v_cndmask_b32 v{T[4]}, v{T[4]}, v{T[5]}, s[{sM_b4}:{sM_b4+1}]
            v_add_u32 v{T[3]}, v{T[3]}, v{T[4]}
            s_mov_b32 exec_hi, 0
            buffer_load_dword v{T[3]}, s[{sWG}:{sWG+3}], 0 offen lds
            buffer_load_dword v{T[3]}, s[{sWU}:{sWU+3}], 0 offen lds
            s_mov_b64 exec, -1
            """)
        else:
            s(f"""
            s_lshl_b32 s{sT0}, s{sGI}, 8
            s_add_u32 s{sT0}, s{sT0}, {1024+128}
            s_lshl_b32 s{sT1}, s{sGI}, 7
            v_mul_u32_u24 v{T[4]}, 3072, v{T[2]}
            s_mov_b64 exec, 0xffff
            buffer_load_dword v{T[3]}, s[{sWG}:{sWG+3}], s{sT0} offen lds
            buffer_load_dword v{T[3]}, s[{sWU}:{sWU+3}], s{sT0} offen lds
            buffer_load_dword v{T[4]}, s[{sWQ}:{sWQ+3}], s{sT1} offen lds
            s_mov_b64 exec, -1
            """)
        return s

    def gemm2(self, ty):
        a = Seq()
        AD, AS = 96, 160
        aW = [4, 5]; XR = 8; vXO = 12; eW = [13, 14, 15]; eR = 16
        a(f"""
        v_lshrrev_b32 v{T[0]}, 5, v{vL}
        v_bfe_u32 v{T[1]}, v{vL}, 2, 2
        v_lshl_add_u32 v{T[0]}, v{T[0]}, 3, v{T[1]}
        s_lshl_b32 s{sT0}, s{sR}, 13
        s_add_u32 s{sT1}, s{sT0}, 65536
        v_lshl_add_u32 v{T[0]}, v{T[0]}, 7, s{sT1}
        v_bfe_u32 v{T[1]}, v{vL}, 3, 1
        v_bfe_u32 v{T[2]}, v{vL}, 4, 1
        v_lshl_or_b32 v{T[1]}, v{T[1]}, 1, v{T[2]}
        v_xor_b32 v{T[1]}, s{sR}, v{T[1]}
        v_lshl_add_u32 v{T[0]}, v{T[1]}, 5, v{T[0]}
        v_and_b32 v{T[1]}, 1, v{vL}
        v_lshl_add_u32 v{T[0]}, v{T[1]}, 4, v{T[0]}
        v_bfe_u32 v{T[1]}, v{vL}, 1, 1
        v_lshl_add_u32 v{aW[0]}, v{T[1]}, 3, v{T[0]}
        v_xor_b32 v{aW[1]}, 64, v{aW[0]}
        """)
        win = [1]
        def reads(n):
            u, i = divmod(n, 4); L = []
            base = self.SLOTS[14 + u] * SLOT; w = base // 65536
            hd = Seq()
            if w != win[0]:
                d = (w - win[0]) * 65536; win[0] = w
                for r in aW: hd(f'v_add_u32 v{r}, 0x{d & 0xffffffff:x}, v{r}')
            buf = WF + 8 * (n % 3)
            for c in range(2):
                for t in range(2):
                    s = Seq()
                    if not L: s += hd
                    s(f'ds_read_b64_tr_b16 {vr(buf+4*c+2*t,2)}, v{aW[c]} offset:{base - w*65536 + i*2048 + t*512}')
                    L.append(s)
            return L
        for n in (0, 1):
            for r in reads(n): a += r
        a(f"""
        s_lshl_b32 s{sT1}, s{sC}, 15
        s_add_u32 s{sT0}, s{sT0}, s{sT1}
        v_add_u32 v{eR}, s{sT0}, v{vH}
        v_xor_b32 v{eW[0]}, 0x2000, v{eR}
        v_xor_b32 v{eW[1]}, 0x4000, v{eR}
        v_xor_b32 v{eW[2]}, 0x6000, v{eR}
        v_add_u32 v{T[4]}, {3*SLOT}, v{eW[0]}
        v_add_u32 v{T[5]}, {3*SLOT}, v{eW[1]}
        v_add_u32 v{T[6]}, {3*SLOT}, v{eW[2]}
        v_add_u32 v{T[7]}, {3*SLOT}, v{eR}
        v_and_b32 v{T[0]}, 31, v{vL}
        v_lshrrev_b32 v{T[1]}, 5, v{vL}
        v_lshlrev_b32 v{T[1]}, 4, v{T[1]}
        v_lshl_add_u32 v{vXO}, v{T[0]}, 10, v{T[1]}
        """)
        def bar(s, *tags):
            for t in tags: s.waitvm(t)
            s.waitlgkm0(); s('s_barrier')
        def boundary(u):
            s = Seq(); post = []
            if u == 2:
                bar(s, 'hst2', 'st16', 'st17'); s += self.signal(sFP, 256)
                post = self.stage_dmas(ty, 18)[3:] + self.stage_dmas(ty, 19) + self.stage_dmas(ty, 20)
                x = Seq(); x(f'buffer_load_dwordx4 {vr(XR,4)}, v{vXO}, s[{sX}:{sX+3}], s{sXO} offen'); post.append(x)
            elif u == 4:
                bar(s, 'st18')
                s(f'buffer_load_dword v{vP}, off, s[{sWS}:{sWS+3}], s{sFC} offset:256 sc0 sc1')
                post = self.stage_dmas(ty, 21) + self.stage_dmas(ty, 22)
            elif u == 5:
                self.stamp(s)
                self.poll(s, vP, sFC, 256, 16)
                self.stamp(s)
                s += self.touch_h(2)
                for v in (6, 7, 8): s += self.hloads(v)
                bar(s, 'st19', 'st20')
            elif u == 7: bar(s, 'st21', 'st22')
            elif u == 8: bar(s)
            else: return None, []
            if u in (2, 7): self.stamp(s)
            return s, post
        PD, PS, XU = 192, 216, 240
        pend = []
        for n in range(36):
            u, i = divmod(n, 4)
            A = AD if u < 7 else AS
            M = [f'v_mfma_f32_32x32x16_bf16 {vr(A+16*c,16)}, {vr(WF+8*(n%3)+4*c,4)}, {vr(self.HREG[u]+4*i,4)}, {"0" if n in (0, 28) else vr(A+16*c,16)}' for c in range(2)]
            bnd = None
            if n + 2 < 36 and (n + 2) % 4 == 0: bnd, post = boundary((n + 2) // 4)
            R = reads(n + 2) if n + 2 < 36 else [Seq()] * 4
            if n == 28:
                for k in range(3):
                    for h in range(2):
                        x = Seq(); x(f'ds_write_b128 v{T[4+k]}, {vr(AD+8*(k+1)+4*h,4)} offset:{(k+1)*2048 + h*1024}'); pend.append(x)
            if bnd is not None:
                for p in pend: a += p
                a(M[0]); a += bnd; pend = list(post)
                for r in R: a += r
                if n + 2 == 32:
                    for k in range(3):
                        for h in range(2): a(f'ds_read_b128 {vr(PD+8*k+4*h,4)}, v{T[7]} offset:{(k+1)*2048 + h*1024}')
                    z = Seq()
                    for i2 in range(8): z(f'v_add_f32 v{PD+i2}, v{PD+i2}, v{AD+i2}')
                    for i2 in range(8): z(f'v_add_f32 v{PD+8+i2}, v{PD+8+i2}, v{PD+16+i2}')
                    for i2 in range(8): z(f'v_add_f32 v{PD+i2}, v{PD+i2}, v{PD+8+i2}')
                    for i2 in range(8): z(f'v_mul_f32 v{PD+8+i2}, {f2u(-LOG2E)}, v{PD+i2}')
                    for i2 in range(8): z(f'v_exp_f32 v{PD+8+i2}, v{PD+8+i2}')
                    for i2 in range(4): z(f'v_lshlrev_b32 v{XU+2*i2}, 16, v{XR+i2}\nv_and_b32 v{XU+2*i2+1}, 0xffff0000, v{XR+i2}')
                    for i2 in range(8): z(f'v_add_f32 v{PD+8+i2}, 1.0, v{PD+8+i2}')
                    for i2 in range(8): z(f'v_rcp_f32 v{PD+8+i2}, v{PD+8+i2}')
                    for i2 in range(8): z(f'v_mul_f32 v{PD+i2}, v{PD+i2}, v{PD+8+i2}')
                    pend = [Seq()] + [Seq(z[k:k+8]) for k in range(0, len(z), 8)]
                a(M[1])
            else:
                npop = 2 if n >= 28 and n < 30 else 1
                a(M[0]); a += R[0]; a += R[1]
                for _ in range(npop):
                    if pend: a += pend.pop(0)
                a(M[1]); a += R[2]; a += R[3]
                for _ in range(npop):
                    if pend: a += pend.pop(0)
        for p in pend: a += p
        self.stamp(a)
        for k in range(3):
            for h in range(2): a(f'ds_write_b128 v{eW[k]}, {vr(AS+8*(k+1)+4*h,4)} offset:{(k+1)*2048 + h*1024}')
        bar(a)
        for k in range(3):
            for h in range(2): a(f'ds_read_b128 {vr(PS+8*k+4*h,4)}, v{eR} offset:{(k+1)*2048 + h*1024}')
        for i in range(8): a(f'v_add_f32 v{AS+i}, v{AS+i}, v{PS+i}')
        for i in range(8): a(f'v_add_f32 v{AS+i}, v{AS+i}, v{PS+8+i}')
        for i in range(8): a(f'v_add_f32 v{AS+i}, v{AS+i}, v{PS+16+i}')
        for i in range(8): a(f'v_fmac_f32 v{XU+i}, v{AS+i}, v{PD+i}')
        for i in range(4): a(f'v_cvt_pk_bf16_f32 v{XU+i}, v{XU+2*i}, v{XU+2*i+1}')
        self.stamp(a)
        a(f'buffer_store_dwordx4 {vr(XU,4)}, v{vXO}, s[{sOUT}:{sOUT+3}], s{sXO} offen{self.osc}')
        return a

    def phase_end(self, m, ph):
        m.comment('phase end')
        m(f'''
        v_and_b32 v{T[0]}, 15, v{vL}
        v_lshrrev_b32 v{T[1]}, 5, v{vL}
        v_lshl_add_u32 v{T[0]}, v{T[0]}, 2, s{sCSW}
        v_lshl_add_u32 v{T[0]}, v{T[1]}, 8, v{T[0]}
        v_cvt_pk_bf16_f32 v{T[1]}, v{CS}, v{CS}
        v_lshlrev_b32 v{T[1]}, 16, v{T[1]}
        v_sub_f32 v{T[1]}, v{CS}, v{T[1]}
        v_cvt_pk_bf16_f32 v{T[1]}, v{CS}, v{T[1]}
        ''')
        m(f'ds_write_b32 v{T[0]}, v{T[1]} offset:{ph*1024}', 'xch')
        if ph == 0:
            m(f'''
            v_and_b32 v{T[2]}, 15, v{vL}
            s_lshl_b32 s{sT0}, s{sR}, 8
            s_lshl_b32 s{sT1}, s{sC}, 7
            s_add_u32 s{sT0}, s{sT0}, s{sT1}
            s_add_u32 s{sT0}, s{sT0}, {L_ST}
            v_lshl_add_u32 v{T[2]}, v{T[2]}, 3, s{sT0}
            s_mov_b32 vcc_lo, 0x00f0000f
            s_mov_b32 vcc_hi, 0xf0000f00
            v_mov_b32 v{T[3]}, {L_DUM}
            v_cndmask_b32 v{T[3]}, v{T[3]}, v{T[2]}, vcc
            v_cndmask_b32 v{SUM+1}, v{GRAM}, v{GRAM+1}, s[{sM_l1}:{sM_l1+1}]
            v_cndmask_b32 v{SUM+1}, v{SUM+1}, v{GRAM+2}, s[{sM_l2}:{sM_l2+1}]
            v_cndmask_b32 v{SUM+1}, v{SUM+1}, v{GRAM+3}, s[{sM_l3}:{sM_l3+1}]
            ''')
            m(f'ds_write_b64 v{T[3]}, v[{SUM}:{SUM+1}]', 'xch')

    def epi_head(self, ph):
        s = Seq()
        s.gap(2)
        s.waitlg('xch')
        s('s_barrier')
        return s

    def ln_consts(self, ty):
        s = Seq()
        s(f'''
        v_xor_b32 v{T[3]}, 128, v{T[2]}
        ds_read_b64 v[{T[4]}:{T[5]}], v{T[2]}
        ds_read_b64 v[{T[6]}:{T[7]}], v{T[3]}
        ''')
        s.gap(3)
        for rs in range(2):
            S, Q = T[4 + 2 * rs], T[5 + 2 * rs]; c0, c1, ve = LNC[rs], LNC[rs] + 1, LNC[rs] + 2
            r = T[rs]
            s(f'''
            v_mul_f32 v{S}, {f2u(-1.0/512)}, v{S}
            v_mul_f32 v{Q}, {f2u(1.0/512)}, v{Q}
            v_fma_f32 v{Q}, -v{S}, v{S}, v{Q}
            v_max_f32 v{Q}, 0, v{Q}
            v_add_f32 v{ve}, {f2u(1e-5)}, v{Q}
            v_rsq_f32 v{r}, v{ve}
            v_cvt_pk_bf16_f32 v{Q}, v{S}, v{S}
            v_lshlrev_b32 v{T[2]}, 16, v{Q}
            v_sub_f32 v{T[2]}, v{S}, v{T[2]}
            v_cvt_pk_bf16_f32 v{T[2]}, v{T[2]}, v{T[2]}
            v_cndmask_b32 v{BX[rs]}, v{Q}, v{T[2]}, s[{sM_hi32}:{sM_hi32+1}]
            v_mov_b32 v{BX[rs]+1}, 0
            v_mul_f32 v{c0}, {f2u(C0)}, v{r}
            v_mul_f32 v{c1}, v{r}, v{r}
            v_mul_f32 v{c1}, v{c1}, v{c0}
            v_mul_f32 v{c1}, {f2u(0.044715)}, v{c1}
            ''')
        return s

    def corr(self, ph, tiles):
        s = Seq(); A = ACC[ph & 1]
        s(f'''
        v_and_b32 v{T[1]}, 31, v{vL}
        v_lshl_add_u32 v{T[1]}, v{T[1]}, 2, s{sCSR}
        v_xor_b32 v{T[3]}, 128, v{T[1]}
        ''')
        for k, (blk, sig) in enumerate(tiles):
            s(f'ds_read_b32 v{T[2*k]}, v{T[3] if sig else T[1]} offset:{ph*1024 + blk*256}')
        for k in range(len(tiles)): s(f'v_mov_b32 v{T[2*k+1]}, 0')
        s.gap(3)
        for k, (blk, sig) in enumerate(tiles):
            for rs in range(2):
                d = A + blk * 16 + sig * 8 + rs * 4
                s(f'v_mfma_f32_16x16x16_bf16 {vr(d,4)}, {vr(T[2*k],2)}, {vr(BX[rs],2)}, {vr(d,4)}')
        s.gap(2)
        return s

    def gelu(self, A, nsig, addr, tag):
        s = Seq()
        for sig in range(nsig):
            for rs in range(2):
                a = A + sig * 8 + rs * 4; b = a + 16; c0, c1, ve = LNC[rs], LNC[rs] + 1, LNC[rs] + 2
                for i in range(4): s(f'v_mul_f32 v{T[i]}, v{a+i}, v{a+i}')
                for i in range(4): s(f'v_fma_f32 v{T[i]}, v{T[i]}, v{c1}, v{c0}')
                for i in range(4):
                    s(f'v_mul_f32 v{b+i}, v{a+i}, v{b+i}')
                    s(f'v_mul_f32 v{a+i}, v{T[i]}, v{a+i}')
                for i in range(4): s(f'v_exp_f32 v{a+i}, v{a+i}')
                for i in range(4): s(f'v_fma_f32 v{a+i}, v{a+i}, v{ve}, v{ve}')
                for i in range(4): s(f'v_rcp_f32 v{a+i}, v{a+i}')
                for i in range(4): s(f'v_mul_f32 v{b+i}, v{b+i}, v{a+i}')
                d = A + sig * 8 + rs * 2
                s(f'v_cvt_pk_bf16_f32 v{d}, v{b}, v{b+1}\nv_cvt_pk_bf16_f32 v{d+1}, v{b+2}, v{b+3}')
            d = A + sig * 8
            addr(s, sig)
            s(f'v_permlane16_swap_b32 v{d}, v{d+2}\nv_permlane16_swap_b32 v{d+1}, v{d+3}')
            s(f'buffer_store_dwordx4 {vr(d,4)}, v{vHS}, s[{sWS}:{sWS+3}], s{sT0} offen{self.sc}', tag)
        return s

    def qk_logits(self, s, K, L):
        for sig in range(2):
            k = K + 8 * sig
            for i in range(4): s(f'v_cvt_pk_bf16_f32 v{k+i}, v{k+2*i}, v{k+2*i+1}')
        s(f'''
        v_lshrrev_b32 v{T[0]}, 5, v{vL}
        v_bfe_u32 v{T[1]}, v{vL}, 2, 2
        v_lshl_add_u32 v{T[0]}, v{T[0]}, 3, v{T[1]}
        v_lshlrev_b32 v{T[0]}, 5, v{T[0]}
        v_bfe_u32 v{T[1]}, v{vL}, 4, 1
        v_lshl_add_u32 v{T[0]}, v{T[1]}, 4, v{T[0]}
        v_bfe_u32 v{T[1]}, v{vL}, 1, 1
        v_lshl_add_u32 v{T[0]}, v{T[1]}, 3, v{T[0]}
        v_xor_b32 v{T[1]}, s{sR}, v{vL}
        v_and_b32 v{T[1]}, 1, v{T[1]}
        v_lshl_add_u32 v{T[0]}, v{T[1]}, 9, v{T[0]}
        s_lshl_b32 s{sT0}, s{sC}, 10
        s_add_u32 s{sT0}, s{sT0}, {L_PH}
        v_add_u32 v{T[0]}, s{sT0}, v{T[0]}
        ds_read_b64_tr_b16 v[{T[4]}:{T[5]}], v{T[0]}
        ds_read_b64_tr_b16 v[{T[6]}:{T[7]}], v{T[0]} offset:128
        ''')
        for sig in range(2):
            k = K + 8 * sig
            s(f'v_permlane16_swap_b32 v{k}, v{k+2}\nv_permlane16_swap_b32 v{k+1}, v{k+3}')
        s.gap(2)
        for sig, m in ((0, sM_s0), (1, sM_s1)):
            for i in range(4): s(f'v_cndmask_b32 v{K+8*sig+4+i}, 0, v{T[4+i]}, s[{m}:{m+1}]')
        s(f'v_mfma_f32_32x32x16_bf16 {vr(L,16)}, {vr(K+4,4)}, {vr(K,4)}, 0')
        s(f'v_mfma_f32_32x32x16_bf16 {vr(L,16)}, {vr(K+12,4)}, {vr(K+8,4)}, {vr(L,16)}')
        s.gap(3)

    def exps(self, s, L, E):
        mx, mn = T[0], T[1]
        s(f'''
        v_cndmask_b32 v{vR32}, v{LNC[0]}, v{LNC[1]}, s[{sM_b4}:{sM_b4+1}]
        v_mul_f32 v{vSC}, {f2u(LOG2E / C0)}, v{vR32}
        v_mul_f32 v{vR32}, {f2u(1.0 / C0)}, v{vR32}
        ''')
        s(f'v_max3_f32 v{mx}, v{L}, v{L+1}, v{L+2}\nv_min3_f32 v{mn}, v{L}, v{L+1}, v{L+2}')
        for i in range(3, 15, 2):
            s(f'v_max3_f32 v{mx}, v{mx}, v{L+i}, v{L+i+1}\nv_min3_f32 v{mn}, v{mn}, v{L+i}, v{L+i+1}')
        s(f'v_max_f32 v{mx}, v{mx}, v{L+15}\nv_min_f32 v{mn}, v{mn}, v{L+15}')
        s(f'v_mul_f32 v{mx}, v{mx}, v{vSC}\nv_mul_f32 v{mn}, v{mn}, v{vSC}')
        for i in range(0, 16, 2):
            for u in (i, i + 1):
                s(f'v_fma_f32 v{E+u}, v{L+u}, v{vSC}, -v{mx}')
                s(f'v_fma_f32 v{L+u}, -v{L+u}, v{vSC}, v{mn}')
            for u in (i, i + 1):
                s(f'v_exp_f32 v{E+u}, v{E+u}\nv_exp_f32 v{L+u}, v{L+u}')

    def epi_kv(self):
        s = Seq(); K = ACC[0]; V = K + 16
        s(f'''
        v_and_b32 v{T[0]}, 15, v{vL}
        v_lshrrev_b32 v{T[1]}, 4, v{vL}
        v_lshlrev_b32 v{T[1]}, 3, v{T[1]}
        s_movk_i32 s{sT0}, {RECP}
        v_mad_u32_u24 v{T[0]}, v{T[0]}, s{sT0}, v{T[1]}
        s_mul_i32 s{sT0}, s{sR}, {32*RECP}
        s_mul_i32 s{sT1}, s{sC}, {2*RECH}
        s_add_u32 s{sT0}, s{sT0}, s{sT1}
        s_add_u32 s{sPC}, s{sT0}, {REC}
        s_and_b32 s{sT1}, s{sR}, 1
        s_mul_i32 s{sT1}, s{sT1}, {RECH}
        s_add_u32 s{sT2}, s{sPC}, s{sT1}
        s_sub_u32 s{sT3}, s{sPC}, s{sT1}
        s_add_u32 s{sT3}, s{sT3}, {RECH}
        v_add_u32 v{T[1]}, s{sT3}, v{T[0]}
        v_add_u32 v{T[0]}, s{sT2}, v{T[0]}
        ''')
        for sig in range(2):
            for rs in range(2):
                v = V + sig * 8 + rs * 4
                s(f'v_cvt_pk_bf16_f32 v{v}, v{v}, v{v+1}\nv_cvt_pk_bf16_f32 v{v+1}, v{v+2}, v{v+3}')
                s(f'ds_write_b64 v{T[sig]}, {vr(v,2)} offset:{64 + rs*16*RECP}')
        self.qk_logits(s, K, V)
        self.exps(s, V, K)
        sp, sm = T[2], T[3]
        s(f'v_add_f32 v{sp}, v{K}, v{K+1}\nv_add_f32 v{sm}, v{V}, v{V+1}')
        for i in range(2, 16): s(f'v_add_f32 v{sp}, v{sp}, v{K+i}\nv_add_f32 v{sm}, v{sm}, v{V+i}')
        s(f'''
        v_rcp_f32 v{sp}, v{sp}
        v_rcp_f32 v{sm}, v{sm}
        v_cndmask_b32 v{T[4]}, v{LNC[0]+2}, v{LNC[1]+2}, s[{sM_b4}:{sM_b4+1}]
        v_mul_f32 v{sp}, v{sp}, v{vR32}
        v_mul_f32 v{sm}, v{sm}, v{vR32}
        v_mul_f32 v{T[4]}, v{T[4]}, v{vR32}
        v_cvt_pk_bf16_f32 v{T[4]}, v{T[4]}, v{T[4]}
        v_and_b32 v{T[0]}, 31, v{vL}
        v_lshrrev_b32 v{T[1]}, 5, v{vL}
        v_xor_b32 v{T[1]}, s{sR}, v{T[1]}
        v_and_b32 v{T[1]}, 1, v{T[1]}
        v_mul_u32_u24 v{T[1]}, {RECH}, v{T[1]}
        s_movk_i32 s{sT0}, {RECP}
        v_mad_u32_u24 v{T[0]}, v{T[0]}, s{sT0}, v{T[1]}
        v_add_u32 v{T[0]}, s{sPC}, v{T[0]}
        ds_write_b32 v{T[0]}, v{T[4]} offset:96
        ''')
        for (E, sc, off) in ((K, sp, 0), (V, sm, 32)):
            for h in range(2):
                for i in range(8 * h, 8 * h + 8): s(f'v_mul_f32 v{E+i}, v{E+i}, v{sc}')
                for i in range(4 * h, 4 * h + 4): s(f'v_cvt_pk_bf16_f32 v{E+i}, v{E+2*i}, v{E+2*i+1}')
                s(f'ds_write_b128 v{T[0]}, {vr(E+4*h,4)} offset:{off+16*h}', 'rec')
        s(f"""
        v_lshrrev_b32 v{T[0]}, 5, v{vL}
        v_bfe_u32 v{T[1]}, v{vL}, 2, 2
        v_lshl_add_u32 v{T[0]}, v{T[0]}, 3, v{T[1]}
        s_mul_i32 s{sT1}, s{sR}, {RECH}
        s_add_u32 s{sT1}, s{sT1}, {REC}
        v_mul_u32_u24 v{T[0]}, {RECP}, v{T[0]}
        v_add_u32 v{T[0]}, s{sT1}, v{T[0]}
        v_and_b32 v{T[2]}, 3, v{vL}
        v_lshl_add_u32 v{T[1]}, v{T[2]}, 3, v{T[0]}
        s_lshl_b32 s{sT2}, s{sC}, 1
        v_xor_b32 v{T[2]}, s{sT2}, v{T[2]}
        v_cndmask_b32 v{T[2]}, v{T[2]}, 4, s[{sM_b4}:{sM_b4+1}]
        v_lshl_add_u32 v{T[0]}, v{T[2]}, 3, v{T[0]}
        v_bfe_u32 v{T[2]}, v{vL}, 4, 1
        v_lshl_add_u32 v{T[1]}, v{T[2]}, 5, v{T[1]}
        """)
        s.gap(2)
        s.waitlg('rec')
        s('s_barrier')
        def rd(k):
            for t in range(2):
                o = (16 * k + 4 * t) * RECP
                s(f'ds_read_b64_tr_b16 {vr(K+8*(k&1)+2*t,2)}, v{T[0]} offset:{o+64}')
                s(f'ds_read_b64_tr_b16 {vr(K+8*(k&1)+4+2*t,2)}, v{T[1]} offset:{o}')
        rd(0); rd(1)
        s(f"""
        v_and_b32 v{T[3]}, 31, v{vL}
        v_lshlrev_b32 v{T[3]}, 2, v{T[3]}
        v_mov_b32 v{T[2]}, {OOB}
        v_cndmask_b32 v{T[4]}, v{T[3]}, v{T[2]}, s[{sM_hi32}:{sM_hi32+1}]
        v_lshrrev_b32 v{T[2]}, 5, v{vL}
        v_lshl_add_u32 v{T[3]}, v{T[2]}, 9, v{T[3]}
        s_mul_i32 s{sT0}, s{sR}, {KV_HEAD}
        s_add_u32 s{sT0}, s{sT0}, s{sKV}
        s_lshl_b32 s{sT1}, s{sC}, 10
        s_add_u32 s{sPC}, s{sT0}, s{sT1}
        s_cmp_eq_u32 s{sC}, 0
        s_cselect_b32 s{sT3}, s{sT0}, {OOB}
        """)
        s.gap(2)
        for k in range(8):
            c = '0' if k == 0 else vr(V, 16)
            s(f'v_mfma_f32_32x32x16_bf16 {vr(V,16)}, {vr(K+8*(k&1),4)}, {vr(K+8*(k&1)+4,4)}, {c}')
            if k + 2 < 8: rd(k + 2); s.gap(1)
        s.gap(2)
        for i in range(4):
            s(f'buffer_atomic_add_f32 v{V+i}, v{T[3]}, s[{sWS}:{sWS+3}], s{sPC} offen offset:{i*128} sc1', 'kvat')
        s(f'buffer_atomic_add_f32 v{V+8}, v{T[4]}, s[{sWS}:{sWS+3}], s{sT3} offen offset:{16*128} sc1', 'kvat')
        return s

    def poll(self, s, vd, soff, imm, want):
        l1, l2 = self.lab('poll'), self.lab('ok')
        if 'nopoll' in self.dbg: want = 0
        b = Seq()
        b(f'v_readfirstlane_b32 s{sT1}, v{vd}')
        b(f's_cmp_ge_u32 s{sT1}, {want}\ns_cbranch_scc1 {l2}')
        b.append(P('skip_begin'))
        b(f's_mov_b32 s{sT2}, 0\n{l1}:')
        b(f's_sleep 1')
        b(f'buffer_load_dword v{vd}, off, s[{sWS}:{sWS+3}], s{soff} offset:{imm} sc0 sc1')
        b(f's_waitcnt vmcnt(0)')
        b(f'v_readfirstlane_b32 s{sT1}, v{vd}')
        b(f's_add_u32 s{sT2}, s{sT2}, 1\ns_cmp_ge_u32 s{sT2}, 0x20000\ns_cbranch_scc1 {l2}')
        b(f's_cmp_lt_u32 s{sT1}, {want}\ns_cbranch_scc1 {l1}\n{l2}:')
        b.append(P('skip_end'))
        for x in b: x.cost = 0
        s += b

    def zpoll(self, s):
        l1, l2 = self.lab('poll'), self.lab('ok')
        s(f'v_cmp_eq_u32 vcc, 1, v{vP}')
        s(f's_nop 3\ns_cmp_eq_u32 vcc_lo, 0xff\ns_cbranch_scc1 {l2}')
        s.append(P('skip_begin'))
        s(f's_mov_b32 s{sT2}, 0\n{l1}:')
        s(f's_sleep 1')
        s(f'buffer_load_dword v{vP}, v{T[7]}, s[{sDB}:{sDB+3}], 0 offen sc0 sc1')
        s(f's_waitcnt vmcnt(0)')
        s(f'v_cmp_eq_u32 vcc, 1, v{vP}')
        s(f's_add_u32 s{sT2}, s{sT2}, 1\ns_cmp_ge_u32 s{sT2}, 0x20000\ns_cbranch_scc1 {l2}')
        s(f's_nop 1\ns_cmp_lg_u32 vcc_lo, 0xff\ns_cbranch_scc1 {l1}\n{l2}:')
        s.append(P('skip_end'))

    def signal(self, soff, imm):
        s = Seq()
        s(f"""
        v_lshlrev_b32 v{T[0]}, 24, v{vL}
        v_mov_b32 v{T[1]}, 1
        buffer_atomic_add v{T[1]}, v{T[0]}, s[{sWS}:{sWS+3}], s{soff} offen offset:{imm} sc1
        """)
        return s

    KVF = 128
    def kv_fetch(self):
        s = Seq(); F = self.KVF
        a0, a1 = T[6], T[7]
        s(f'''
        v_and_b32 v{T[4]}, 3, v{vL}
        v_bfe_u32 v{T[5]}, v{vL}, 2, 1
        v_lshl_add_u32 v{T[4]}, v{T[5]}, 3, v{T[4]}
        v_bfe_u32 v{T[5]}, v{vL}, 3, 1
        v_lshl_add_u32 v{T[4]}, v{T[5]}, 2, v{T[4]}
        v_cndmask_b32 v{T[4]}, v{T[4]}, 16, s[{sM_b4}:{sM_b4+1}]
        v_lshlrev_b32 v{T[4]}, 7, v{T[4]}
        s_lshl_b32 s{sT0}, s{sC}, 1
        s_and_b32 s{sT1}, s{sR}, 1
        s_or_b32 s{sT0}, s{sT0}, s{sT1}
        s_mul_i32 s{sT1}, s{sT0}, {KV_HEAD}
        s_xor_b32 s{sT0}, s{sT0}, 1
        s_mul_i32 s{sT0}, s{sT0}, {KV_HEAD}
        v_add_u32 v{a0}, s{sT1}, v{T[4]}
        v_add_u32 v{a1}, s{sT0}, v{T[4]}
        s_mov_b32 vcc_lo, 0xaaaa0000
        s_mov_b32 vcc_hi, 0xaaaa0000
        v_mov_b32 v{T[4]}, {KV_ONES}
        v_cndmask_b32 v{a0}, v{a0}, v{T[4]}, vcc
        v_cndmask_b32 v{a1}, v{a1}, v{T[4]}, vcc
        v_and_b32 v{T[4]}, 32, v{vL}
        v_add_u32 v{a0}, v{a0}, v{T[4]}
        v_add_u32 v{a1}, v{a1}, v{T[4]}
        ''')
        self.poll(s, vP2, sU0, 0, 16)
        for sig in range(2):
            for sg in range(2):
                for h in range(2):
                    r = F + sig * 16 + sg * 8 + h * 4
                    s(f'buffer_load_dwordx4 {vr(r,4)}, v{a1 if sig else a0}, s[{sWS}:{sWS+3}], s{sKV} offen offset:{sg*64+h*16} sc0 sc1')
        return s

    def epi_q(self, mid):
        s = Seq(); Q = ACC[0]; L = Q + 16; F = self.KVF; C = [(64, 80), (40, 144)]
        self.qk_logits(s, Q, L)
        self.exps(s, L, Q)
        s += mid
        for E in (Q, L):
            for i in range(8): s(f'v_cvt_pk_bf16_f32 v{E+i}, v{E+2*i}, v{E+2*i+1}')
            for i in range(4): s(f'v_permlane32_swap_b32 v{E+i}, v{E+4+i}')
        for k in range(4):
            for i in range(4): s(f'v_cvt_pk_bf16_f32 v{F+4*k+i}, v{F+8*k+2*i}, v{F+8*k+2*i+1}')
        for sig in range(2):
            for sg, E in enumerate((Q, L)):
                s(f'v_mfma_f32_32x32x16_bf16 {vr(C[sig][sg],16)}, {vr(F+8*sig+4*sg,4)}, {vr(E+4*sig,4)}, 0')
        for sig in range(2):
            p, m = C[sig]
            s(f"""
            v_rcp_f32 v{p+9}, v{p+9}
            v_rcp_f32 v{m+9}, v{m+9}
            v_fmaak_f32 v{p+8}, v{p+8}, v{p+9}, {f2u(1e-6)}
            v_fmac_f32 v{p+8}, v{m+8}, v{m+9}
            v_rcp_f32 v{p+8}, v{p+8}
            v_mul_f32 v{p+9}, v{p+9}, v{p+8}
            v_mul_f32 v{m+9}, v{m+9}, v{p+8}
            """)
            for i in range(8): s(f'v_mul_f32 v{p+i}, v{p+i}, v{p+9}')
            for i in range(8): s(f'v_fmac_f32 v{p+i}, v{m+i}, v{m+9}')
            for i in range(4): s(f'v_cvt_pk_bf16_f32 v{p+i}, v{p+2*i}, v{p+2*i+1}')
            s(f's_lshl_b32 s{sT0}, s{sGI}, 12\ns_add_u32 s{sT0}, s{sT0}, {112*1024}\ns_add_u32 s{sT0}, s{sT0}, s{sH1 if sig else sH0}')
            s(f'buffer_store_dwordx4 {vr(p,4)}, v{vHS}, s[{sWS}:{sWS+3}], s{sT0} offen{self.sc}', 'hst2')
        return s

    def text(self):
        stats = {}
        pro = self.prologue()
        pro(f's_cmp_eq_u32 s{sTY}, 1')
        pro.waitlgkm0()
        pro('s_cbranch_scc1 K1_TYPEB')
        l0, st = finalize(pro, None, stats)
        n0 = self.nst
        A = self.body(0); A('s_endpgm')
        self.nst = n0
        B = self.body(1)
        la, _ = finalize(A, st, stats); lb, _ = finalize(B, st, stats)
        self.stats = stats
        return '\n'.join(l0 + la + ['K1_TYPEB:'] + lb) + '\n'


HEADER = open('cdna_kernels/' + KNAME + '.s.ref').read().split('; Override')[0].rstrip('\n') if __import__('os').path.exists('cdna_kernels/' + KNAME + '.s.ref') else ''

def fused(path, **kw):
    k = KF(**kw)
    txt = kernel_text([dict(name=KNAME + '_kernel', body=k.text(), grid=256, block=512, lds=LDS_BYTES, vgpr=256, accum=256)], HEADER)
    open(path, 'w').write(txt)
    return k

if __name__ == '__main__':
    k = fused(sys.argv[1], **(eval(sys.argv[2]) if len(sys.argv) > 2 else {}))
    print(k.stats)
```

```python
import re

def _regs(tok):
    tok = tok.strip()
    tok = tok.lstrip('-').strip('|')
    m = re.fullmatch(r'([vsa])(\d+)', tok)
    if m: return [(m.group(1), int(m.group(2)))]
    m = re.fullmatch(r'([vsa])\[(\d+):(\d+)\]', tok)
    if m: return [(m.group(1), i) for i in range(int(m.group(2)), int(m.group(3)) + 1)]
    if tok == 'vcc': return [('s', 'vcc')]
    if tok in ('vcc_lo', 'vcc_hi'): return [('s', 'vcc')]
    if tok == 'm0': return [('s', 'm0')]
    if tok in ('exec', 'exec_lo', 'exec_hi'): return [('s', 'exec')]
    return []

TRANS = ('v_exp_f32', 'v_log_f32', 'v_rcp_f32', 'v_rsq_f32', 'v_sqrt_f32', 'v_sin_f32', 'v_cos_f32')

class I:
    __slots__ = ('text', 'op', 'kind', 'defs', 'uses', 'srcc', 'passes', 'tag', 'arg', 'wide', 'data', 'cost')
    def __init__(self, text, tag=None):
        self.text = text; self.tag = tag; self.arg = None
        self.srcc = []; self.passes = 0; self.wide = False; self.data = []
        t = text.split(';')[0].strip()
        if t.endswith(':'):
            self.op = 'label'; self.kind = 'label'; self.defs = []; self.uses = []; self.cost = 0; return
        parts = t.split(None, 1)
        op = parts[0]; self.op = op
        rest = parts[1] if len(parts) > 1 else ''
        ops = [o.strip() for o in rest.split(',')] if rest else []
        mods = ''
        if ops:
            l = ops[-1].split(None, 1)
            ops[-1] = l[0]
            mods = l[1] if len(l) > 1 else ''
        R = [_regs(o) for o in ops]
        flat = lambda L: [r for x in L for r in x]
        base = re.sub(r'_(e32|e64|sdwa|dpp)$', '', op)
        self.cost = 1
        if op.startswith('v_mfma'):
            self.kind = 'mfma'; self.defs = R[0]; self.uses = flat(R[1:3]); self.srcc = R[3]
            self.passes = 8 if '32x32' in op else 4
            self.cost = 2
        elif op.startswith('v_cmp'):
            self.kind = 'valu'; self.defs = R[0]; self.uses = flat(R[1:])
        elif base in ('v_permlane16_swap_b32', 'v_permlane32_swap_b32', 'v_swap_b32'):
            self.kind = 'perm' if 'perm' in base else 'valu'; self.defs = flat(R); self.uses = flat(R)
        elif base in ('v_readfirstlane_b32', 'v_readlane_b32'):
            self.kind = 'rfl'; self.defs = R[0]; self.uses = flat(R[1:])
        elif op.startswith('v_'):
            self.kind = 'trans' if base in TRANS else 'valu'
            if self.kind == 'trans': self.cost = 2
            self.defs = R[0]; self.uses = flat(R[1:])
            if base in ('v_fmac_f32', 'v_mac_f32', 'v_dot2c_f32_bf16') or 'UNUSED_PRESERVE' in mods: self.uses = self.uses + R[0]
            if base == 'v_cndmask_b32' and len(ops) == 3: self.uses = self.uses + [('s', 'vcc')]
            if '_co_' in base: self.defs = R[0] + R[1]; self.uses = flat(R[2:])
            if 'dpp' in op or 'row_' in mods or 'quad_perm' in mods: self.kind = 'dpp'; self.uses = self.uses + R[0]
        elif op.startswith('ds_read') or op.startswith('ds_bpermute') or op.startswith('ds_swizzle'):
            self.kind = 'dsr'; self.defs = R[0]; self.uses = flat(R[1:])
        elif op.startswith('ds_'):
            self.kind = 'dsw'; self.defs = []; self.uses = flat(R)
        elif op.startswith('buffer_load') or op.startswith('global_load'):
            if re.search(r'\blds\b', mods):
                self.kind = 'dma'; self.defs = []; self.uses = flat(R) + [('s', 'm0')]
            else:
                self.kind = 'vld'; self.defs = R[0]; self.uses = flat(R[1:])
        elif op.startswith('buffer_store') or op.startswith('global_store'):
            self.kind = 'vst'; self.defs = []; self.uses = flat(R)
            self.data = R[0] if op.startswith('buffer') else R[1]
            self.wide = len(self.data) >= 3
        elif op.startswith('buffer_atomic'):
            if re.search(r'\bsc0\b', mods):
                self.kind = 'vld'; self.defs = R[0]; self.uses = flat(R)
            else:
                self.kind = 'vst'; self.defs = []; self.uses = flat(R)
        elif op in ('buffer_wbl2', 'buffer_inv'):
            self.kind = 'vst'; self.defs = []; self.uses = []
        elif op.startswith('s_load') or op in ('s_memtime', 's_memrealtime') or op.startswith('s_buffer_load'):
            self.kind = 'smem'; self.defs = R[0]; self.uses = flat(R[1:]); self.cost = 0
        elif op == 's_waitcnt':
            self.kind = 'wait'; self.defs = []; self.uses = []; self.cost = 0
        elif op == 's_nop':
            self.kind = 'nop'; self.defs = []; self.uses = []; self.arg = int(ops[0], 0); self.cost = 0
        elif op == 's_barrier':
            self.kind = 'bar'; self.defs = []; self.uses = []; self.cost = 0
        elif op.startswith('s_cbranch') or op == 's_branch' or op == 's_endpgm':
            self.kind = 'br'; self.defs = []; self.uses = []; self.cost = 0
        elif op.startswith('s_cmp') or op.startswith('s_bitcmp'):
            self.kind = 'salu'; self.defs = []; self.uses = flat(R); self.cost = 0
        elif op in ('s_setprio', 's_sleep'):
            self.kind = 'salu'; self.defs = []; self.uses = []; self.cost = 0
        elif op.startswith('s_'):
            self.kind = 'salu'; self.defs = R[0]; self.uses = flat(R[1:]); self.cost = 0
            if 'saveexec' in op: self.defs = self.defs + [('s', 'exec')]
        else:
            raise ValueError('unknown op: ' + text)

class P:
    def __init__(self, kind, arg=None):
        self.kind = kind; self.arg = arg; self.cost = 0; self.text = f'; {kind} {arg}'

class Seq(list):
    def __call__(self, s, tag=None):
        for l in s.split('\n'):
            l = l.strip()
            if l and not l.startswith(';'):
                self.append(I(l, tag))
        return self
    def waitvm(self, tag): self.append(P('waitvm', tag))
    def waitvm0(self): self.append(P('waitvm0'))
    def waitlgkm0(self): self.append(P('waitlgkm0'))
    def waitlg(self, tag): self.append(P('waitlg', tag))
    def need(self, base, n): self.append(P('need', set(('v', base + i) for i in range(n))))
    def gap(self, n): self.append(P('gap', n))
    def comment(self, s): self.append(P('comment', s))
    def atom(self, txt, tag=None):
        self.append(P('atom_begin')); self(txt, tag); self.append(P('atom_end'))

class State:
    def __init__(self):
        self.vm = []
        self.lg = []
        self.hist = []
    def copy(self):
        s = State(); s.vm = list(self.vm); s.lg = list(self.lg); s.hist = list(self.hist); return s

def _need(prod, cons):
    n = 0
    pd = set(prod.defs); cu = set(cons.uses); cd = set(cons.defs); cc = set(cons.srcc)
    pk, ck = prod.kind, cons.kind
    isvalu = lambda k: k in ('valu', 'trans', 'perm', 'rfl', 'dpp')
    if pk == 'mfma':
        big = 12 if prod.passes == 8 else 8
        if ck == 'mfma':
            if pd & cu: n = max(n, big)
            if pd & cc:
                if not (prod.defs == cons.srcc and prod.passes == cons.passes): n = max(n, big - 2)
            elif pd & cd: n = max(n, big)
        elif isvalu(ck) or ck in ('dsr', 'dsw', 'vld', 'vst', 'dma'):
            if pd & (cu | cd): n = max(n, big)
        if isvalu(ck) and set(prod.srcc) & cd: n = max(n, 7 if prod.passes == 8 else 3)
        if ck in ('dsr', 'vld') and set(prod.srcc) & cd: n = max(n, 7 if prod.passes == 8 else 3)
    if isvalu(pk):
        vd = {r for r in pd if r[0] != 's'}; sd = {r for r in pd if r[0] == 's'}
        if ck == 'mfma' and vd & (cu | cc): n = max(n, 2)
        if ck in ('perm', 'dpp') and vd & cu: n = max(n, 2)
        if ck == 'rfl' and vd & cu: n = max(n, 1)
        if pk == 'trans' and isvalu(ck) and ck != 'trans' and vd & cu: n = max(n, 1)
        if pk == 'trans' and ck in ('dsw', 'vst') and vd & cu: n = max(n, 1)
        if isvalu(ck) and sd & cu: n = max(n, 4 if ck == 'rfl' else 2)
        if ck in ('vld', 'vst', 'dma') and sd & cu: n = max(n, 5)
        if 'sdwa' in prod.op and isvalu(ck) and vd & (cu | cd): n = max(n, 1)
    if pk == 'salu' and ('s', 'm0') in pd and ck == 'dma': n = max(n, 1)
    if pk == 'salu' and ('s', 'exec') in pd and ck in ('dpp',): n = max(n, 1)
    if pk == 'vst' and prod.wide and set(prod.data) & cd: n = max(n, 2)
    if pk == 'dsw' and len(prod.uses) >= 4 and set(prod.uses) & cd and isvalu(ck): n = max(n, 2)
    return n

def finalize(seq, st=None, stats=None):
    st = st.copy() if st else State()
    out = []
    def emit(ins):
        need = 0
        if ins.kind not in ('wait', 'nop', 'label'):
            for (p, dist) in st.hist:
                k = _need(p, ins) - dist
                if k > need: need = k
        if need > 0:
            nop = I(f's_nop {need-1}')
            out.append('    ' + nop.text)
            st.hist = [(p, d + need) for (p, d) in st.hist]
            if stats is not None: stats['nops'] = stats.get('nops', 0) + need
        out.append(ins.text if ins.kind == 'label' else '    ' + ins.text)
        if ins.kind == 'label': return
        adv = ins.arg + 1 if ins.kind == 'nop' else 1
        st.hist = [(p, d + adv) for (p, d) in st.hist if d + adv < 13]
        st.hist.append((ins, 0))
    def dowait(vm=None, lg=None):
        parts = []
        if vm is not None and vm < len(st.vm):
            vm = min(vm, 63); parts.append(f'vmcnt({vm})'); st.vm = st.vm[len(st.vm) - vm:] if vm else []
        if lg is not None and lg < len(st.lg):
            lg = min(lg, 15); parts.append(f'lgkmcnt({lg})'); st.lg = st.lg[len(st.lg) - lg:] if lg else []
        if parts: emit(I('s_waitcnt ' + ' '.join(parts)))
    for ins in seq:
        if isinstance(ins, P):
            if ins.kind == 'waitvm':
                idx = [i for i, (d, t) in enumerate(st.vm) if t == ins.arg]
                if idx: dowait(vm=len(st.vm) - 1 - idx[-1])
            elif ins.kind == 'waitvm0': dowait(vm=0)
            elif ins.kind == 'waitlgkm0': dowait(lg=0)
            elif ins.kind == 'waitlg':
                idx = [i for i, (d, sm, t) in enumerate(st.lg) if t == ins.arg]
                if idx: dowait(lg=(0 if any(x[1] for x in st.lg) else len(st.lg) - 1 - idx[-1]))
            elif ins.kind == 'need':
                idx = [i for i, (d, sm, t) in enumerate(st.lg) if d & ins.arg]
                if idx: dowait(lg=(0 if any(x[1] for x in st.lg) else len(st.lg) - 1 - idx[-1]))
            elif ins.kind == 'skip_begin': saved = st.copy(); nb = len(out)
            elif ins.kind == 'skip_end':
                old = {id(p) for (p, d) in saved.hist}
                st.hist = saved.hist + [(p, d) for (p, d) in st.hist if id(p) not in old]
                st.vm = saved.vm; st.lg = saved.lg
            elif ins.kind == 'comment': out.append(f'    ; {ins.arg}')
            continue
        if ins.kind == 'wait':
            m = re.search(r'vmcnt\((\d+)\)', ins.text)
            if m:
                n = int(m.group(1)); st.vm = st.vm[max(0, len(st.vm) - n):] if n else []
            m = re.search(r'lgkmcnt\((\d+)\)', ins.text)
            if m:
                n = int(m.group(1)); st.lg = st.lg[max(0, len(st.lg) - n):] if n else []
            emit(ins); continue
        touched = set(ins.uses) | set(ins.defs) | set(ins.srcc)
        vm = lg = None
        for i, (d, t) in enumerate(st.vm):
            if d & touched: vm = len(st.vm) - 1 - i
        for i, (d, sm, t) in enumerate(st.lg):
            if d & touched: lg = len(st.lg) - 1 - i
        if lg is not None and any(x[1] for x in st.lg): lg = 0
        if ins.kind == 'dsr' and lg is not None and not any(x[0] & set(ins.uses) for x in st.lg) and not any(x[1] for x in st.lg): lg = None
        if ins.kind == 'vld' and vm is not None and not any(d & set(ins.uses) for (d, t) in st.vm): vm = None
        dowait(vm, lg)
        emit(ins)
        if ins.kind in ('vld', 'vst', 'dma'): st.vm.append((set(ins.defs), ins.tag))
        if ins.kind in ('dsr', 'dsw'): st.lg.append((set(ins.defs), False, ins.tag))
        if ins.kind == 'smem': st.lg.append((set(ins.defs), True, ins.tag))
    return out, st

def interleave(main, fill, rate, lead=0):
    out = Seq(); credit = 0.0; hold = lead; fi = 0
    for ins in main:
        out.append(ins)
        if isinstance(ins, I) and ins.kind == 'mfma':
            if hold > 0:
                hold -= 1
                continue
            credit += rate
            while fi < len(fill) and hold == 0:
                f = fill[fi]
                if isinstance(f, P) and f.kind == 'gap':
                    hold = f.arg; fi += 1; credit = min(credit, rate); break
                if f.cost > credit: break
                credit -= f.cost; out.append(f); fi += 1
    rest = Seq(x for x in fill[fi:] if not (isinstance(x, P) and x.kind == 'gap'))
    return out, rest

def vr(base, n=1):
    return f'v{base}' if n == 1 else f'v[{base}:{base+n-1}]'
def sr(base, n=1):
    return f's{base}' if n == 1 else f's[{base}:{base+n-1}]'

class Atom:
    def __init__(self, ins):
        self.ins = ins
        R = [x for x in ins if isinstance(x, I)]
        self.defs = set(r for x in R for r in x.defs)
        self.uses = set(r for x in R for r in list(x.uses) + list(x.srcc))
        self.cost = sum(x.cost for x in R)
        K = [x.kind for x in R]
        self.bar = 'bar' in K
        self.ds = any(k in ('dsr', 'dsw') for k in K)
        self.dsw = 'dsw' in K
        self.dsr = 'dsr' in K
        self.vm = any(k in ('vld', 'vst', 'dma') for k in K)
        self.vld = 'vld' in K
        self.burst = any(isinstance(x, P) and x.kind == 'burst' for x in ins)
        self.mf = max([x.passes for x in R if x.kind == 'mfma'] + [0])
        self.fence = any(isinstance(x, P) and x.kind == 'fence' for x in ins) or 'smem' in K

def atoms(fill):
    A = []; cur = []; depth = 0
    L = [x for x in fill if not (isinstance(x, P) and x.kind == 'gap')]
    for n, x in enumerate(L):
        if isinstance(x, P):
            if x.kind == 'atom_begin': depth = 1; continue
            if x.kind == 'atom_end':
                depth = 0; A.append(Atom(cur)); cur = []; continue
        cur.append(x)
        if depth or not isinstance(x, I): continue
        nx = L[n + 1] if n + 1 < len(L) else None
        if isinstance(nx, I) and nx.op.startswith(('s_cselect', 's_addc', 's_cbranch')): continue
        A.append(Atom(cur)); cur = []
    if cur: A.append(Atom(cur))
    return A

PORT = dict(valu=1, trans=2, perm=1, rfl=1, dpp=1)
def lsched(main, fill, rate, LD=5, LM=2, LB=3, LV=30, VG=4, look=64, lead=0, NI=5, nodep=2):
    A = atoms(fill); n = len(A)
    for a in A:
        a.port = sum(PORT.get(x.kind, 0) for x in a.ins if isinstance(x, I))
        a.cnt = sum(1 for x in a.ins if (isinstance(x, I) and x.kind != 'label') or x.kind.startswith('wait'))
    dep = [[] for _ in A]; seen = set()
    for j, b in enumerate(A):
        for i in range(j):
            a = A[i]; l = None
            if a.defs & b.uses:
                l = LD if a.dsr else LV if a.vld else 0
                if a.mf: l = 0 if (b.mf and a.defs == b.defs) else (LM if a.mf == 4 else LM + 1)
                if (a.dsr or a.vld) and i not in seen and not getattr(b, 'w', 0): b.w = 1; b.cnt += 1
                if a.dsr or a.vld: seen.add(i)
            elif a.defs & b.defs: l = LM if a.mf else 0
            elif a.uses & b.defs: l = 1 if a.mf else 0
            if b.bar and a.ds: l = max(l or 0, LB if a.dsw else 0)
            if a.bar and (b.ds or b.bar): l = l or 0
            if a.vm and b.vm: l = max(l or 0, VG)
            if a.fence or b.fence: l = l or 0
            if l is not None: dep[j].append((i, l))
    ismf = lambda x: isinstance(x, I) and x.kind == 'mfma'
    done = [None] * n; out = Seq(); credit = 0.0; slot = 0; first = 0
    for k, ins in enumerate(main):
        out.append(ins)
        if not ismf(ins): continue
        own = pown = 0
        for y in main[k + 1:]:
            if ismf(y): break
            if isinstance(y, I): own += 1; pown += PORT.get(y.kind, 0)
            elif y.kind.startswith(('wait', 'need')): own += 1
        def fresh(w):
            nonlocal credit
            credit += rate * w
            p = int(credit + 1e-9); credit -= p
            return p - pown, NI * w + max(0, p - 2 * w) - 1 - own
        w = ins.passes // 4
        slot += w
        if slot <= lead: continue
        port, cnt = fresh(w); last = None; empty = True
        while True:
            while first < n and done[first] is not None: first += 1
            pick = None
            for j in range(first, min(n, first + look)):
                a = A[j]
                if done[j] is not None or not all(done[i] is not None and slot >= done[i] + l for (i, l) in dep[j]): continue
                if a.burst: pick = j; break
                if not a.mf and (a.port > port or (a.cnt > cnt and not (empty and a.cnt >= NI - 1 and own <= 1))): continue
                if a.mf and port > 0 and cnt > 0 and pick is None:
                    pick = j; continue
                if nodep and last is not None and A[last].port and A[last].defs & a.uses:
                    if nodep == 2 and pick is None: pick = j
                    continue
                pick = j; break
            if pick is None: break
            a = A[pick]
            out += a.ins; empty = False
            port -= a.port; cnt -= a.cnt
            if a.mf:
                slot += a.mf // 4; port, cnt = fresh(a.mf // 4)
            done[pick] = slot; last = pick
    rest = Seq()
    for j in range(n):
        if done[j] is None: rest += A[j].ins
    return out, rest
```

```python
import math, struct, sys
from g import *
from asmgen import kernel_text, KNAME

def f2u(x): return '0x%08x' % struct.unpack('<I', struct.pack('<f', x))[0]
LOG2E = 1.4426950408889634
C0 = -2.0 * LOG2E * math.sqrt(2.0 / math.pi)

H_TILE = 144 * 1024
KV_OFF = 64 * H_TILE
KV_PITCH = 10240
KV_HEAD = 16 * 128
KV_Z = 64 * 128
KV_CNT = 68 * 128
F_CNT = 70 * 128
WS_SIZE = KV_OFF + 8 * KV_PITCH
STAMP_OFF = 12 << 20
OOB = 0x7ff00000

X = lambda rs, s: 128 + s * 8 + rs * 4
ACC = [96, 64]
WF = 40
vL, vQ, vG, vHS = 0, 1, 2, 3
aT = {(0, 0): 4, (0, 1): 5, (1, 0): 6, (1, 1): 7}
SEL = [8, 12]; CS = 16
BX = [20, 22]
LNC = [24, 27]
vD, vP = 30, 31
T = list(range(32, 40))
vSC, vR32 = T[5], T[6]
vH, vP2 = vG, vQ
vXD = 64; aX = {(0, 0): 66, (0, 1): 67, (1, 0): 68, (1, 1): 69}
ONES = 72; SUM = 88; GRAM = 92
sX, sWQ, sWG, sWU, sWS, sPH, sDB = 4, 8, 12, 16, 20, 24, 28
sW, sR, sC, sRB, sGI, sTY, sM0, sA = 32, 33, 34, 35, 36, 37, 38, 39
sWD, sWO, sOUT = 40, 44, 48
sH0, sH1, sT0, sT1, sT2, sT3 = 68, 69, 70, 71, 72, 73
sCSW, sCSR = 74, 75
sMASK = 76
sM_l1, sM_l2, sM_l3, sM_hi32, sM_b4, sM_s0, sM_s1 = 76, 78, 80, 82, 84, 86, 88
sKV, sPC = 90, 91
sU0, sU1, sHB1, sHB2, sFC, sFP, sXO = 92, 93, 94, 95, 96, 97, 98
sSTL = [52, 54, 56, 58, 60, 62, 64, 66, 100, 24, 26, 8, 10, 12, 14, 16]
SLOT = 32768
REC = 98304; RECP = 112; RECH = 128 * RECP
MISC = 155648
L_ST = MISC; L_DUM = MISC + 1024; L_CS = MISC + 2048; L_PH = MISC + 2048 + 3 * 1024
L_KV = MISC; L_KZ = MISC + 7168
LDS_BYTES = 163840

def srd(a, d, off, size):
    a(f's_load_dwordx2 s[{d}:{d+1}], s[0:1], {off}')
    return f's_mov_b32 s{d+2}, {size}\ns_mov_b32 s{d+3}, 0x20000'

def m64(a, s, val):
    a(f's_mov_b32 s{s}, 0x{val & 0xffffffff:x}\ns_mov_b32 s{s+1}, 0x{val >> 32:x}')

class KF:
    def __init__(self, rate=(8.0, 8.0, 30.0), jE1=13, ls={}, kvpos=1, f0g=4, jK=None, slim=1, burst=0, stamps=False, sc=' sc0 sc1', scl=' sc0 sc1', nfirst=1, jE0=(10, 10), jS0=11, jS1=13, f1pos=1, jW=((10, 11), (10, 11)), jT=99, jT1=99, th=0, kvg=4, spread=10, pace=2, osc='', tch={0:'q',1:'g',2:'u',3:'x',4:'d',5:'o'}, dbg=''):
        self.tch = tch; self.jE1 = jE1; self.ls = ls; self.kvpos = kvpos; self.f0g = f0g; self.jK = jK or jS0; self.slim = slim; self.burst = burst
        self.osc = osc
        self.pace = pace
        self.jT = jT; self.jT1 = jT1; self.th = th; self.kvg = kvg; self.spread = spread
        self.dbg = dbg
        self.nfirst = nfirst
        self.rate = rate; self.stamps = stamps; self.sc = sc; self.scl = scl
        self.jE0 = jE0; self.jS0 = jS0; self.jS1 = jS1; self.f1pos = f1pos; self.jW = jW
        self.nst = 0; self.left = []
        self.nlab = 0
    def lab(self, b):
        self.nlab += 1
        return f'K1_{b}_{self.nlab}'
    def stamp(self, a):
        if self.stamps:
            a(f'{"s_memtime" if self.stamps == 2 else "s_memrealtime"} s[{sSTL[self.nst]}:{sSTL[self.nst]+1}]'); self.nst += 1

    def prologue(self):
        a = Seq()
        a('s_cmp_lt_u32 s2, 256\ns_cbranch_scc1 K1_GO\ns_endpgm\nK1_GO:')
        post = [srd(a, sX, 0, 2097152), srd(a, sWQ, 8, 1572864), srd(a, sWG, 40, 1835008), srd(a, sWU, 48, 1835008)]
        self.post2 = [srd(a, sWS, 80, (16 << 20) if self.stamps else WS_SIZE), srd(a, sPH, 16, 16384), srd(a, sDB, 72, 256),
                      srd(a, sWD, 56, 1835008), srd(a, sWO, 24, 524288), srd(a, sOUT, 64, 2097152)]
        self.stamp(a)
        a(f'''
        v_lshrrev_b32 v{T[5]}, 6, v0
        v_lshrrev_b32 v{T[0]}, 3, v0
        v_readfirstlane_b32 s{sW}, v{T[5]}
        v_and_b32 v{T[1]}, 7, v0
        v_bfe_u32 v{T[2]}, v0, 4, 3
        s_and_b32 s{sT0}, s2, 3
        s_lshl_b32 s{sT0}, s{sT0}, 2
        s_bfe_u32 s{sT1}, s2, 0x20003
        s_add_u32 s{sRB}, s{sT0}, s{sT1}
        s_and_b32 s{sT0}, s2, 4
        s_lshr_b32 s{sT1}, s2, 6
        s_add_u32 s{sGI}, s{sT0}, s{sT1}
        s_bfe_u32 s{sTY}, s2, 0x10005
        s_lshl_b32 s{sT2}, s{sRB}, 17
        v_xor_b32 v{T[3]}, v{T[2]}, v{T[1]}
        v_lshl_add_u32 v{T[3]}, v{T[3]}, 4, s{sT2}
        v_lshl_add_u32 v{vXD}, v{T[0]}, 10, v{T[3]}
        v_and_b32 v{T[3]}, 4, v{T[2]}
        v_and_b32 v{T[2]}, 1, v{T[2]}
        v_lshl_or_b32 v{T[3]}, v{T[2]}, 1, v{T[3]}
        v_xor_b32 v{T[3]}, v{T[3]}, v{T[1]}
        s_lshl_b32 s{sT0}, s{sGI}, 7
        s_lshl_b32 s{sT1}, s{sGI}, 8
        s_add_u32 s{sT1}, s{sT1}, 1024
        s_cmp_eq_u32 s{sTY}, 0
        s_cselect_b32 s{sT1}, s{sT0}, s{sT1}
        v_lshl_add_u32 v{T[4]}, v{T[3]}, 4, s{sT0}
        v_lshl_add_u32 v{T[3]}, v{T[3]}, 4, s{sT1}
        s_movk_i32 s{sT0}, 3072
        s_movk_i32 s{sT1}, 3584
        v_mad_u32_u24 v{vQ}, v{T[0]}, s{sT0}, v{T[4]}
        v_mad_u32_u24 v{vG}, v{T[0]}, s{sT1}, v{T[3]}
        s_lshl_b32 s{sM0}, s{sW}, 10
        ''')
        for p in post: a(p)
        return a

    def setup1(self, a):
        for p in self.post2: a(p)
        a(f'''
        v_and_b32 v{vL}, 63, v0
        s_and_b32 s{sR}, s{sW}, 3
        s_lshr_b32 s{sC}, s{sW}, 2
        v_lshlrev_b32 v{T[2]}, 2, v{T[2]}
        v_xor_b32 v{T[1]}, v{T[1]}, v{T[2]}
        s_lshr_b32 s{sT0}, s2, 5
        s_lshl_b32 s{sT0}, s{sT0}, 7
        v_lshl_add_u32 v{T[1]}, v{T[1]}, 4, s{sT0}
        v_lshl_add_u32 v{vD}, v{T[0]}, 10, v{T[1]}
        s_mul_i32 s{sKV}, s{sGI}, {KV_PITCH}
        s_add_u32 s{sKV}, s{sKV}, {KV_OFF}
        ''')

    def setup2(self, a):
        a(f'''
        v_lshrrev_b32 v{T[0]}, 4, v{vL}
        v_bfe_u32 v{T[1]}, v{vL}, 2, 2
        v_lshl_add_u32 v{T[2]}, v{T[0]}, 3, v{T[1]}
        v_lshlrev_b32 v{T[2]}, 7, v{T[2]}
        v_bfe_u32 v{T[3]}, v{vL}, 3, 2
        s_lshl_b32 s{sT0}, s{sC}, 1
        s_and_b32 s{sT1}, s{sR}, 1
        s_or_b32 s{sT0}, s{sT0}, s{sT1}
        v_xor_b32 v{T[3]}, s{sT0}, v{T[3]}
        v_lshl_add_u32 v{T[2]}, v{T[3]}, 5, v{T[2]}
        v_and_b32 v{T[3]}, 3, v{vL}
        v_lshl_add_u32 v{T[2]}, v{T[3]}, 3, v{T[2]}
        s_lshr_b32 s{sT1}, s{sR}, 1
        s_lshl_b32 s{sT2}, s{sT1}, 12
        v_add_u32 v{aT[0,0]}, s{sT2}, v{T[2]}
        v_xor_b32 v{aT[0,1]}, 32, v{aT[0,0]}
        v_xor_b32 v{aT[1,0]}, 0x1000, v{aT[0,0]}
        v_xor_b32 v{aT[1,1]}, 0x1020, v{aT[0,0]}
        v_and_b32 v{T[1]}, 15, v{vL}
        s_lshl_b32 s{sT2}, s{sR}, 5
        s_lshl_b32 s{sT3}, s{sC}, 4
        s_add_u32 s{sT2}, s{sT2}, s{sT3}
        v_add_u32 v{T[2]}, s{sT2}, v{T[1]}
        s_lshl_b32 s{sT1}, s{sT1}, 2
        v_or_b32 v{T[3]}, s{sT1}, v{T[0]}
        v_lshrrev_b32 v{T[4]}, 1, v{T[1]}
        v_xor_b32 v{T[3]}, v{T[3]}, v{T[4]}
        v_lshlrev_b32 v{T[3]}, 4, v{T[3]}
        v_lshl_add_u32 v{aX[0,0]}, v{T[2]}, 7, v{T[3]}
        v_xor_b32 v{aX[0,1]}, 64, v{aX[0,0]}
        v_xor_b32 v{aX[1,0]}, 0x800, v{aX[0,0]}
        v_xor_b32 v{aX[1,1]}, 0x840, v{aX[0,0]}
        v_xor_b32 v{vHS}, s{sT3}, v{vL}
        v_lshlrev_b32 v{vHS}, 4, v{vHS}
        ''')
        m64(a, sM_l1, 0x2222222222222222); m64(a, sM_l2, 0x4444444444444444); m64(a, sM_l3, 0x8888888888888888)
        m64(a, sM_hi32, 0xFFFFFFFF00000000); m64(a, sM_b4, 0xFFFF0000FFFF0000)
        m64(a, sM_s0, 0x0F0F0F0F0F0F0F0F); m64(a, sM_s1, 0xF0F0F0F0F0F0F0F0)
        a(f's_mov_b32 vcc_lo, 0x00ff00ff\ns_mov_b32 vcc_hi, 0x00ff00ff')
        a(f'v_mov_b32 v{ONES}, 0x3f803f80')
        for i in range(1, 4): a(f'v_mov_b32 v{ONES+i}, v{ONES}')
        a(f'v_cndmask_b32 v{SEL[0]}, 0, v{ONES}, vcc')
        a(f'v_xor_b32 v{SEL[1]}, v{SEL[0]}, v{ONES}')
        for i in range(1, 4): a(f'v_mov_b32 v{SEL[0]+i}, v{SEL[0]}\nv_mov_b32 v{SEL[1]+i}, v{SEL[1]}')
        a(f'''
        s_lshl_b32 s{sT0}, s{sRB}, 2
        s_add_u32 s{sT0}, s{sT0}, s{sR}
        s_mul_i32 s{sT0}, s{sT0}, {H_TILE}
        s_lshl_b32 s{sT1}, s{sC}, 11
        s_add_u32 s{sT0}, s{sT0}, s{sT1}
        s_and_b32 s{sT1}, s{sR}, 1
        s_lshl_b32 s{sT2}, s{sT1}, 10
        s_add_u32 s{sH0}, s{sT0}, s{sT2}
        s_xor_b32 s{sT2}, s{sT2}, 1024
        s_add_u32 s{sH1}, s{sT0}, s{sT2}
        s_lshl_b32 s{sT0}, s{sC}, 9
        s_lshl_b32 s{sT1}, s{sT1}, 7
        s_add_u32 s{sT0}, s{sT0}, s{sT1}
        s_add_u32 s{sCSR}, s{sT0}, {L_CS}
        s_lshr_b32 s{sT1}, s{sR}, 1
        s_lshl_b32 s{sT1}, s{sT1}, 6
        s_add_u32 s{sCSW}, s{sCSR}, s{sT1}
        s_lshr_b32 s{sT0}, s{sRB}, 1
        s_mul_i32 s{sT0}, s{sT0}, {KV_PITCH}
        s_and_b32 s{sT1}, s{sRB}, 1
        s_mul_i32 s{sT1}, s{sT1}, 384
        s_add_u32 s{sT0}, s{sT0}, s{sT1}
        s_add_u32 s{sFP}, s{sT0}, {KV_OFF + F_CNT}
        s_cmp_eq_u32 s{sW}, 0
        s_cselect_b32 s{sFP}, s{sFP}, {OOB}
        s_and_b32 s{sT0}, s2, 3
        s_lshl_b32 s{sT0}, s{sT0}, 3
        s_and_b32 s{sT1}, s2, 4
        s_add_u32 s{sT0}, s{sT0}, s{sT1}
        s_bfe_u32 s{sT1}, s2, 0x20003
        s_add_u32 s{sT0}, s{sT0}, s{sT1}
        s_lshr_b32 s{sT1}, s{sT0}, 2
        s_mul_i32 s{sT1}, s{sT1}, {KV_PITCH}
        s_bfe_u32 s{sT2}, s{sT0}, 0x10001
        s_mul_i32 s{sT2}, s{sT2}, 384
        s_add_u32 s{sT1}, s{sT1}, s{sT2}
        s_add_u32 s{sFC}, s{sT1}, {KV_OFF + F_CNT}
        s_lshl_b32 s{sT0}, s{sT0}, 1
        s_add_u32 s{sT0}, s{sT0}, s{sC}
        s_mul_i32 s{sT1}, s{sT0}, {H_TILE}
        s_lshl_b32 s{sT2}, s{sR}, 12
        s_add_u32 s{sHB1}, s{sT1}, s{sT2}
        s_add_u32 s{sHB2}, s{sHB1}, s{sT2}
        s_lshl_b32 s{sT0}, s{sT0}, 15
        s_lshr_b32 s{sT1}, s2, 5
        s_lshl_b32 s{sT1}, s{sT1}, 7
        s_add_u32 s{sT0}, s{sT0}, s{sT1}
        s_lshl_b32 s{sT1}, s{sR}, 5
        s_add_u32 s{sXO}, s{sT0}, s{sT1}
        ''')

    def phi_addr(self, s, d, t):
        s(f"""
        v_lshrrev_b32 v{d}, 5, v{vL}
        v_bfe_u32 v{t}, v{vL}, 2, 2
        v_lshl_add_u32 v{d}, v{d}, 3, v{t}
        v_lshlrev_b32 v{d}, 5, v{d}
        v_bfe_u32 v{t}, v{vL}, 4, 1
        v_lshl_add_u32 v{d}, v{t}, 4, v{d}
        v_bfe_u32 v{t}, v{vL}, 1, 1
        v_lshl_add_u32 v{d}, v{t}, 3, v{d}
        v_xor_b32 v{t}, s{sR}, v{vL}
        v_and_b32 v{t}, 1, v{t}
        v_lshl_add_u32 v{d}, v{t}, 9, v{d}
        s_lshl_b32 s{sT0}, s{sC}, 10
        s_add_u32 s{sT0}, s{sT0}, {L_PH}
        v_add_u32 v{d}, s{sT0}, v{d}
        """)

    def setup3(self, a, ty):
        a(f"""
        v_and_b32 v24, 15, v{vL}
        v_lshrrev_b32 v25, 5, v{vL}
        v_lshl_add_u32 v20, v24, 2, s{sCSW}
        v_lshl_add_u32 v20, v25, 8, v20
        s_lshl_b32 s{sT0}, s{sR}, 8
        s_lshl_b32 s{sT1}, s{sC}, 7
        s_add_u32 s{sT0}, s{sT0}, s{sT1}
        s_add_u32 s{sT0}, s{sT0}, {L_ST}
        v_lshl_add_u32 v22, v24, 3, s{sT0}
        s_mov_b32 vcc_lo, 0x00f0000f
        s_mov_b32 vcc_hi, 0xf0000f00
        v_mov_b32 v21, {L_DUM}
        v_cndmask_b32 v21, v21, v22, vcc
        v_xor_b32 v23, 128, v22
        v_and_b32 v28, 31, v{vL}
        v_lshl_add_u32 v26, v28, 2, s{sCSR}
        v_xor_b32 v27, 128, v26
        """)
        if ty == 1:
            for k in range(4): a(f'v_mov_b32 v{T[2*k+1]}, 0')
            return
        self.phi_addr(a, T[1], T[0])
        a(f"""
        v_lshrrev_b32 v29, 4, v{vL}
        v_mul_u32_u24 v{T[3]}, {RECP}, v24
        v_lshl_add_u32 v{T[3]}, v29, 3, v{T[3]}
        v_xor_b32 v25, s{sR}, v25
        v_and_b32 v25, 1, v25
        v_mul_u32_u24 v25, {RECH}, v25
        v_mul_u32_u24 v{T[5]}, {RECP}, v28
        v_add_u32 v{T[5]}, v{T[5]}, v25
        v_lshrrev_b32 v{T[7]}, 2, v{vL}
        v_mul_u32_u24 v{T[7]}, {2*RECP}, v{T[7]}
        v_and_b32 v25, 3, v{vL}
        v_lshl_add_u32 v{T[7]}, v25, 3, v{T[7]}
        v_lshlrev_b32 v29, 9, v29
        v_lshl_add_u32 v{vP}, v24, 2, v29
        """)

    def dma(self, srdreg, voff, soff, lds, tag):
        s = Seq()
        s(f's_add_u32 m0, s{sM0}, {lds}')
        if soff: s(f's_mov_b32 s{sA}, {soff}')
        s(f'buffer_load_dwordx4 v{voff}, s[{srdreg}:{srdreg+3}], {"s%d" % sA if soff else "0"} offen lds', tag)
        return s

    PB = [(8, 2), (16, 2), (9, 2), (17, 2), (0, 1), (4, 1), (24, 1), (28, 1), (32, 1)]
    SLOTS = [j % 4 for j in range(8)] + [0, 1, 2, 0, 1, 2] + [3, 0, 1, 2, 4, 3, 0, 1, 2]
    def stage_dmas(self, ty, j):
        tag = f'st{j}'; L = []; base = self.SLOTS[j] * SLOT
        KQ, KG = 64 * 3072, 64 * 3584
        if 'nodma' in self.dbg and 4 <= j < 14: return L
        if 'samek' in self.dbg and j < 14:
            for d in range(4): L.append(self.dma(sWG, vG, (d + 4 * (j & 1)) * KG, base + d * 8192, tag))
            return L
        if j < 8:
            L.append(self.dma(sX, vXD, j * 128, base, tag))
            if ty == 0: L.append(self.dma(sWQ, vQ, j * KQ + 1024, base + 16384, tag))
            else: L.append(self.dma(sWG, vG, j * KG, base + 16384, tag))
            L.append(self.dma(sX, vXD, j * 128 + 65536, base + 8192, tag))
            if ty == 0: L.append(self.dma(sWQ, vQ, j * KQ + 2048, base + 24576, tag))
            else: L.append(self.dma(sWU, vG, j * KG, base + 24576, tag))
        elif j < 12:
            for h in range(2):
                ch = 2 * (j - 8) + h
                L.append(self.dma(sWG, vG, ch * KG + 128 * ty, base + h * 16384, tag))
                L.append(self.dma(sWU, vG, ch * KG + 128 * ty, base + h * 16384 + 8192, tag))
        elif j < 14:
            if ty == 1:
                for h in range(4):
                    L.append(self.dma(sWQ, vQ, (4 * (j - 12) + h) * KQ, base + h * 8192, tag))
            else:
                for h in range(2):
                    p = 2 * (j - 12) + h
                    L.append(self.dma(sWG, vQ, 2 * p * KG, base + h * 8192, tag))
                    L.append(self.dma(sWU, vQ, 2 * p * KG, base + 16384 + h * 8192, tag))
        else:
            b, m = self.PB[j - 14]
            if 'now2' in self.dbg and j >= 19: return L
            for q in range(4):
                p = b + m * q
                L.append(self.dma(sWD if p < 28 else sWO, vD, (p if p < 28 else p - 28) * 65536, base + q * 8192, tag))
        return L

    def groups(self, ty):
        G = []
        for j in range(8):
            for (blk, sig) in ((0, 0), (1, 0), (0, 1), (1, 1)):
                G.append(dict(stage=j, phase=0, ch=j, blk=blk, sig=sig, off=16384 + blk * 8192, ts=512))
        for j in range(8, 12):
            for h in range(2):
                for (blk, sig) in ((0, 0), (1, 0), (0, 1), (1, 1)):
                    G.append(dict(stage=j, phase=1, ch=2 * (j - 8) + h, blk=blk, sig=sig, off=h * 16384 + blk * 8192, ts=512))
        for j in range(12, 14):
            for h in range(4):
                for u in range(2):
                    if ty == 1: G.append(dict(stage=j, phase=2, ch=4 * (j - 12) + h, blk=0, sig=u, off=h * 8192, ts=512))
                    else: G.append(dict(stage=j, phase=2, ch=4 * (j - 12) + h, blk=u, sig=0, off=u * 16384 + h * 4096, ts=256))
        return G

    def body(self, ty):
        slot = self.SLOTS
        issue_after = {}
        last = {}
        first = []
        for j in range(14):
            if slot[j] in last: issue_after.setdefault(last[slot[j]] + 1, []).extend(self.stage_dmas(ty, j))
            else: first.append(j)
            last[slot[j]] = j
        jW = self.jW[ty]; jE0 = self.jE0[ty]
        assert min(jW) >= jE0 or ty == 1
        if 'noW' not in self.dbg:
            issue_after.setdefault(jW[0], []).extend(self.stage_dmas(ty, 14))
            issue_after.setdefault(jW[1], []).extend(self.stage_dmas(ty, 18)[:3])
        issue_after.setdefault(12, []).extend(self.stage_dmas(ty, 15))
        issue_after.setdefault(13, []).extend(self.stage_dmas(ty, 16))
        pre = Seq()
        for j in first[:self.nfirst]:
            for d in self.stage_dmas(ty, j): pre += d
        self.setup1(pre)
        if ty == 1:
            pre(f"""
            v_lshl_add_u32 v{T[0]}, v{vL}, 4, s{sM0}
            s_cmp_eq_u32 s{sRB}, 0
            s_cselect_b32 s{sT0}, s{sKV}, {OOB}
            v_mov_b32 v{T[4]}, 0
            v_mov_b32 v{T[5]}, 0
            v_mov_b32 v{T[6]}, 0
            v_mov_b32 v{T[7]}, 0
            """)
            pre(f'buffer_store_dwordx4 v[{T[4]}:{T[7]}], v{T[0]}, s[{sWS}:{sWS+3}], s{sT0} offen sc0 sc1', 'zero')
            pre(f"""
            s_cmp_lt_u32 s{sW}, 2
            s_cselect_b32 s{sT0}, s{sT0}, {OOB}
            s_add_u32 s{sT0}, s{sT0}, 8192
            """)
            pre(f'buffer_store_dwordx4 v[{T[4]}:{T[7]}], v{T[0]}, s[{sWS}:{sWS+3}], s{sT0} offen sc0 sc1', 'zero')
        self.setup2(pre)
        for j in first[self.nfirst:]:
            for d in self.stage_dmas(ty, j): pre += d
        pre(f"""
        v_lshlrev_b32 v{T[0]}, 4, v{vL}
        s_lshl_b32 s{sT0}, s{sGI}, 11
        s_and_b32 s{sT1}, s{sM0}, 1024
        s_add_u32 s{sT0}, s{sT0}, s{sT1}
        s_add_u32 m0, s{sT1}, {L_PH}
        """)
        pre(f'buffer_load_dwordx4 v{T[0]}, s[{sPH}:{sPH+3}], s{sT0} offen lds', 'ph')
        self.setup3(pre, ty)
        pre += self.touch(self.tch.get(-1, ''))
        G = self.groups(ty)
        win = {'t': 0, 'x': 0}
        def setwin(s, which, regs, base):
            w = base // 65536
            if win[which] != w:
                d = (w - win[which]) * 65536
                for r in regs: s(f'v_add_u32 v{r}, 0x{d & 0xffffffff:x}, v{r}')
                win[which] = w
            return base - w * 65536
        def reads(gi):
            g = G[gi]; L = []
            hd = Seq()
            if ty == 0 and g['phase'] == 2 and G[gi - 1]['phase'] == 1:
                hd(f"""
                v_lshrrev_b32 v{aT[0,1]}, 4, v{vL}
                v_bfe_u32 v{aT[1,1]}, v{vL}, 2, 2
                v_lshl_add_u32 v{aT[0,0]}, v{aT[0,1]}, 3, v{aT[1,1]}
                v_lshlrev_b32 v{aT[0,0]}, 6, v{aT[0,0]}
                v_and_b32 v{aT[0,1]}, 1, v{aT[0,1]}
                v_xor_b32 v{aT[0,1]}, s{sC}, v{aT[0,1]}
                v_lshl_add_u32 v{aT[0,0]}, v{aT[0,1]}, 5, v{aT[0,0]}
                v_and_b32 v{aT[0,1]}, 3, v{vL}
                v_lshl_add_u32 v{aT[0,0]}, v{aT[0,1]}, 3, v{aT[0,0]}
                s_lshr_b32 s{sU0}, s{sR}, 1
                s_lshl_b32 s{sU0}, s{sU0}, 11
                v_add_u32 v{aT[0,0]}, s{sU0}, v{aT[0,0]}
                v_xor_b32 v{aT[1,0]}, 0x800, v{aT[0,0]}
                """)
                win['t'] = 0
            b = setwin(hd, 't', list(aT.values()), slot[g['stage']] * SLOT) + g['off']
            buf = WF + 8 * (gi % 3)
            for kp in range(2):
                for t in range(2):
                    s = Seq()
                    if not L: s += hd
                    s(f'ds_read_b64_tr_b16 v[{buf+4*kp+2*t}:{buf+4*kp+2*t+1}], v{aT[kp, g["sig"]]} offset:{b + t * g["ts"]}')
                    L.append(s)
            return L
        JZ = 2
        jS0 = self.jK if ty == 0 else self.jS0
        def sig0():
            s = Seq()
            if ty == 0:
                s(f's_cmp_eq_u32 s{sW}, 0\ns_cselect_b32 s{sU0}, s{sKV}, {OOB}\ns_add_u32 s{sU0}, s{sU0}, {KV_CNT}')
                s += self.signal(sU0, 0)
            else: s += self.signal(sFP, 0)
            return s
        xq = []
        def boundary(j):
            s = Seq()
            s.waitvm(f'st{j}')
            if j == JZ and ty == 1: s.waitvm('zero')
            if j == 4: s.waitvm('ph')
            if j == jS0: s.waitvm('kvat' if ty == 0 else 'hst0')
            if j == self.jS1: s.waitvm('hst1')
            if 'nolg' not in self.dbg: s.waitlgkm0()
            if not ('nobar' in self.dbg and j > 8): s('s_barrier')
            if j < 8:
                b = setwin(s, 'x', list(aX.values()), slot[j] * SLOT)
                for rs in range(2):
                    for sp in range(2):
                        r = X(rs, 2 * j + sp)
                        x = Seq(); x(f'ds_read_b128 v[{r}:{r+3}], v{aX[rs, sp]} offset:{b}')
                        if self.pace > 1 and j > 0: xq.append(x)
                        elif 'noxr' not in self.dbg: s += x
            if j == JZ and ty == 1:
                s(f"""
                s_lshl_b32 s{sT0}, s{sGI}, 5
                s_or_b32 s{sT1}, s{sRB}, s{sW}
                s_cmp_eq_u32 s{sT1}, 0
                s_cselect_b32 s{sT0}, s{sT0}, {OOB}
                v_lshlrev_b32 v28, 8, v{vL}
                v_mov_b32 v29, 1
                buffer_store_dword v29, v28, s[{sDB}:{sDB+3}], s{sT0} offen sc0 sc1
                """)
            if j == 6:
                s(f'v_lshlrev_b32 v28, 5, v{vL}')
                s(f'buffer_load_dword v29, v28, s[{sDB}:{sDB+3}], 0 offen sc0 sc1')
            if j == 8: self.zpoll(s)
            if j == jS0: s += sig0()
            if j == self.jS1: s += self.signal(sFP, 128)
            if j == 12: s(f'v_lshlrev_b32 v{vH}, 4, v{vL}')
            s += self.touch(self.tch.get(j, ''))
            return s
        def mfmas(gi):
            g = G[gi]; ph = g['phase']; A = ACC[ph & 1]; buf = WF + 8 * (gi % 3); L = []
            firstk = g['ch'] == 0
            for rs in range(2):
                d = A + g['blk'] * 16 + g['sig'] * 8 + rs * 4
                for kp in range(2):
                    c = '0' if (firstk and kp == 0) else vr(d, 4)
                    x = X(rs, 2 * g['ch'] + kp)
                    L.append(f'v_mfma_f32_16x16x32_bf16 {vr(d,4)}, {vr(buf+4*kp,4)}, {vr(x,4)}, {c}')
            if g['sig'] == 0:
                c = '0' if (firstk and g['blk'] == 0) else vr(CS, 4)
                L.append(f'v_mfma_f32_16x16x32_bf16 {vr(CS,4)}, {vr(SEL[g["blk"]],4)}, {vr(buf,4)}, {c}')
            elif ph == 0:
                d, acc = (SUM, ONES) if g['blk'] == 0 else (GRAM, None)
                for kp in range(2):
                    x = X(0, 2 * g['ch'] + kp)
                    c = '0' if (firstk and kp == 0) else vr(d, 4)
                    L.insert(kp, f'v_mfma_f32_16x16x32_bf16 {vr(d,4)}, {vr(acc if acc else x,4)}, {vr(x,4)}, {c}')
            return L

        phases = [Seq(), Seq(), Seq()]
        head = Seq()
        head += boundary(0)
        self.stamp(head)
        pend = []
        for gi in (0, 1):
            for r in reads(gi): head += r
        g13 = min(i for i, g in enumerate(G) if g['stage'] == 13)
        for gi in range(len(G)):
            m = phases[G[gi]['phase']]
            M = mfmas(gi)
            nxt = gi + 2
            R = []; bnd = None
            if nxt < len(G):
                if G[nxt]['stage'] != G[nxt - 1]['stage']:
                    bnd = boundary(G[nxt]['stage'])
                R = reads(nxt)
            if gi == g13 - self.f0g: m(f'buffer_load_dword v{vP}, off, s[{sWS}:{sWS+3}], s{sFC} sc0 sc1')
            if gi == g13:
                self.poll(m, vP, sFC, 0, 8)
                h0 = self.hloads(0); h1 = self.hloads(1)
                pend += [h0[:2]] + [[x] for x in h0[2:]] + [h1[:2]] + [[x] for x in h1[2:]]
            if gi == len(G) - self.kvg and ty == 1:
                m(f's_add_u32 s{sU0}, s{sKV}, {KV_CNT}\nbuffer_load_dword v{vP2}, off, s[{sWS}:{sWS+3}], s{sU0} sc0 sc1')
            if gi == len(G) - 1:
                for p in pend: m += p
                pend = []
            if self.slim: m.need(WF + 8 * (gi % 3), 8)
            if bnd is None and self.slim and G[gi]['phase'] > 0:
                q = []
                if pend: q += pend.pop(0)
                if pend and (G[gi]['phase'] != 1 or len(pend) > 5): q += pend.pop(0)
                per = -(-len(q) // 3) if len(q) <= 3 else -(-len(q) // len(M))
                for k, t in enumerate(M):
                    m(t)
                    if k < len(R): m += R[k]
                    m += q[k * per:(k + 1) * per]
            elif bnd is None:
                for k, t in enumerate(M):
                    m(t)
                    if k < len(R): m += R[k]
                    if k == 1 and pend: m += pend.pop(0)
                    if k == 3 and pend and (G[gi]['phase'] != 1 or len(pend) > 5) and not (self.pace and G[gi]['phase'] == 0): m += pend.pop(0)
                    if k == 2 and xq: m += xq.pop(0)
                    if k == 4 and xq: m += xq.pop(0)
            else:
                for p in pend: m += p
                pend = []
                m(M[0]); m(M[1]); m += bnd
                j = G[nxt]['stage']
                if ty == 0 and j == 5:
                    m(f"""
                    v_lshrrev_b32 v25, 2, v{vL}
                    s_lshl_b32 s{sT0}, s{sW}, 4
                    v_add_u32 v25, s{sT0}, v25
                    v_lshrrev_b32 v28, 5, v{vL}
                    v_lshlrev_b32 v28, 1, v28
                    v_and_b32 v29, 3, v{vL}
                    v_xor_b32 v28, v28, v29
                    s_lshl_b32 s{sT0}, s{sGI}, 6
                    s_add_u32 s{sT0}, s{sT0}, {24*128}
                    v_lshl_add_u32 v28, v28, 4, s{sT0}
                    s_movk_i32 s{sT0}, 3584
                    v_mad_u32_u24 v{vQ}, v25, s{sT0}, v28
                    """)
                pend += issue_after.get(j, [])
                if self.pace and G[gi]['phase'] == 0:
                    m += R[0]; m(M[2]); m += R[1]
                    if xq: m += xq.pop(0)
                    m(M[3]); m += R[2]
                    if pend: m += pend.pop(0)
                    m(M[4]); m += R[3]
                    if xq: m += xq.pop(0)
                    m(M[5])
                else:
                    m += R[0]; m += R[1]; m(M[2]); m += R[2]; m += R[3]
                    for t in M[3:]: m(t)
            if gi + 1 == len(G) or G[gi + 1]['phase'] != G[gi]['phase']:
                self.phase_end(m, G[gi]['phase'])
        assert not pend
        def weave(ph, E, rate, j):
            mk = f'bnd {j}' if j < 99 else 'phase end'
            k = [i for i, x in enumerate(ph) if isinstance(x, P) and x.kind == 'comment' and x.arg == mk][0]
            o, rest = lsched(ph[:k], E, rate, lead=2, **self.ls)
            self.left.append(len(rest))
            o += rest; o += ph[k:]
            return o
        out = Seq(); out += pre; out += head
        out += phases[0]
        self.stamp(out)
        E0 = self.epi_head(0)
        cr, cm = self.corr(0, [(0, 0), (1, 0), (0, 1), (1, 1)] if ty else [(0, 0), (0, 1), (1, 0), (1, 1)])
        E0 += self.ln_consts(cr)
        E0 += cm
        if ty == 0: E0 += self.epi_kv()
        else: E0 += self.gelu(ACC[0], 2, lambda s, sig: s(f's_lshl_b32 s{sT0}, s{sGI}, 13\ns_add_u32 s{sT0}, s{sT0}, {8*4096}\ns_add_u32 s{sT0}, s{sT0}, s{sH1 if sig else sH0}'), 'hst0')
        if 'noE0' in self.dbg: E0 = Seq()
        for w in self.dbg.split():
            if w.startswith('drop:'): E0 = Seq(x for x in E0 if not (isinstance(x, I) and x.kind in w[5:].split(',')))
        self.stamp(E0)
        out += weave(phases[1], E0, self.rate[ty], jE0)
        self.stamp(out)
        E1 = Seq()
        if jS0 == 12.5: E1.waitvm('kvat' if ty == 0 else 'hst0')
        E1 += self.epi_head(1)
        if jS0 == 12.5: E1.append(P('fence')); E1 += sig0()
        E1 += self.corr(1, [(0, 0), (1, 0), (0, 1), (1, 1)])
        if ty == 0: E1 += self.gelu(ACC[1], 2, lambda s, sig: s(f's_lshl_b32 s{sT0}, s{sGI}, 12\ns_add_u32 s{sT0}, s{sT0}, s{sH1 if sig else sH0}'), 'hst1')
        else: E1 += self.gelu(ACC[1], 2, lambda s, sig: s(f's_lshl_b32 s{sT0}, s{sGI}, 13\ns_add_u32 s{sT0}, s{sT0}, {9*4096}\ns_add_u32 s{sT0}, s{sT0}, s{sH1 if sig else sH0}'), 'hst1')
        self.stamp(E1)
        out += weave(phases[2], E1, self.rate[2], self.jE1)
        self.stamp(out)
        def f1():
            s = Seq()
            self.poll(s, vP2, sFC, 128, 16)
            if self.f1pos == 1 or not self.spread:
                for u in range(2, 6): s += self.hloads(u)
            return s
        E2 = Seq()
        E2.waitvm('st15')
        if self.jS1 == 14: E2.waitvm('hst1')
        E2 += self.epi_head(2)
        if self.jS1 == 14: E2 += self.signal(sFP, 128)
        for d in self.stage_dmas(ty, 17): E2 += d
        if self.f1pos == 0: E2 += f1()
        self.stamp(E2)
        k0 = len(E2)
        pl = Seq()
        if self.f1pos == 1: pl(f'buffer_load_dword v{vP2}, off, s[{sWS}:{sWS+3}], s{sFC} offset:128 sc0 sc1')
        if ty == 0:
            E2 += self.corr(2, [(0, 0), (1, 0)])
            def ad(s, sig):
                s(f"""
                s_min_u32 s{sT0}, s{sH0}, s{sH1}
                s_lshl_b32 s{sT1}, s{sC}, 10
                s_sub_u32 s{sT0}, s{sT0}, s{sT1}
                s_lshl_b32 s{sT1}, s{sGI}, 11
                s_add_u32 s{sT0}, s{sT0}, s{sT1}
                s_add_u32 s{sT0}, s{sT0}, {24*4096}
                """)
            E2 += pl
            E2 += self.gelu(ACC[0], 1, ad, 'hst2')
        else:
            E2 += self.corr(2, [(0, 0), (0, 1)])
            E2 += self.epi_q(pl, [(64, 80), (40, 144)])
        if self.f1pos == 1: E2 += f1()
        elif self.spread:
            L = []
            for u in range(2, 6):
                h = self.hloads(u); L += [h[:2]] + [[x] for x in h[2:]]
            body = E2[k0:]; E2 = Seq(E2[:k0]); n = 0
            for x in body:
                if isinstance(x, I) and x.kind in ('valu', 'trans'):
                    if n % self.spread == 0 and L: E2 += L.pop(0)
                    n += 1
                E2.append(x)
            for p in L: E2 += p
        out += Seq(x for x in E2 if not (isinstance(x, P) and x.kind == 'gap'))
        self.stamp(out)
        out += self.gemm2(ty)
        if self.stamps:
            out.waitvm0()
            self.stamp(out)
            out(f'v_mov_b32 v{T[0]}, 0')
            out(f's_lshl_b32 s{sT0}, s2, 3\ns_add_u32 s{sT0}, s{sT0}, s{sW}\ns_lshl_b32 s{sT0}, s{sT0}, 6\ns_add_u32 s{sT0}, s{sT0}, {STAMP_OFF}')
            out.waitlgkm0()
            for i in range(self.nst):
                out(f'v_mov_b32 v{T[1]}, s{sSTL[i]}')
                out(f'buffer_store_dword v{T[1]}, v{T[0]}, s[{sWS}:{sWS+3}], s{sT0} offen offset:{4*i}')
        return out

    HREG = [160, 176, 192, 208, 224, 240, 64, 128, 144]
    def hloads(self, u):
        s = Seq(); b, m = self.PB[u]
        if 'nohall' in self.dbg or ('noh2' in self.dbg and u >= 6): return Seq([I('s_nop 0')] * 5)
        s(f's_add_u32 s{sU1}, s{sHB2 if m == 2 else sHB1}, {b * 4096}')
        for i in range(4):
            s(f'buffer_load_dwordx4 {vr(self.HREG[u] + 4*i, 4)}, v{vH}, s[{sWS}:{sWS+3}], s{sU1} offen offset:{i*1024}{self.scl}')
        return s

    def touch(self, mats):
        s = Seq()
        if not mats: return s
        s(f"""
        v_lshlrev_b32 v24, 7, v{vL}
        s_lshl_b32 s{sU0}, s2, 3
        s_add_u32 s{sU0}, s{sU0}, s{sW}
        s_mov_b32 m0, {L_DUM}
        """)
        for c in mats:
            r, n = dict(q=(sWQ, 6), g=(sWG, 7), u=(sWU, 7), d=(sWD, 7), o=(sWO, 2), x=(sX, 8))[c]
            s(f's_mul_i32 s{sU1}, s{sU0}, {n * 128}\ns_mov_b64 exec, {(1 << n) - 1}')
            s(f'buffer_load_dword v24, s[{r}:{r+3}], s{sU1} offen lds')
        s('s_mov_b64 exec, -1')
        return s

    def gemm2(self, ty):
        a = Seq()
        AD, AS = 96, 160
        aW = [4, 5]; XR = 8; vXO = 12; eW = [13, 14, 15]; eR = 16
        a(f"""
        v_lshrrev_b32 v{T[0]}, 5, v{vL}
        v_bfe_u32 v{T[1]}, v{vL}, 2, 2
        v_lshl_add_u32 v{T[0]}, v{T[0]}, 3, v{T[1]}
        s_lshl_b32 s{sT0}, s{sR}, 13
        s_add_u32 s{sT1}, s{sT0}, 65536
        v_lshl_add_u32 v{T[0]}, v{T[0]}, 7, s{sT1}
        v_bfe_u32 v{T[1]}, v{vL}, 3, 1
        v_bfe_u32 v{T[2]}, v{vL}, 4, 1
        v_lshl_or_b32 v{T[1]}, v{T[1]}, 1, v{T[2]}
        v_xor_b32 v{T[1]}, s{sR}, v{T[1]}
        v_lshl_add_u32 v{T[0]}, v{T[1]}, 5, v{T[0]}
        v_and_b32 v{T[1]}, 1, v{vL}
        v_lshl_add_u32 v{T[0]}, v{T[1]}, 4, v{T[0]}
        v_bfe_u32 v{T[1]}, v{vL}, 1, 1
        v_lshl_add_u32 v{aW[0]}, v{T[1]}, 3, v{T[0]}
        v_xor_b32 v{aW[1]}, 64, v{aW[0]}
        """)
        win = [1]
        def reads(n):
            u, i = divmod(n, 4); L = []
            base = self.SLOTS[14 + u] * SLOT; w = base // 65536
            hd = Seq()
            if w != win[0]:
                d = (w - win[0]) * 65536; win[0] = w
                for r in aW: hd(f'v_add_u32 v{r}, 0x{d & 0xffffffff:x}, v{r}')
            buf = WF + 8 * (n % 3)
            for c in range(2):
                for t in range(2):
                    s = Seq()
                    if not L: s += hd
                    s(f'ds_read_b64_tr_b16 {vr(buf+4*c+2*t,2)}, v{aW[c]} offset:{base - w*65536 + i*2048 + t*512}')
                    L.append(s)
            return L
        for n in (0, 1):
            for r in reads(n): a += r
        a(f"""
        s_lshl_b32 s{sT1}, s{sC}, 15
        s_add_u32 s{sT0}, s{sT0}, s{sT1}
        v_add_u32 v{eR}, s{sT0}, v{vH}
        v_xor_b32 v{eW[0]}, 0x2000, v{eR}
        v_xor_b32 v{eW[1]}, 0x4000, v{eR}
        v_xor_b32 v{eW[2]}, 0x6000, v{eR}
        v_add_u32 v{T[4]}, {3*SLOT}, v{eW[0]}
        v_add_u32 v{T[5]}, {3*SLOT}, v{eW[1]}
        v_add_u32 v{T[6]}, {3*SLOT}, v{eW[2]}
        v_add_u32 v{T[7]}, {3*SLOT}, v{eR}
        v_and_b32 v{T[0]}, 31, v{vL}
        v_lshrrev_b32 v{T[1]}, 5, v{vL}
        v_lshlrev_b32 v{T[1]}, 4, v{T[1]}
        v_lshl_add_u32 v{vXO}, v{T[0]}, 10, v{T[1]}
        """)
        def bar(s, *tags):
            for t in tags: s.waitvm(t)
            s.waitlgkm0(); s('s_barrier')
        def boundary(u):
            s = Seq(); post = []
            if u == 2:
                bar(s, 'hst2', 'st16', 'st17'); s += self.signal(sFP, 256)
                post = self.stage_dmas(ty, 18)[3:] + self.stage_dmas(ty, 19) + self.stage_dmas(ty, 20)
                x = Seq(); x(f'buffer_load_dwordx4 {vr(XR,4)}, v{vXO}, s[{sX}:{sX+3}], s{sXO} offen'); post.append(x)
            elif u == 4:
                bar(s, 'st18')
                s(f'buffer_load_dword v{vP}, off, s[{sWS}:{sWS+3}], s{sFC} offset:256 sc0 sc1')
                post = self.stage_dmas(ty, 21) + self.stage_dmas(ty, 22)
            elif u == 5:
                self.stamp(s)
                self.poll(s, vP, sFC, 256, 16)
                self.stamp(s)
                for v in (6, 7, 8): s += self.hloads(v)
                bar(s, 'st19', 'st20')
            elif u == 7: bar(s, 'st21', 'st22')
            elif u == 8: bar(s)
            else: return None, []
            if u in (2, 7): self.stamp(s)
            return s, post
        PD, PS, XU = 192, 216, 240
        pend = []
        for n in range(36):
            u, i = divmod(n, 4)
            A = AD if u < 7 else AS
            M = [f'v_mfma_f32_32x32x16_bf16 {vr(A+16*c,16)}, {vr(WF+8*(n%3)+4*c,4)}, {vr(self.HREG[u]+4*i,4)}, {"0" if n in (0, 28) else vr(A+16*c,16)}' for c in range(2)]
            bnd = None
            if n + 2 < 36 and (n + 2) % 4 == 0: bnd, post = boundary((n + 2) // 4)
            R = reads(n + 2) if n + 2 < 36 else [Seq()] * 4
            if n == 28:
                for k in range(3):
                    for h in range(2):
                        x = Seq(); x(f'ds_write_b128 v{T[4+k]}, {vr(AD+8*(k+1)+4*h,4)} offset:{(k+1)*2048 + h*1024}'); pend.append(x)
            if bnd is not None:
                for p in pend: a += p
                a(M[0]); a += bnd; pend = list(post)
                for r in R: a += r
                if n + 2 == 32:
                    for k in range(3):
                        for h in range(2): a(f'ds_read_b128 {vr(PD+8*k+4*h,4)}, v{T[7]} offset:{(k+1)*2048 + h*1024}')
                    z = Seq()
                    for i2 in range(8): z(f'v_add_f32 v{PD+i2}, v{PD+i2}, v{AD+i2}')
                    for i2 in range(8): z(f'v_add_f32 v{PD+8+i2}, v{PD+8+i2}, v{PD+16+i2}')
                    for i2 in range(8): z(f'v_add_f32 v{PD+i2}, v{PD+i2}, v{PD+8+i2}')
                    for i2 in range(8): z(f'v_mul_f32 v{PD+8+i2}, {f2u(-LOG2E)}, v{PD+i2}')
                    for i2 in range(8): z(f'v_exp_f32 v{PD+8+i2}, v{PD+8+i2}')
                    for i2 in range(4): z(f'v_lshlrev_b32 v{XU+2*i2}, 16, v{XR+i2}\nv_and_b32 v{XU+2*i2+1}, 0xffff0000, v{XR+i2}')
                    for i2 in range(8): z(f'v_add_f32 v{PD+8+i2}, 1.0, v{PD+8+i2}')
                    for i2 in range(8): z(f'v_rcp_f32 v{PD+8+i2}, v{PD+8+i2}')
                    for i2 in range(8): z(f'v_mul_f32 v{PD+i2}, v{PD+i2}, v{PD+8+i2}')
                    pend = [Seq()] + [Seq(z[k:k+8]) for k in range(0, len(z), 8)]
                a(M[1])
            else:
                npop = 2 if n >= 28 and n < 30 else 1
                a(M[0]); a += R[0]; a += R[1]
                for _ in range(npop):
                    if pend: a += pend.pop(0)
                a(M[1]); a += R[2]; a += R[3]
                for _ in range(npop):
                    if pend: a += pend.pop(0)
        for p in pend: a += p
        self.stamp(a)
        for k in range(3):
            for h in range(2): a(f'ds_write_b128 v{eW[k]}, {vr(AS+8*(k+1)+4*h,4)} offset:{(k+1)*2048 + h*1024}')
        bar(a)
        for k in range(3):
            for h in range(2): a(f'ds_read_b128 {vr(PS+8*k+4*h,4)}, v{eR} offset:{(k+1)*2048 + h*1024}')
        for i in range(8): a(f'v_add_f32 v{AS+i}, v{AS+i}, v{PS+i}')
        for i in range(8): a(f'v_add_f32 v{AS+i}, v{AS+i}, v{PS+8+i}')
        for i in range(8): a(f'v_add_f32 v{AS+i}, v{AS+i}, v{PS+16+i}')
        for i in range(8): a(f'v_fmac_f32 v{XU+i}, v{AS+i}, v{PD+i}')
        for i in range(4): a(f'v_cvt_pk_bf16_f32 v{XU+i}, v{XU+2*i}, v{XU+2*i+1}')
        self.stamp(a)
        a(f'buffer_store_dwordx4 {vr(XU,4)}, v{vXO}, s[{sOUT}:{sOUT+3}], s{sXO} offen{self.osc}')
        return a

    def phase_end(self, m, ph):
        m.comment('phase end')
        a, t = (20, 24) if ph == 0 else (T[0], T[1])
        if ph: m(f"""
        v_and_b32 v{T[0]}, 15, v{vL}
        v_lshrrev_b32 v{T[1]}, 5, v{vL}
        v_lshl_add_u32 v{T[0]}, v{T[0]}, 2, s{sCSW}
        v_lshl_add_u32 v{T[0]}, v{T[1]}, 8, v{T[0]}
        """)
        m(f"""
        v_cvt_pk_bf16_f32 v{t}, v{CS}, v{CS}
        v_lshlrev_b32 v{t}, 16, v{t}
        v_sub_f32 v{t}, v{CS}, v{t}
        v_cvt_pk_bf16_f32 v{t}, v{CS}, v{t}
        """)
        m(f'ds_write_b32 v{a}, v{t} offset:{ph*1024}', 'xch')
        if ph == 0:
            m(f"""
            v_cndmask_b32 v{SUM+1}, v{GRAM}, v{GRAM+1}, s[{sM_l1}:{sM_l1+1}]
            v_cndmask_b32 v{SUM+1}, v{SUM+1}, v{GRAM+2}, s[{sM_l2}:{sM_l2+1}]
            v_cndmask_b32 v{SUM+1}, v{SUM+1}, v{GRAM+3}, s[{sM_l3}:{sM_l3+1}]
            """)
            m(f'ds_write_b64 v21, v[{SUM}:{SUM+1}]', 'xch')

    def epi_head(self, ph):
        s = Seq()
        s.gap(2)
        s.waitlg('xch')
        s('s_barrier')
        return s

    def ln_consts(self, mid):
        s = Seq()
        s('ds_read_b64 v[24:25], v22\nds_read_b64 v[28:29], v23')
        s += mid
        s.gap(3)
        for rs in range(2):
            c0, c1, ve = LNC[rs], LNC[rs] + 1, LNC[rs] + 2
            S, Q, r = ((24, 25, 25), (28, 29, 27))[rs]; b, t = BX[rs], BX[rs] + 1
            s(f"""
            v_mul_f32 v{S}, {f2u(-1.0/512)}, v{S}
            v_mul_f32 v{Q}, {f2u(1.0/512)}, v{Q}
            v_fma_f32 v{Q}, -v{S}, v{S}, v{Q}
            v_cvt_pk_bf16_f32 v{b}, v{S}, v{S}
            v_max_f32 v{Q}, 0, v{Q}
            v_lshlrev_b32 v{t}, 16, v{b}
            v_add_f32 v{ve}, {f2u(1e-5)}, v{Q}
            v_sub_f32 v{t}, v{S}, v{t}
            v_rsq_f32 v{r}, v{ve}
            v_cvt_pk_bf16_f32 v{t}, v{t}, v{t}
            v_cndmask_b32 v{b}, v{b}, v{t}, s[{sM_hi32}:{sM_hi32+1}]
            v_mov_b32 v{t}, 0
            """)
            if rs == 0: s(f'v_mul_f32 v{c0}, {f2u(C0)}, v{r}\nv_mul_f32 v{c1}, v{r}, v{r}')
            else: s(f'v_mul_f32 v{c1}, v{r}, v{r}\nv_mul_f32 v{c0}, {f2u(C0)}, v{r}')
            s(f'v_mul_f32 v{c1}, {f2u(0.044715)}, v{c1}\nv_mul_f32 v{c1}, v{c1}, v{c0}')
        return s

    def corr(self, ph, tiles):
        r = Seq(); s = Seq(); A = ACC[ph & 1]
        a0, a1 = (26, 27) if ph == 0 else (T[1], T[3])
        if ph:
            r(f"""
            v_and_b32 v{T[1]}, 31, v{vL}
            v_lshl_add_u32 v{T[1]}, v{T[1]}, 2, s{sCSR}
            v_xor_b32 v{T[3]}, 128, v{T[1]}
            """)
            for k in range(2, len(tiles)): r(f'v_mov_b32 v{T[2*k+1]}, 0')
        for k, (blk, sig) in enumerate(tiles):
            r(f'ds_read_b32 v{T[2*k]}, v{a1 if sig else a0} offset:{ph*1024 + blk*256}')
        for k, (blk, sig) in enumerate(tiles):
            for rs in range(2):
                d = A + blk * 16 + sig * 8 + rs * 4
                s(f'v_mfma_f32_16x16x16_bf16 {vr(d,4)}, {vr(T[2*k],2)}, {vr(BX[rs],2)}, {vr(d,4)}')
        if ph == 0: return r, s
        r += s
        return r

    def gelu(self, A, nsig, addr, tag):
        s = Seq()
        for sig in range(nsig):
            for rs in range(2):
                a = A + sig * 8 + rs * 4; b = a + 16; c0, c1, ve = LNC[rs], LNC[rs] + 1, LNC[rs] + 2
                for i in range(4): s(f'v_mul_f32 v{T[i]}, v{a+i}, v{a+i}')
                for i in range(4): s(f'v_fma_f32 v{T[i]}, v{T[i]}, v{c1}, v{c0}')
                for i in range(4):
                    s(f'v_mul_f32 v{b+i}, v{a+i}, v{b+i}')
                    s(f'v_mul_f32 v{a+i}, v{T[i]}, v{a+i}')
                for i in range(4): s(f'v_exp_f32 v{a+i}, v{a+i}')
                for i in range(4): s(f'v_fma_f32 v{a+i}, v{a+i}, v{ve}, v{ve}')
                for i in range(4): s(f'v_rcp_f32 v{a+i}, v{a+i}')
                for i in range(4): s(f'v_mul_f32 v{b+i}, v{b+i}, v{a+i}')
                d = A + sig * 8 + rs * 2
                s(f'v_cvt_pk_bf16_f32 v{d}, v{b}, v{b+1}\nv_cvt_pk_bf16_f32 v{d+1}, v{b+2}, v{b+3}')
            d = A + sig * 8
            s(f'v_permlane16_swap_b32 v{d}, v{d+2}\nv_permlane16_swap_b32 v{d+1}, v{d+3}')
            addr(s, sig)
            s(f'buffer_store_dwordx4 {vr(d,4)}, v{vHS}, s[{sWS}:{sWS+3}], s{sT0} offen{self.sc}', tag)
        return s

    def qk_logits(self, s, K, L, ad):
        for sig in range(2):
            k = K + 8 * sig
            for i in range(4): s(f'v_cvt_pk_bf16_f32 v{k+i}, v{k+2*i}, v{k+2*i+1}')
            if sig == 0: s(f'ds_read_b64_tr_b16 {vr(K+4,2)}, v{ad}\nds_read_b64_tr_b16 {vr(K+6,2)}, v{ad} offset:128')
        for sig in range(2):
            k = K + 8 * sig
            s(f'v_permlane16_swap_b32 v{k}, v{k+2}\nv_permlane16_swap_b32 v{k+1}, v{k+3}')
        for sig, m in ((1, sM_s1), (0, sM_s0)):
            for i in range(4): s(f'v_cndmask_b32 v{K+8*sig+4+i}, 0, v{K+4+i}, s[{m}:{m+1}]')
        s(f'v_mfma_f32_32x32x16_bf16 {vr(L,16)}, {vr(K+12,4)}, {vr(K+8,4)}, 0')
        s(f'v_mfma_f32_32x32x16_bf16 {vr(L,16)}, {vr(K+4,4)}, {vr(K,4)}, {vr(L,16)}')

    def exps(self, s, L, E):
        mx, mn, sc = T[0], T[2], T[4]
        s(f"""
        v_cndmask_b32 v{sc}, v{LNC[0]}, v{LNC[1]}, s[{sM_b4}:{sM_b4+1}]
        v_mul_f32 v{sc}, {f2u(LOG2E / C0)}, v{sc}
        """)
        s(f'v_max3_f32 v{mx}, v{L}, v{L+1}, v{L+2}\nv_min3_f32 v{mn}, v{L}, v{L+1}, v{L+2}')
        for i in range(3, 15, 2):
            s(f'v_max3_f32 v{mx}, v{mx}, v{L+i}, v{L+i+1}\nv_min3_f32 v{mn}, v{mn}, v{L+i}, v{L+i+1}')
        s(f'v_max_f32 v{mx}, v{mx}, v{L+15}\nv_min_f32 v{mn}, v{mn}, v{L+15}')
        s(f'v_mul_f32 v{mx}, v{mx}, v{sc}\nv_mul_f32 v{mn}, v{mn}, v{sc}')
        for i in range(0, 16, 2):
            for u in (i, i + 1):
                s(f'v_fma_f32 v{E+u}, v{L+u}, v{sc}, -v{mx}')
                s(f'v_fma_f32 v{L+u}, -v{L+u}, v{sc}, v{mn}')
            for u in (i, i + 1):
                s(f'v_exp_f32 v{E+u}, v{E+u}\nv_exp_f32 v{L+u}, v{L+u}')

    def epi_kv(self):
        s = Seq(); K = ACC[0]; V = K + 16
        a0, a1 = T[3], T[6]
        s(f"""
        s_mul_i32 s{sT0}, s{sR}, {32*RECP}
        s_mul_i32 s{sT1}, s{sC}, {2*RECH}
        s_add_u32 s{sT0}, s{sT0}, s{sT1}
        s_add_u32 s{sPC}, s{sT0}, {REC}
        s_and_b32 s{sT1}, s{sR}, 1
        s_mul_i32 s{sT1}, s{sT1}, {RECH}
        s_add_u32 s{sT2}, s{sPC}, s{sT1}
        s_sub_u32 s{sT3}, s{sPC}, s{sT1}
        s_add_u32 s{sT3}, s{sT3}, {RECH}
        """)
        q = Seq(); self.qk_logits(q, K, V, T[1])
        km = [i for i, x in enumerate(q) if isinstance(x, I) and x.kind == 'mfma'][0]
        s += q[:km]
        s(f'v_add_u32 v{a1}, s{sT3}, v{a0}\nv_add_u32 v{a0}, s{sT2}, v{a0}')
        for sig in range(2):
            for rs in range(2):
                v = V + sig * 8 + rs * 4
                for i in range(4): s(f'v_mul_f32 v{v+i}, v{v+i}, v{LNC[rs]}')
                s(f'v_cvt_pk_bf16_f32 v{v}, v{v}, v{v+1}\nv_cvt_pk_bf16_f32 v{v+1}, v{v+2}, v{v+3}')
                s(f'ds_write_b64 v{a1 if sig else a0}, {vr(v,2)} offset:{64 + rs*16*RECP}')
        s += q[km:]
        s(f"""
        v_add_u32 v{T[5]}, s{sPC}, v{T[5]}
        s_mul_i32 s{sT1}, s{sR}, {RECH}
        s_add_u32 s{sT1}, s{sT1}, {REC}
        v_add_u32 v{T[7]}, s{sT1}, v{T[7]}
        v_lshl_add_u32 v{T[1]}, s{sC}, 5, v{T[7]}
        """)
        self.exps(s, V, K)
        sp, sm = T[6], T[3]
        b = Seq()
        b(f'v_add_f32 v{sp}, v{K}, v{K+1}\nv_add_f32 v{sm}, v{V}, v{V+1}')
        for i in range(2, 16): b(f'v_add_f32 v{sp}, v{sp}, v{K+i}\nv_add_f32 v{sm}, v{sm}, v{V+i}')
        b(f'v_rcp_f32 v{sp}, v{sp}\nv_rcp_f32 v{sm}, v{sm}')
        for (E, sc, off) in ((K, sp, 0), (V, sm, 32)):
            for h in range(2):
                for i in range(8 * h, 8 * h + 8): b(f'v_mul_f32 v{E+i}, v{E+i}, v{sc}')
                for i in range(4 * h, 4 * h + 4): b(f'v_cvt_pk_bf16_f32 v{E+i}, v{E+2*i}, v{E+2*i+1}')
                b(f'ds_write_b128 v{T[5]}, {vr(E+4*h,4)} offset:{off+16*h}', 'rec')
        if self.burst:
            s.append(P('atom_begin')); s.append(P('burst')); s += b[:self.burst]; s.append(P('atom_end'))
        s += b[self.burst:]
        s.gap(2)
        s.waitlg('rec')
        s('s_barrier')
        for k in range(4):
            for t in range(2):
                o = (32 * k + t) * RECP
                s(f'ds_read_b64_tr_b16 {vr(K+8*k+2*t,2)}, v{T[7]} offset:{o+64}')
                s(f'ds_read_b64_tr_b16 {vr(K+8*k+4+2*t,2)}, v{T[1]} offset:{o}')
        a0 = vP
        s.gap(2)
        for k in range(4):
            s(f'v_mfma_f32_16x16x32_bf16 {vr(T[0],4)}, {vr(K+8*k,4)}, {vr(K+8*k+4,4)}, {"0" if k == 0 else vr(T[0],4)}')
            s(f'v_mfma_f32_16x16x32_bf16 {vr(T[4],4)}, {vr(SEL[0],4)}, {vr(K+8*k+4,4)}, {"0" if k == 0 else vr(T[4],4)}')
        s.gap(2)
        s(f"""
        s_lshl_b32 s{sT1}, s{sC}, 6
        s_add_u32 s{sT1}, s{sT1}, s{sKV}
        s_lshl_b32 s{sT0}, s{sR}, 11
        s_add_u32 s{sPC}, s{sT0}, s{sT1}
        s_lshl_b32 s{sT0}, s{sR}, 7
        s_add_u32 s{sT3}, s{sT0}, s{sT1}
        s_add_u32 s{sT3}, s{sT3}, {KV_Z}
        """)
        for i in range(4):
            s(f'buffer_atomic_add_f32 v{T[i]}, v{a0}, s[{sWS}:{sWS+3}], s{sPC} offen offset:{i*128} sc1', 'kvat')
        s(f'v_mul_f32 v{T[4]}, {f2u(C0)}, v{T[4]}')
        s.atom(f"""
        s_mov_b64 exec, 0xffff
        buffer_atomic_add_f32 v{T[4]}, v{a0}, s[{sWS}:{sWS+3}], s{sT3} offen sc1
        s_mov_b64 exec, -1
        """, 'kvat')
        return s

    def poll(self, s, vd, soff, imm, want):
        l1, l2 = self.lab('poll'), self.lab('ok')
        if 'nopoll' in self.dbg: want = 0
        b = Seq()
        b(f'v_readfirstlane_b32 s{sT1}, v{vd}')
        b(f's_cmp_ge_u32 s{sT1}, {want}\ns_cbranch_scc1 {l2}')
        b.append(P('skip_begin'))
        b(f's_mov_b32 s{sT2}, 0\n{l1}:')
        b(f's_sleep 1')
        b(f'buffer_load_dword v{vd}, off, s[{sWS}:{sWS+3}], s{soff} offset:{imm} sc0 sc1')
        b(f's_waitcnt vmcnt(0)')
        b(f'v_readfirstlane_b32 s{sT1}, v{vd}')
        b(f's_add_u32 s{sT2}, s{sT2}, 1\ns_cmp_ge_u32 s{sT2}, 0x20000\ns_cbranch_scc1 {l2}')
        b(f's_cmp_lt_u32 s{sT1}, {want}\ns_cbranch_scc1 {l1}\n{l2}:')
        b.append(P('skip_end'))
        for x in b: x.cost = 0
        s += b

    def zpoll(self, s):
        l1, l2 = self.lab('poll'), self.lab('ok')
        s(f'v_cmp_eq_u32 vcc, 1, v29')
        s(f's_nop 3\ns_cmp_eq_u32 vcc_lo, 0xff\ns_cbranch_scc1 {l2}')
        s.append(P('skip_begin'))
        s(f's_mov_b32 s{sT2}, 0\n{l1}:')
        s(f's_sleep 1')
        s(f'buffer_load_dword v29, v28, s[{sDB}:{sDB+3}], 0 offen sc0 sc1')
        s(f's_waitcnt vmcnt(0)')
        s(f'v_cmp_eq_u32 vcc, 1, v29')
        s(f's_add_u32 s{sT2}, s{sT2}, 1\ns_cmp_ge_u32 s{sT2}, 0x20000\ns_cbranch_scc1 {l2}')
        s(f's_nop 1\ns_cmp_lg_u32 vcc_lo, 0xff\ns_cbranch_scc1 {l1}\n{l2}:')
        s.append(P('skip_end'))

    def signal(self, soff, imm):
        s = Seq()
        s.atom(f"""
        s_mov_b64 exec, 1
        buffer_atomic_inc v{SEL[0]}, off, s[{sWS}:{sWS+3}], s{soff} offset:{imm} sc1
        s_mov_b64 exec, -1
        """)
        return s

    KVF = 128
    def kv_fetch(self):
        s = Seq(); F = self.KVF
        for i in range(4): s(f'v_mov_b32 v{F+4+i}, 1.0')
        s.append(P('atom_begin'))
        self.poll(s, vP2, sU0, 0, 16)
        s(f"""
        s_add_u32 s{sT0}, s{sKV}, s{sM0}
        buffer_load_dwordx4 {vr(F,4)}, v{vH}, s[{sWS}:{sWS+3}], s{sT0} offen sc0 sc1
        s_add_u32 s{sT0}, s{sKV}, {KV_Z}
        s_mov_b32 exec_hi, 0
        buffer_load_dwordx4 {vr(F+4,4)}, v{vH}, s[{sWS}:{sWS+3}], s{sT0} offen sc0 sc1
        s_mov_b32 exec_hi, -1
        """)
        s.append(P('atom_end'))
        return s

    def kv_stage(self):
        s = Seq(); F = self.KVF; a0, a1 = T[1], T[3]
        s(f"""
        v_lshrrev_b32 v{a0}, 1, v{vH}
        s_lshr_b32 s{sT0}, s{sM0}, 1
        s_add_u32 s{sT0}, s{sT0}, {L_KV}
        v_add_u32 v{a1}, s{sT0}, v{a0}
        v_add_u32 v{a0}, {L_KZ}, v{a0}
        """)
        for i in range(4): s(f'v_cvt_pk_bf16_f32 v{F+i}, v{F+2*i}, v{F+2*i+1}')
        s(f'ds_write_b64 v{a1}, {vr(F,2)}\nds_write_b64 v{a0}, {vr(F+2,2)}', 'kvw')
        s(f"""
        v_and_b32 v{T[4]}, 3, v{vL}
        v_bfe_u32 v{T[7]}, v{vL}, 2, 1
        v_lshl_add_u32 v{T[4]}, v{T[7]}, 3, v{T[4]}
        v_bfe_u32 v{T[7]}, v{vL}, 3, 1
        v_lshl_add_u32 v{T[4]}, v{T[7]}, 2, v{T[4]}
        s_lshl_b32 s{sT0}, s{sC}, 1
        s_and_b32 s{sT1}, s{sR}, 1
        s_or_b32 s{sT0}, s{sT0}, s{sT1}
        s_lshl_b32 s{sT1}, s{sT0}, 10
        s_add_u32 s{sT1}, s{sT1}, {L_KV}
        s_lshl_b32 s{sT0}, s{sT0}, 6
        s_add_u32 s{sT0}, s{sT0}, {L_KZ}
        v_lshl_add_u32 v{T[4]}, v{T[4]}, 6, s{sT1}
        v_and_b32 v{T[7]}, 1, v{vL}
        v_lshl_add_u32 v{T[7]}, v{T[7]}, 8, s{sT0}
        v_cndmask_b32 v{T[4]}, v{T[4]}, v{T[7]}, s[{sM_b4}:{sM_b4+1}]
        v_lshrrev_b32 v{T[7]}, 5, v{vL}
        v_lshl_add_u32 v{T[4]}, v{T[7]}, 4, v{T[4]}
        v_mov_b32 v{T[7]}, 0x400
        v_cndmask_b32 v{T[7]}, v{T[7]}, 64, s[{sM_b4}:{sM_b4+1}]
        v_xor_b32 v{T[7]}, v{T[7]}, v{T[4]}
        """)
        r = Seq()
        r.waitlg('kvw')
        r('s_barrier')
        for sig in range(2):
            for sg in range(2):
                r(f'ds_read_b128 {vr(F+8*sig+4*sg,4)}, v{T[7] if sig else T[4]} offset:{sg*32}')
        return s, r

    def epi_q(self, mid, C):
        s = Seq(); Q = ACC[0]; L = Q + 16; F = self.KVF
        if self.kvpos == 1: s += self.kv_fetch()
        self.phi_addr(s, T[5], T[4])
        self.qk_logits(s, Q, L, T[5])
        if self.kvpos == 2: s += self.kv_fetch()
        self.exps(s, L, Q)
        s += mid
        w, r = self.kv_stage()
        s += w
        for n, E in enumerate((Q, L)):
            for i in range(8): s(f'v_cvt_pk_bf16_f32 v{E+i}, v{E+2*i}, v{E+2*i+1}')
            if n == 0: s += r
            for i in range(4): s(f'v_permlane32_swap_b32 v{E+i}, v{E+4+i}')
        for sig in range(2):
            for sg, E in enumerate((Q, L)):
                s(f'v_mfma_f32_32x32x16_bf16 {vr(C[sig][sg],16)}, {vr(F+8*sig+4*sg,4)}, {vr(E+4*sig,4)}, 0')
        for sig in range(2):
            p, m = C[sig]
            s(f"""
            v_rcp_f32 v{p+9}, v{p+9}
            v_rcp_f32 v{m+9}, v{m+9}
            v_fmaak_f32 v{p+8}, v{p+8}, v{p+9}, {f2u(1e-6 * C0)}
            v_fmac_f32 v{p+8}, v{m+8}, v{m+9}
            v_rcp_f32 v{p+8}, v{p+8}
            v_mul_f32 v{p+9}, v{p+9}, v{p+8}
            v_mul_f32 v{m+9}, v{m+9}, v{p+8}
            """)
            for i in range(8): s(f'v_mul_f32 v{p+i}, v{p+i}, v{p+9}')
            for i in range(8): s(f'v_fmac_f32 v{p+i}, v{m+i}, v{m+9}')
            for i in range(4): s(f'v_cvt_pk_bf16_f32 v{p+i}, v{p+2*i}, v{p+2*i+1}')
            s(f's_lshl_b32 s{sT0}, s{sGI}, 12\ns_add_u32 s{sT0}, s{sT0}, {112*1024}\ns_add_u32 s{sT0}, s{sT0}, s{sH1 if sig else sH0}')
            s(f'buffer_store_dwordx4 {vr(p,4)}, v{vHS}, s[{sWS}:{sWS+3}], s{sT0} offen{self.sc}', 'hst2')
        return s

    def text(self):
        stats = {}
        pro = self.prologue()
        pro(f's_cmp_eq_u32 s{sTY}, 1')
        pro.waitlgkm0()
        pro('s_cbranch_scc1 K1_TYPEB')
        l0, st = finalize(pro, None, stats)
        n0 = self.nst
        A = self.body(0); A('s_endpgm')
        self.nst = n0
        B = self.body(1)
        la, _ = finalize(A, st, stats); lb, _ = finalize(B, st, stats)
        self.stats = stats
        return '\n'.join(l0 + la + ['K1_TYPEB:'] + lb) + '\n'


HEADER = open('cdna_kernels/' + KNAME + '.s.ref').read().split('; Override')[0].rstrip('\n') if __import__('os').path.exists('cdna_kernels/' + KNAME + '.s.ref') else ''

def fused(path, **kw):
    k = KF(**kw)
    txt = kernel_text([dict(name=KNAME + '_kernel', body=k.text(), grid=256, block=512, lds=LDS_BYTES, vgpr=256, accum=256)], HEADER)
    open(path, 'w').write(txt)
    return k

if __name__ == '__main__':
    k = fused(sys.argv[1], **(eval(sys.argv[2]) if len(sys.argv) > 2 else {}))
    print(k.stats, k.left)
```

```python
import math, struct, sys
from g import *
from asmgen import kernel_text, KNAME

def f2u(x): return '0x%08x' % struct.unpack('<I', struct.pack('<f', x))[0]
LOG2E = 1.4426950408889634
C0 = -2.0 * LOG2E * math.sqrt(2.0 / math.pi)

H_TILE = 144 * 1024
KV_OFF = 64 * H_TILE
KV_PITCH = 10240
KV_HEAD = 16 * 128
KV_Z = 64 * 128
KV_CNT = 68 * 128
F_CNT = 70 * 128
WS_SIZE = KV_OFF + 8 * KV_PITCH
STAMP_OFF = 12 << 20
OOB = 0x7ff00000

X = lambda rs, s: 128 + s * 8 + rs * 4
ACC = [96, 64]
WF = 40
vL, vQ, vG, vHS = 0, 1, 2, 3
aT = {(0, 0): 4, (0, 1): 5, (1, 0): 6, (1, 1): 7}
SEL = [8, 12]; CS = 16
BX = [20, 22]
LNC = [24, 27]
vD, vP = 30, 31
T = list(range(32, 40))
vSC, vR32 = T[5], T[6]
vH, vP2 = vG, vQ
vXD = 64; aX = {(0, 0): 66, (0, 1): 67, (1, 0): 68, (1, 1): 69}
ONES = 72; SUM = 88; GRAM = 92
sX, sWQ, sWG, sWU, sWS, sPH, sDB = 4, 8, 12, 16, 20, 24, 28
sW, sR, sC, sRB, sGI, sTY, sM0, sA = 32, 33, 34, 35, 36, 37, 38, 39
sWD, sWO, sOUT = 40, 44, 48
sH0, sH1, sT0, sT1, sT2, sT3 = 68, 69, 70, 71, 72, 73
sCSW, sCSR = 74, 75
sMASK = 76
sM_l1, sM_l2, sM_l3, sM_hi32, sM_b4, sM_s0, sM_s1 = 76, 78, 80, 82, 84, 86, 88
sKV, sPC = 90, 91
sU0, sU1, sHB1, sHB2, sFC, sFP, sXO = 92, 93, 94, 95, 96, 97, 98
sSTL = [52, 54, 56, 58, 60, 62, 64, 66, 100, 24, 26, 8, 10, 12, 14, 16]
SLOT = 32768
REC = 98304; RECP = 112; RECH = 128 * RECP
MISC = 155648
L_ST = MISC; L_DUM = MISC + 1024; L_CS = MISC + 2048; L_PH = MISC + 2048 + 3 * 1024
L_KV = MISC; L_KZ = MISC + 7168
LDS_BYTES = 163840

def srd(a, d, off, size):
    a(f's_load_dwordx2 s[{d}:{d+1}], s[0:1], {off}')
    return f's_mov_b32 s{d+2}, {size}\ns_mov_b32 s{d+3}, 0x20000'

def m64(a, s, val):
    a(f's_mov_b32 s{s}, 0x{val & 0xffffffff:x}\ns_mov_b32 s{s+1}, 0x{val >> 32:x}')

class KF:
    def __init__(self, rate=(8.0, 8.0, 30.0), jE1=13, ls={}, kvpos=1, f0g=4, jK=None, slim=1, burst=0, stamps=False, sc=' sc0 sc1', scl=' sc0 sc1', nfirst=1, jE0=(10, 10), jS0=11, jS1=13, f1pos=1, jW=((10, 11), (10, 11)), jT=99, jT1=99, th=0, kvg=4, spread=10, pace=2, osc='', tch={0:'q',1:'g',2:'u',3:'x',4:'d',5:'o'}, kq=None, ko='h2 h3 h4 s18 s19 h5 s20 x p s21 c h6 s22 h7 h8', nB1=6, f1n=(0, 0), sent=0, jC=6, tsp=(16, 16), tld=(0, 0), zr=8, e1=None, jF=12, cord=(), dw=(56, 56, 57, 57, 58, 58), nb=30, sw=(), zi=0, dbg=''):
        self.cord = cord; self.dw = dw; self.nb = nb; self.sw = sw; self.zi = zi
        self.e1 = e1; self.jF = jF
        self.sent = sent; self.jC = jC; self.tsp = tsp; self.tld = tld; self.zr = zr; self.ool = []
        self.kq = kq; self.ko = ko; self.nB1 = nB1; self.f1n = f1n
        self.tch = tch; self.jE1 = jE1; self.ls = ls; self.kvpos = kvpos; self.f0g = f0g; self.jK = jK or jS0; self.slim = slim; self.burst = burst
        self.osc = osc
        self.pace = pace
        self.jT = jT; self.jT1 = jT1; self.th = th; self.kvg = kvg; self.spread = spread
        self.dbg = dbg
        self.nfirst = nfirst
        self.rate = rate; self.stamps = stamps; self.sc = sc; self.scl = scl
        self.jE0 = jE0; self.jS0 = jS0; self.jS1 = jS1; self.f1pos = f1pos; self.jW = jW
        self.nst = 0; self.left = []
        self.nlab = 0
    def lab(self, b):
        self.nlab += 1
        return f'K1_{b}_{self.nlab}'
    def stamp(self, a):
        if self.stamps:
            a(f'{"s_memtime" if self.stamps == 2 else "s_memrealtime"} s[{sSTL[self.nst]}:{sSTL[self.nst]+1}]'); self.nst += 1

    def prologue(self):
        a = Seq()
        a('s_cmp_lt_u32 s2, 256\ns_cbranch_scc1 K1_GO\ns_endpgm\nK1_GO:')
        post = [srd(a, sX, 0, 2097152), srd(a, sWQ, 8, 1572864), srd(a, sWG, 40, 1835008), srd(a, sWU, 48, 1835008)]
        self.post2 = [srd(a, sWS, 80, (16 << 20) if self.stamps else WS_SIZE), srd(a, sPH, 16, 16384), srd(a, sDB, 72, 256),
                      srd(a, sWD, 56, 1835008), srd(a, sWO, 24, 524288), srd(a, sOUT, 64, 2097152)]
        self.stamp(a)
        a(f'''
        v_lshrrev_b32 v{T[5]}, 6, v0
        v_lshrrev_b32 v{T[0]}, 3, v0
        v_readfirstlane_b32 s{sW}, v{T[5]}
        v_and_b32 v{T[1]}, 7, v0
        v_bfe_u32 v{T[2]}, v0, 4, 3
        s_and_b32 s{sT0}, s2, 3
        s_lshl_b32 s{sT0}, s{sT0}, 2
        s_bfe_u32 s{sT1}, s2, 0x20003
        s_add_u32 s{sRB}, s{sT0}, s{sT1}
        s_and_b32 s{sT0}, s2, 4
        s_lshr_b32 s{sT1}, s2, 6
        s_add_u32 s{sGI}, s{sT0}, s{sT1}
        s_bfe_u32 s{sTY}, s2, 0x10005
        s_lshl_b32 s{sT2}, s{sRB}, 17
        v_xor_b32 v{T[3]}, v{T[2]}, v{T[1]}
        v_lshl_add_u32 v{T[3]}, v{T[3]}, 4, s{sT2}
        v_lshl_add_u32 v{vXD}, v{T[0]}, 10, v{T[3]}
        v_and_b32 v{T[3]}, 4, v{T[2]}
        v_and_b32 v{T[2]}, 1, v{T[2]}
        v_lshl_or_b32 v{T[3]}, v{T[2]}, 1, v{T[3]}
        v_xor_b32 v{T[3]}, v{T[3]}, v{T[1]}
        s_lshl_b32 s{sT0}, s{sGI}, 7
        s_lshl_b32 s{sT1}, s{sGI}, 8
        s_add_u32 s{sT1}, s{sT1}, 1024
        s_cmp_eq_u32 s{sTY}, 0
        s_cselect_b32 s{sT1}, s{sT0}, s{sT1}
        v_lshl_add_u32 v{T[4]}, v{T[3]}, 4, s{sT0}
        v_lshl_add_u32 v{T[3]}, v{T[3]}, 4, s{sT1}
        s_movk_i32 s{sT0}, 3072
        s_movk_i32 s{sT1}, 3584
        v_mad_u32_u24 v{vQ}, v{T[0]}, s{sT0}, v{T[4]}
        v_mad_u32_u24 v{vG}, v{T[0]}, s{sT1}, v{T[3]}
        s_lshl_b32 s{sM0}, s{sW}, 10
        ''')
        for p in post: a(p)
        return a

    def setup1(self, a):
        for p in self.post2: a(p)
        a(f'''
        v_and_b32 v{vL}, 63, v0
        s_and_b32 s{sR}, s{sW}, 3
        s_lshr_b32 s{sC}, s{sW}, 2
        v_lshlrev_b32 v{T[2]}, 2, v{T[2]}
        v_xor_b32 v{T[1]}, v{T[1]}, v{T[2]}
        s_lshr_b32 s{sT0}, s2, 5
        s_lshl_b32 s{sT0}, s{sT0}, 7
        v_lshl_add_u32 v{T[1]}, v{T[1]}, 4, s{sT0}
        v_lshl_add_u32 v{vD}, v{T[0]}, 10, v{T[1]}
        s_mul_i32 s{sKV}, s{sGI}, {KV_PITCH}
        s_add_u32 s{sKV}, s{sKV}, {KV_OFF}
        ''')

    def setup2(self, a):
        a(f'''
        v_lshrrev_b32 v{T[0]}, 4, v{vL}
        v_bfe_u32 v{T[1]}, v{vL}, 2, 2
        v_lshl_add_u32 v{T[2]}, v{T[0]}, 3, v{T[1]}
        v_lshlrev_b32 v{T[2]}, 7, v{T[2]}
        v_bfe_u32 v{T[3]}, v{vL}, 3, 2
        s_lshl_b32 s{sT0}, s{sC}, 1
        s_and_b32 s{sT1}, s{sR}, 1
        s_or_b32 s{sT0}, s{sT0}, s{sT1}
        v_xor_b32 v{T[3]}, s{sT0}, v{T[3]}
        v_lshl_add_u32 v{T[2]}, v{T[3]}, 5, v{T[2]}
        v_and_b32 v{T[3]}, 3, v{vL}
        v_lshl_add_u32 v{T[2]}, v{T[3]}, 3, v{T[2]}
        s_lshr_b32 s{sT1}, s{sR}, 1
        s_lshl_b32 s{sT2}, s{sT1}, 12
        v_add_u32 v{aT[0,0]}, s{sT2}, v{T[2]}
        v_xor_b32 v{aT[0,1]}, 32, v{aT[0,0]}
        v_xor_b32 v{aT[1,0]}, 0x1000, v{aT[0,0]}
        v_xor_b32 v{aT[1,1]}, 0x1020, v{aT[0,0]}
        v_and_b32 v{T[1]}, 15, v{vL}
        s_lshl_b32 s{sT2}, s{sR}, 5
        s_lshl_b32 s{sT3}, s{sC}, 4
        s_add_u32 s{sT2}, s{sT2}, s{sT3}
        v_add_u32 v{T[2]}, s{sT2}, v{T[1]}
        s_lshl_b32 s{sT1}, s{sT1}, 2
        v_or_b32 v{T[3]}, s{sT1}, v{T[0]}
        v_lshrrev_b32 v{T[4]}, 1, v{T[1]}
        v_xor_b32 v{T[3]}, v{T[3]}, v{T[4]}
        v_lshlrev_b32 v{T[3]}, 4, v{T[3]}
        v_lshl_add_u32 v{aX[0,0]}, v{T[2]}, 7, v{T[3]}
        v_xor_b32 v{aX[0,1]}, 64, v{aX[0,0]}
        v_xor_b32 v{aX[1,0]}, 0x800, v{aX[0,0]}
        v_xor_b32 v{aX[1,1]}, 0x840, v{aX[0,0]}
        v_xor_b32 v{vHS}, s{sT3}, v{vL}
        v_lshlrev_b32 v{vHS}, 4, v{vHS}
        ''')
        m64(a, sM_l1, 0x2222222222222222); m64(a, sM_l2, 0x4444444444444444); m64(a, sM_l3, 0x8888888888888888)
        m64(a, sM_hi32, 0xFFFFFFFF00000000); m64(a, sM_b4, 0xFFFF0000FFFF0000)
        m64(a, sM_s0, 0x0F0F0F0F0F0F0F0F); m64(a, sM_s1, 0xF0F0F0F0F0F0F0F0)
        a(f's_mov_b32 vcc_lo, 0x00ff00ff\ns_mov_b32 vcc_hi, 0x00ff00ff')
        a(f'v_mov_b32 v{ONES}, 0x3f803f80')
        for i in range(1, 4): a(f'v_mov_b32 v{ONES+i}, v{ONES}')
        a(f'v_cndmask_b32 v{SEL[0]}, 0, v{ONES}, vcc')
        a(f'v_xor_b32 v{SEL[1]}, v{SEL[0]}, v{ONES}')
        for i in range(1, 4): a(f'v_mov_b32 v{SEL[0]+i}, v{SEL[0]}\nv_mov_b32 v{SEL[1]+i}, v{SEL[1]}')
        a(f'''
        s_lshl_b32 s{sT0}, s{sRB}, 2
        s_add_u32 s{sT0}, s{sT0}, s{sR}
        s_mul_i32 s{sT0}, s{sT0}, {H_TILE}
        s_lshl_b32 s{sT1}, s{sC}, 11
        s_add_u32 s{sT0}, s{sT0}, s{sT1}
        s_and_b32 s{sT1}, s{sR}, 1
        s_lshl_b32 s{sT2}, s{sT1}, 10
        s_add_u32 s{sH0}, s{sT0}, s{sT2}
        s_xor_b32 s{sT2}, s{sT2}, 1024
        s_add_u32 s{sH1}, s{sT0}, s{sT2}
        s_lshl_b32 s{sT0}, s{sC}, 9
        s_lshl_b32 s{sT1}, s{sT1}, 7
        s_add_u32 s{sT0}, s{sT0}, s{sT1}
        s_add_u32 s{sCSR}, s{sT0}, {L_CS}
        s_lshr_b32 s{sT1}, s{sR}, 1
        s_lshl_b32 s{sT1}, s{sT1}, 6
        s_add_u32 s{sCSW}, s{sCSR}, s{sT1}
        s_lshr_b32 s{sT0}, s{sRB}, 1
        s_mul_i32 s{sT0}, s{sT0}, {KV_PITCH}
        s_and_b32 s{sT1}, s{sRB}, 1
        s_mul_i32 s{sT1}, s{sT1}, 384
        s_add_u32 s{sT0}, s{sT0}, s{sT1}
        s_add_u32 s{sFP}, s{sT0}, {KV_OFF + F_CNT}
        s_cmp_eq_u32 s{sW}, 0
        s_cselect_b32 s{sFP}, s{sFP}, {OOB}
        s_and_b32 s{sT0}, s2, 3
        s_lshl_b32 s{sT0}, s{sT0}, 3
        s_and_b32 s{sT1}, s2, 4
        s_add_u32 s{sT0}, s{sT0}, s{sT1}
        s_bfe_u32 s{sT1}, s2, 0x20003
        s_add_u32 s{sT0}, s{sT0}, s{sT1}
        s_lshr_b32 s{sT1}, s{sT0}, 2
        s_mul_i32 s{sT1}, s{sT1}, {KV_PITCH}
        s_bfe_u32 s{sT2}, s{sT0}, 0x10001
        s_mul_i32 s{sT2}, s{sT2}, 384
        s_add_u32 s{sT1}, s{sT1}, s{sT2}
        s_add_u32 s{sFC}, s{sT1}, {KV_OFF + F_CNT}
        s_lshl_b32 s{sT0}, s{sT0}, 1
        s_add_u32 s{sT0}, s{sT0}, s{sC}
        s_mul_i32 s{sT1}, s{sT0}, {H_TILE}
        s_lshl_b32 s{sT2}, s{sR}, 12
        s_add_u32 s{sHB1}, s{sT1}, s{sT2}
        s_add_u32 s{sHB2}, s{sHB1}, s{sT2}
        s_lshl_b32 s{sT0}, s{sT0}, 15
        s_lshr_b32 s{sT1}, s2, 5
        s_lshl_b32 s{sT1}, s{sT1}, 7
        s_add_u32 s{sT0}, s{sT0}, s{sT1}
        s_lshl_b32 s{sT1}, s{sR}, 5
        s_add_u32 s{sXO}, s{sT0}, s{sT1}
        ''')

    def phi_addr(self, s, d, t):
        s(f"""
        v_lshrrev_b32 v{d}, 5, v{vL}
        v_bfe_u32 v{t}, v{vL}, 2, 2
        v_lshl_add_u32 v{d}, v{d}, 3, v{t}
        v_lshlrev_b32 v{d}, 5, v{d}
        v_bfe_u32 v{t}, v{vL}, 4, 1
        v_lshl_add_u32 v{d}, v{t}, 4, v{d}
        v_bfe_u32 v{t}, v{vL}, 1, 1
        v_lshl_add_u32 v{d}, v{t}, 3, v{d}
        v_xor_b32 v{t}, s{sR}, v{vL}
        v_and_b32 v{t}, 1, v{t}
        v_lshl_add_u32 v{d}, v{t}, 9, v{d}
        s_lshl_b32 s{sT0}, s{sC}, 10
        s_add_u32 s{sT0}, s{sT0}, {L_PH}
        v_add_u32 v{d}, s{sT0}, v{d}
        """)

    def setup3(self, a, ty):
        a(f"""
        v_and_b32 v24, 15, v{vL}
        v_lshrrev_b32 v25, 5, v{vL}
        v_lshl_add_u32 v20, v24, 2, s{sCSW}
        v_lshl_add_u32 v20, v25, 8, v20
        s_lshl_b32 s{sT0}, s{sR}, 8
        s_lshl_b32 s{sT1}, s{sC}, 7
        s_add_u32 s{sT0}, s{sT0}, s{sT1}
        s_add_u32 s{sT0}, s{sT0}, {L_ST}
        v_lshl_add_u32 v22, v24, 3, s{sT0}
        s_mov_b32 vcc_lo, 0x00f0000f
        s_mov_b32 vcc_hi, 0xf0000f00
        v_mov_b32 v21, {L_DUM}
        v_cndmask_b32 v21, v21, v22, vcc
        v_xor_b32 v23, 128, v22
        v_and_b32 v28, 31, v{vL}
        v_lshl_add_u32 v26, v28, 2, s{sCSR}
        v_xor_b32 v27, 128, v26
        """)
        if ty == 1:
            for k in range(4): a(f'v_mov_b32 v{T[2*k+1]}, 0')
            return
        self.phi_addr(a, T[1], T[0])
        a(f"""
        v_lshrrev_b32 v29, 4, v{vL}
        v_mul_u32_u24 v{T[3]}, {RECP}, v24
        v_lshl_add_u32 v{T[3]}, v29, 3, v{T[3]}
        v_xor_b32 v25, s{sR}, v25
        v_and_b32 v25, 1, v25
        v_mul_u32_u24 v25, {RECH}, v25
        v_mul_u32_u24 v{T[5]}, {RECP}, v28
        v_add_u32 v{T[5]}, v{T[5]}, v25
        v_lshrrev_b32 v{T[7]}, 2, v{vL}
        v_mul_u32_u24 v{T[7]}, {2*RECP}, v{T[7]}
        v_and_b32 v25, 3, v{vL}
        v_lshl_add_u32 v{T[7]}, v25, 3, v{T[7]}
        v_lshlrev_b32 v29, 9, v29
        v_lshl_add_u32 v{vP}, v24, 2, v29
        """)

    def dma(self, srdreg, voff, soff, lds, tag):
        s = Seq()
        s(f's_add_u32 m0, s{sM0}, {lds}')
        if soff: s(f's_mov_b32 s{sA}, {soff}')
        s(f'buffer_load_dwordx4 v{voff}, s[{srdreg}:{srdreg+3}], {"s%d" % sA if soff else "0"} offen lds', tag)
        return s

    PB = [(8, 2), (16, 2), (9, 2), (17, 2), (0, 1), (4, 1), (24, 1), (28, 1), (32, 1)]
    SLOTS = [j % 4 for j in range(8)] + [0, 1, 2, 0, 1, 2] + [3, 0, 1, 2, 4, 3, 0, 1, 2]
    def stage_dmas(self, ty, j):
        tag = f'st{j}'; L = []; base = self.SLOTS[j] * SLOT
        KQ, KG = 64 * 3072, 64 * 3584
        if 'nodma' in self.dbg and 4 <= j < 14: return L
        if 'samek' in self.dbg and j < 14:
            for d in range(4): L.append(self.dma(sWG, vG, (d + 4 * (j & 1)) * KG, base + d * 8192, tag))
            return L
        if j < 8:
            L.append(self.dma(sX, vXD, j * 128, base, tag))
            if ty == 0: L.append(self.dma(sWQ, vQ, j * KQ + 1024, base + 16384, tag))
            else: L.append(self.dma(sWG, vG, j * KG, base + 16384, tag))
            L.append(self.dma(sX, vXD, j * 128 + 65536, base + 8192, tag))
            if ty == 0: L.append(self.dma(sWQ, vQ, j * KQ + 2048, base + 24576, tag))
            else: L.append(self.dma(sWU, vG, j * KG, base + 24576, tag))
        elif j < 12:
            for h in range(2):
                ch = 2 * (j - 8) + h
                L.append(self.dma(sWG, vG, ch * KG + 128 * ty, base + h * 16384, tag))
                L.append(self.dma(sWU, vG, ch * KG + 128 * ty, base + h * 16384 + 8192, tag))
        elif j < 14:
            if ty == 1:
                for h in range(4):
                    L.append(self.dma(sWQ, vQ, (4 * (j - 12) + h) * KQ, base + h * 8192, tag))
            else:
                for h in range(2):
                    p = 2 * (j - 12) + h
                    L.append(self.dma(sWG, vQ, 2 * p * KG, base + h * 8192, tag))
                    L.append(self.dma(sWU, vQ, 2 * p * KG, base + 16384 + h * 8192, tag))
        else:
            b, m = self.PB[j - 14]
            if 'now2' in self.dbg and j >= 19: return L
            for q in range(4):
                p = b + m * q
                L.append(self.dma(sWD if p < 28 else sWO, vD, (p if p < 28 else p - 28) * 65536, base + q * 8192, tag))
        return L

    def groups(self, ty):
        G = []
        for j in range(8):
            for (blk, sig) in ((0, 0), (1, 0), (0, 1), (1, 1)):
                G.append(dict(stage=j, phase=0, ch=j, blk=blk, sig=sig, off=16384 + blk * 8192, ts=512))
        for j in range(8, 12):
            for h in range(2):
                for (blk, sig) in ((0, 0), (1, 0), (0, 1), (1, 1)):
                    G.append(dict(stage=j, phase=1, ch=2 * (j - 8) + h, blk=blk, sig=sig, off=h * 16384 + blk * 8192, ts=512))
        for j in range(12, 14):
            for h in range(4):
                for u in range(2):
                    if ty == 1: G.append(dict(stage=j, phase=2, ch=4 * (j - 12) + h, blk=0, sig=u, off=h * 8192, ts=512))
                    else: G.append(dict(stage=j, phase=2, ch=4 * (j - 12) + h, blk=u, sig=0, off=u * 16384 + h * 4096, ts=256))
        return G

    def body(self, ty):
        slot = self.SLOTS
        issue_after = {}
        last = {}
        first = []
        for j in range(14):
            if slot[j] in last: issue_after.setdefault(last[slot[j]] + 1, []).extend(self.stage_dmas(ty, j))
            else: first.append(j)
            last[slot[j]] = j
        jW = self.jW[ty]; jE0 = self.jE0[ty]
        assert min(jW) >= jE0 or ty == 1
        if 'noW' not in self.dbg:
            issue_after.setdefault(jW[0], []).extend(self.stage_dmas(ty, 14))
            issue_after.setdefault(jW[1], []).extend(self.stage_dmas(ty, 18)[:3])
        self.HREG = [128, 144, 160, 176, 192, 208, 64, 224, 240] if self.e1 and ty == 0 else KF.HREG
        if self.sent and self.jC < 9: issue_after.setdefault(self.jC, []).extend(self.clears(ty))
        if self.sent == 1: self.jS1 = -1
        issue_after.setdefault(12, []).extend(self.stage_dmas(ty, 15))
        issue_after.setdefault(13, []).extend(self.stage_dmas(ty, 16))
        pre = Seq()
        for j in first[:self.nfirst]:
            for d in self.stage_dmas(ty, j): pre += d
        self.setup1(pre)
        if ty == 1:
            pre(f"""
            v_lshl_add_u32 v{T[0]}, v{vL}, 4, s{sM0}
            s_cmp_eq_u32 s{sRB}, 0
            s_cselect_b32 s{sT0}, s{sKV}, {OOB}
            v_mov_b32 v{T[4]}, 0
            v_mov_b32 v{T[5]}, 0
            v_mov_b32 v{T[6]}, 0
            v_mov_b32 v{T[7]}, 0
            """)
            pre(f'buffer_store_dwordx4 v[{T[4]}:{T[7]}], v{T[0]}, s[{sWS}:{sWS+3}], s{sT0} offen sc0 sc1', 'zero')
            pre(f"""
            s_cmp_lt_u32 s{sW}, 2
            s_cselect_b32 s{sT0}, s{sT0}, {OOB}
            s_add_u32 s{sT0}, s{sT0}, 8192
            """)
            pre(f'buffer_store_dwordx4 v[{T[4]}:{T[7]}], v{T[0]}, s[{sWS}:{sWS+3}], s{sT0} offen sc0 sc1', 'zero')
        self.setup2(pre)
        for j in first[self.nfirst:]:
            for d in self.stage_dmas(ty, j): pre += d
        pre(f"""
        v_lshlrev_b32 v{T[0]}, 4, v{vL}
        s_lshl_b32 s{sT0}, s{sGI}, 11
        s_and_b32 s{sT1}, s{sM0}, 1024
        s_add_u32 s{sT0}, s{sT0}, s{sT1}
        s_add_u32 m0, s{sT1}, {L_PH}
        """)
        pre(f'buffer_load_dwordx4 v{T[0]}, s[{sPH}:{sPH+3}], s{sT0} offen lds', 'ph')
        self.setup3(pre, ty)
        pre += self.touch(self.tch.get(-1, ''))
        G = self.groups(ty)
        win = {'t': 0, 'x': 0}
        def setwin(s, which, regs, base):
            w = base // 65536
            if win[which] != w:
                d = (w - win[which]) * 65536
                for r in regs: s(f'v_add_u32 v{r}, 0x{d & 0xffffffff:x}, v{r}')
                win[which] = w
            return base - w * 65536
        def reads(gi):
            g = G[gi]; L = []
            hd = Seq()
            if ty == 0 and g['phase'] == 2 and G[gi - 1]['phase'] == 1:
                hd(f"""
                v_lshrrev_b32 v{aT[0,1]}, 4, v{vL}
                v_bfe_u32 v{aT[1,1]}, v{vL}, 2, 2
                v_lshl_add_u32 v{aT[0,0]}, v{aT[0,1]}, 3, v{aT[1,1]}
                v_lshlrev_b32 v{aT[0,0]}, 6, v{aT[0,0]}
                v_and_b32 v{aT[0,1]}, 1, v{aT[0,1]}
                v_xor_b32 v{aT[0,1]}, s{sC}, v{aT[0,1]}
                v_lshl_add_u32 v{aT[0,0]}, v{aT[0,1]}, 5, v{aT[0,0]}
                v_and_b32 v{aT[0,1]}, 3, v{vL}
                v_lshl_add_u32 v{aT[0,0]}, v{aT[0,1]}, 3, v{aT[0,0]}
                s_lshr_b32 s{sU0}, s{sR}, 1
                s_lshl_b32 s{sU0}, s{sU0}, 11
                v_add_u32 v{aT[0,0]}, s{sU0}, v{aT[0,0]}
                v_xor_b32 v{aT[1,0]}, 0x800, v{aT[0,0]}
                """)
                win['t'] = 0
            b = setwin(hd, 't', list(aT.values()), slot[g['stage']] * SLOT) + g['off']
            buf = WF + 8 * (gi % 3)
            for kp in range(2):
                for t in range(2):
                    s = Seq()
                    if not L: s += hd
                    s(f'ds_read_b64_tr_b16 v[{buf+4*kp+2*t}:{buf+4*kp+2*t+1}], v{aT[kp, g["sig"]]} offset:{b + t * g["ts"]}')
                    L.append(s)
            return L
        JZ = 2
        jS0 = self.jK if ty == 0 else self.jS0
        def sig0():
            s = Seq()
            if ty == 0:
                s(f's_cmp_eq_u32 s{sW}, 0\ns_cselect_b32 s{sU0}, s{sKV}, {OOB}\ns_add_u32 s{sU0}, s{sU0}, {KV_CNT}')
                s += self.signal(sU0, 0)
            else: s += self.signal(sFP, 0)
            return s
        xq = []
        def boundary(j):
            s = Seq()
            s.waitvm(f'st{j}')
            if j == JZ and ty == 1: s.waitvm('zero')
            if j == 4: s.waitvm('ph')
            if j == jS0: s.waitvm('kvat' if ty == 0 else 'hst0')
            if j == self.jS1: s.waitvm('hst1')
            if j == self.jF and self.sent == 1: s.waitvm('clr')
            if 'nolg' not in self.dbg: s.waitlgkm0()
            if not ('nobar' in self.dbg and j > 8): s('s_barrier')
            if j < 8:
                b = setwin(s, 'x', list(aX.values()), slot[j] * SLOT)
                for rs in range(2):
                    for sp in range(2):
                        r = X(rs, 2 * j + sp)
                        x = Seq(); x(f'ds_read_b128 v[{r}:{r+3}], v{aX[rs, sp]} offset:{b}')
                        if self.pace > 1 and j > 0: xq.append(x)
                        elif 'noxr' not in self.dbg: s += x
            if j == JZ and ty == 1:
                s(f"""
                s_lshl_b32 s{sT0}, s{sGI}, 5
                s_or_b32 s{sT1}, s{sRB}, s{sW}
                s_cmp_eq_u32 s{sT1}, 0
                s_cselect_b32 s{sT0}, s{sT0}, {OOB}
                v_lshlrev_b32 v28, 8, v{vL}
                v_mov_b32 v29, 1
                buffer_store_dword v29, v28, s[{sDB}:{sDB+3}], s{sT0} offen sc0 sc1
                """)
            if j == 6:
                s(f'v_lshlrev_b32 v28, 5, v{vL}')
                s(f'buffer_load_dword v29, v28, s[{sDB}:{sDB+3}], 0 offen sc0 sc1')
            if j == 8: self.zpoll(s)
            if j == jS0: s += sig0()
            if j == self.jS1: s += self.signal(sFP, 128)
            if j == self.jF and self.sent == 1: s += self.signal(sFP, 128)
            if j == 12: s(f'v_lshlrev_b32 v{vH}, 4, v{vL}')
            s += self.touch(self.tch.get(j, ''), 70 if j <= 8 else vP)
            if j == self.jT:
                t = 70 if j <= 8 else vP
                assert j <= 8 or j >= jE0 or ty == 1
                s(f"""
                s_and_b32 s{sU0}, s2, 24
                s_add_u32 s{sU0}, s{sU0}, s{sW}
                s_sub_u32 s{sU1}, s{sU0}, 7
                s_max_i32 s{sU1}, s{sU1}, 0
                s_min_i32 s{sU1}, s{sU1}, 4
                s_add_u32 s{sU0}, s{sU0}, s{sU1}
                s_lshl_b32 s{sU0}, s{sU0}, 16
                s_lshr_b32 s{sU1}, s2, 5
                s_lshl_b32 s{sU1}, s{sU1}, 7
                v_lshl_add_u32 v{t}, v{vL}, 10, s{sU1}
                s_mov_b32 m0, {L_DUM}
                s_sub_u32 s{sU1}, s{sU0}, {28 << 16}
                buffer_load_dword v{t}, s[{sWD}:{sWD+3}], s{sU0} offen lds
                s_cselect_b32 s{sU1}, {OOB}, s{sU1}
                buffer_load_dword v{t}, s[{sWO}:{sWO+3}], s{sU1} offen lds
                """)
            return s
        def mfmas(gi):
            g = G[gi]; ph = g['phase']; A = ACC[ph & 1]; buf = WF + 8 * (gi % 3); L = []
            firstk = g['ch'] == 0
            for rs in range(2):
                d = A + g['blk'] * 16 + g['sig'] * 8 + rs * 4
                for kp in range(2):
                    c = '0' if (firstk and kp == 0) else vr(d, 4)
                    x = X(rs, 2 * g['ch'] + kp)
                    L.append(f'v_mfma_f32_16x16x32_bf16 {vr(d,4)}, {vr(buf+4*kp,4)}, {vr(x,4)}, {c}')
            if g['sig'] == 0:
                c = '0' if (firstk and g['blk'] == 0) else vr(CS, 4)
                L.append(f'v_mfma_f32_16x16x32_bf16 {vr(CS,4)}, {vr(SEL[g["blk"]],4)}, {vr(buf,4)}, {c}')
            elif ph == 0:
                d, acc = (SUM, ONES) if g['blk'] == 0 else (GRAM, None)
                for kp in range(2):
                    x = X(0, 2 * g['ch'] + kp)
                    c = '0' if (firstk and kp == 0) else vr(d, 4)
                    L.insert(kp, f'v_mfma_f32_16x16x32_bf16 {vr(d,4)}, {vr(acc if acc else x,4)}, {vr(x,4)}, {c}')
            return L

        phases = [Seq(), Seq(), Seq()]
        head = Seq()
        head += boundary(0)
        self.stamp(head)
        pend = []
        for gi in (0, 1):
            for r in reads(gi): head += r
        g13 = min(i for i, g in enumerate(G) if g['stage'] == 13)
        n13 = self.e1['n13'][ty] if self.e1 else 0
        fcl = Seq(); fcl(f'buffer_load_dword v{vP}, off, s[{sWS}:{sWS+3}], s{sFC} offset:128 sc0 sc1')
        for gi in range(len(G)):
            m = phases[G[gi]['phase']]
            M = mfmas(gi)
            nxt = gi + 2
            R = []; bnd = None
            if nxt < len(G):
                if G[nxt]['stage'] != G[nxt - 1]['stage']:
                    bnd = boundary(G[nxt]['stage'])
                R = reads(nxt)
            if gi == g13 - self.f0g: m(f'buffer_load_dword v{vP}, off, s[{sWS}:{sWS+3}], s{sFC} sc0 sc1')
            if gi == g13:
                self.poll(m, vP, sFC, 0, 8)
                pend += self.hitems(0, 2)
                if self.e1:
                    m.comment('E1 here'); L1 = pend
                    if n13:
                        L1[-4] = list(fcl) + list(L1[-4])
                        self.poll(m, vP, sFC, 128, 16)
                    pend = self.hitems(2, 2 + n13)
            if gi == len(G) - self.kvg and self.sent == 1 and not n13: m += fcl
            if gi == len(G) - self.kvg and ty == 1:
                m(f's_add_u32 s{sU0}, s{sKV}, {KV_CNT}\nbuffer_load_dword v{vP2}, off, s[{sWS}:{sWS+3}], s{sU0} sc0 sc1')
            if gi == len(G) - 1:
                for p in pend: m += p
                pend = []
            if self.slim: m.need(WF + 8 * (gi % 3), 8)
            if bnd is None and self.slim and G[gi]['phase'] > 0:
                q = []
                if pend: q += pend.pop(0)
                if pend and (G[gi]['phase'] != 1 or len(pend) > 5) and not (self.e1 and gi >= g13 and len(pend) < len(G) - gi - 1): q += pend.pop(0)
                per = -(-len(q) // 3) if len(q) <= 3 else -(-len(q) // len(M))
                for k, t in enumerate(M):
                    m(t)
                    if k < len(R): m += R[k]
                    m += q[k * per:(k + 1) * per]
            elif bnd is None:
                for k, t in enumerate(M):
                    m(t)
                    if k < len(R): m += R[k]
                    if k == 1 and pend: m += pend.pop(0)
                    if k == 3 and pend and (G[gi]['phase'] != 1 or len(pend) > 5) and not (self.pace and G[gi]['phase'] == 0): m += pend.pop(0)
                    if k == 2 and xq: m += xq.pop(0)
                    if k == 4 and xq: m += xq.pop(0)
            else:
                for p in pend: m += p
                pend = []
                m(M[0]); m(M[1]); m += bnd
                j = G[nxt]['stage']
                if ty == 0 and j == 5:
                    m(f"""
                    v_lshrrev_b32 v25, 2, v{vL}
                    s_lshl_b32 s{sT0}, s{sW}, 4
                    v_add_u32 v25, s{sT0}, v25
                    v_lshrrev_b32 v28, 5, v{vL}
                    v_lshlrev_b32 v28, 1, v28
                    v_and_b32 v29, 3, v{vL}
                    v_xor_b32 v28, v28, v29
                    s_lshl_b32 s{sT0}, s{sGI}, 6
                    s_add_u32 s{sT0}, s{sT0}, {24*128}
                    v_lshl_add_u32 v28, v28, 4, s{sT0}
                    s_movk_i32 s{sT0}, 3584
                    v_mad_u32_u24 v{vQ}, v25, s{sT0}, v28
                    """)
                pend += issue_after.get(j, [])
                if self.pace and G[gi]['phase'] == 0:
                    m += R[0]; m(M[2]); m += R[1]
                    if xq: m += xq.pop(0)
                    m(M[3]); m += R[2]
                    if pend: m += pend.pop(0)
                    m(M[4]); m += R[3]
                    if xq: m += xq.pop(0)
                    m(M[5])
                else:
                    m += R[0]; m += R[1]; m(M[2]); m += R[2]; m += R[3]
                    for t in M[3:]: m(t)
            if gi + 1 == len(G) or G[gi + 1]['phase'] != G[gi]['phase']:
                self.phase_end(m, G[gi]['phase'])
        assert not pend
        def weave(ph, E, rate, j):
            mk = f'bnd {j}' if j < 99 else 'phase end'
            k = [i for i, x in enumerate(ph) if isinstance(x, P) and x.kind == 'comment' and x.arg == mk][0]
            o, rest = lsched(ph[:k], E, rate, lead=2, **self.ls)
            self.left.append(len(rest))
            o += rest; o += ph[k:]
            return o
        out = Seq(); out += pre; out += head
        out += phases[0]
        self.stamp(out)
        E0 = self.epi_head(0)
        cr, cm = self.corr(0, [(0, 0), (1, 0), (0, 1), (1, 1)] if ty else [(0, 0), (0, 1), (1, 0), (1, 1)])
        E0 += self.ln_consts(cr)
        E0 += cm
        if ty == 0: E0 += self.epi_kv()
        else: E0 += self.gelu(ACC[0], 2, self.had(1, 0), 'hst0')
        if self.sent and self.jC >= 9:
            for c in self.clears(ty, 112): E0 += c
        if 'noE0' in self.dbg: E0 = Seq()
        for w in self.dbg.split():
            if w.startswith('drop:'): E0 = Seq(x for x in E0 if not (isinstance(x, I) and x.kind in w[5:].split(',')))
        self.stamp(E0)
        out += weave(phases[1], E0, self.rate[ty], jE0)
        self.stamp(out)
        E1 = Seq()
        if jS0 == 12.5: E1.waitvm('kvat' if ty == 0 else 'hst0')
        if not self.e1 or self.e1['r12']: E1 += self.epi_head(1)
        if jS0 == 12.5: E1.append(P('fence')); E1 += sig0()
        E1 += self.corr(1, [(0, 0), (1, 0), (0, 1), (1, 1)])
        E1 += self.gelu(ACC[1], 2, self.had(ty, 1), 'hst1')
        self.stamp(E1)
        if self.e1:
            ph = phases[2]
            k = [i for i, x in enumerate(ph) if isinstance(x, P) and x.kind == 'comment' and x.arg == 'E1 here'][0]
            if self.e1['r12']: o, rest = lsched(ph[:k], E1, self.e1['r12'], lead=2, **self.ls)
            else: o, rest = Seq(ph[:k]), E1
            keep = self.e1.get('keep', 0); cut = len(rest)
            while keep > 0: cut -= 1; keep -= rest[cut].cost
            self.left.append(cut)
            out += o; out += self.paced(rest[:cut], L1, self.e1['sp'], 0)
            out += weave(ph[k:], Seq(rest[cut:]), 2, 99)
        else: out += weave(phases[2], E1, self.rate[2], self.jE1)
        self.stamp(out)
        def f1():
            s = Seq()
            self.poll(s, vP2, sFC, 128, 16)
            if self.kq:
                for u in range(2, 2 + self.f1n[ty]): s += self.hloads(u)
            elif self.f1pos == 1 or not self.spread:
                for u in range(2, 6): s += self.hloads(u)
            return s
        E2 = Seq()
        E2.waitvm('st15')
        if self.jS1 == 14: E2.waitvm('hst1')
        E2 += self.epi_head(2)
        if self.jS1 == 14: E2 += self.signal(sFP, 128)
        for d in self.stage_dmas(ty, 17): E2 += d
        if self.f1pos == 0: E2 += f1()
        self.stamp(E2)
        k0 = len(E2)
        pl = Seq()
        if self.f1pos == 1 and self.sent != 1: pl(f'buffer_load_dword v{vP2}, off, s[{sWS}:{sWS+3}], s{sFC} offset:128 sc0 sc1')
        if ty == 0:
            E2 += self.corr(2, [(0, 0), (1, 0)])
            E2 += pl
            E2 += self.gelu(ACC[0], 1, self.had(0, 2), 'hst2')
        else:
            E2 += self.corr(2, [(0, 0), (0, 1)])
            E2 += self.epi_q(pl, [(64, 80), (40, 144)])
        if self.sent == 1:
            n13 = self.e1['n13'][ty] if self.e1 else 0
            L = self.hitems(2 + n13, 2 + self.f1n[ty])
            if not n13:
                c = Seq(); self.poll(c, vP, sFC, 128, 16); L = [c + (L[0] if L else [])] + L[1:]
            E2 = Seq(E2[:k0]) + self.paced(E2[k0:], L, self.tsp[ty], self.tld[ty])
        elif self.f1pos == 1: E2 += f1()
        elif self.spread:
            L = []
            for u in range(2, 6):
                h = self.hloads(u); L += [h[:2]] + [[x] for x in h[2:]]
            body = E2[k0:]; E2 = Seq(E2[:k0]); n = 0
            for x in body:
                if isinstance(x, I) and x.kind in ('valu', 'trans'):
                    if n % self.spread == 0 and L: E2 += L.pop(0)
                    n += 1
                E2.append(x)
            for p in L: E2 += p
        out += Seq(x for x in E2 if not (isinstance(x, P) and x.kind == 'gap'))
        self.stamp(out)
        out += self.gemm2q(ty) if self.kq else self.gemm2(ty)
        if self.stamps:
            out.waitvm0()
            self.stamp(out)
            out(f'v_mov_b32 v{T[0]}, 0')
            out(f's_lshl_b32 s{sT0}, s2, 3\ns_add_u32 s{sT0}, s{sT0}, s{sW}\ns_lshl_b32 s{sT0}, s{sT0}, 6\ns_add_u32 s{sT0}, s{sT0}, {STAMP_OFF}')
            out.waitlgkm0()
            for i in range(self.nst):
                out(f'v_mov_b32 v{T[1]}, s{sSTL[i]}')
                out(f'buffer_store_dword v{T[1]}, v{T[0]}, s[{sWS}:{sWS+3}], s{sT0} offen offset:{4*i}')
        return out

    def had(self, ty, k):
        if ty == 0 and k == 2:
            return lambda s, sig: s(f"""
                s_min_u32 s{sT0}, s{sH0}, s{sH1}
                s_lshl_b32 s{sT1}, s{sC}, 10
                s_sub_u32 s{sT0}, s{sT0}, s{sT1}
                s_lshl_b32 s{sT1}, s{sGI}, 11
                s_add_u32 s{sT0}, s{sT0}, s{sT1}
                s_add_u32 s{sT0}, s{sT0}, {24*4096}
                """)
        sh, off = {(0, 1): (12, 0), (1, 0): (13, 8 * 4096), (1, 1): (13, 9 * 4096), (1, 2): (12, 28 * 4096)}[ty, k]
        return lambda s, sig: s(f's_lshl_b32 s{sT0}, s{sGI}, {sh}\n' + (f's_add_u32 s{sT0}, s{sT0}, {off}\n' if off else '') + f's_add_u32 s{sT0}, s{sT0}, s{sH1 if sig else sH0}')

    def clears(self, ty, r=76):
        L = []
        for k in ((1, 2) if self.sent == 1 else (2,)):
            for sig in range(1 if (ty, k) == (0, 2) else 2):
                s = Seq()
                if not L:
                    for i in range(4): s(f'v_mov_b32 v{r+i}, -1')
                self.had(ty, k)(s, sig)
                s(f'buffer_store_dwordx4 {vr(r,4)}, v{vHS}, s[{sWS}:{sWS+3}], s{sT0} offen sc0 sc1', 'clr')
                L.append(s)
        return L

    def hcheck(self, a, u, i, t):
        r = self.HREG[u] + 4 * i; b, m = self.PB[u]
        l1, l2, l3 = self.lab('re'), self.lab('lp'), self.lab('bk')
        chk = f'v_max3_u32 v{t}, v{r}, v{r+1}, v{r+2}\nv_max_u32 v{t}, v{t}, v{r+3}\nv_cmp_eq_u32 vcc, -1, v{t}'
        a(chk); a(f's_cbranch_vccnz {l1}\n{l3}:')
        o = [f'{l1}:', f's_mov_b32 s{sT2}, 0', f's_add_u32 s{sT0}, s{sHB2 if m == 2 else sHB1}, {b * 4096}', f'{l2}:']
        for k in range(i, 4):
            o.append(f'buffer_load_dwordx4 {vr(self.HREG[u] + 4*k, 4)}, v{vH}, s[{sWS}:{sWS+3}], s{sT0} offen offset:{k*1024}{self.scl}')
        o += ['s_waitcnt vmcnt(0)'] + chk.split('\n')
        o += [f's_add_u32 s{sT2}, s{sT2}, 1', f's_cmp_ge_u32 s{sT2}, 0x10000', f's_cbranch_scc1 {l3}', f's_cbranch_vccnz {l2}', f's_branch {l3}']
        self.ool += o

    def hitems(self, u0, u1):
        L = []
        for u in range(u0, u1):
            h = self.hloads(u); L += [h[:2]] + [[x] for x in h[2:]]
        return L

    def paced(self, body, L, sp, lead):
        o = Seq(); n = -lead; dep = 0; L = list(L)
        for x in body:
            if isinstance(x, P) and x.kind in ('atom_begin', 'atom_end'): dep = x.kind == 'atom_begin'
            if isinstance(x, I) and x.kind in ('valu', 'trans') and not dep:
                if n >= 0 and L: o += L.pop(0); n -= sp
                n += x.cost
            o.append(x)
        for p in L: o += p
        return o

    HREG = [160, 176, 192, 208, 224, 240, 64, 128, 144]
    def hloads(self, u):
        s = Seq(); b, m = self.PB[u]
        if 'nohall' in self.dbg or ('noh2' in self.dbg and u >= 6): return Seq([I('s_nop 0')] * 5)
        s(f's_add_u32 s{sU1}, s{sHB2 if m == 2 else sHB1}, {b * 4096}')
        for i in range(4):
            s(f'buffer_load_dwordx4 {vr(self.HREG[u] + 4*i, 4)}, v{vH}, s[{sWS}:{sWS+3}], s{sU1} offen offset:{i*1024}{self.scl}')
        return s

    def touch(self, mats, t=70):
        s = Seq()
        if not mats: return s
        s(f"""
        v_lshlrev_b32 v{t}, 7, v{vL}
        s_lshl_b32 s{sU0}, s2, 3
        s_add_u32 s{sU0}, s{sU0}, s{sW}
        s_mov_b32 m0, {L_DUM}
        """)
        for c in mats:
            r, n = dict(q=(sWQ, 6), g=(sWG, 7), u=(sWU, 7), d=(sWD, 7), o=(sWO, 2), x=(sX, 8))[c]
            s(f's_mul_i32 s{sU1}, s{sU0}, {n * 128}\ns_mov_b64 exec, {(1 << n) - 1}')
            s(f'buffer_load_dword v{t}, s[{r}:{r+3}], s{sU1} offen lds')
        s('s_mov_b64 exec, -1')
        return s

    def gemm2(self, ty):
        a = Seq()
        AD, AS = 96, 160
        aW = [4, 5]; XR = 8; vXO = 12; eW = [13, 14, 15]; eR = 16
        a(f"""
        v_lshrrev_b32 v{T[0]}, 5, v{vL}
        v_bfe_u32 v{T[1]}, v{vL}, 2, 2
        v_lshl_add_u32 v{T[0]}, v{T[0]}, 3, v{T[1]}
        s_lshl_b32 s{sT0}, s{sR}, 13
        s_add_u32 s{sT1}, s{sT0}, 65536
        v_lshl_add_u32 v{T[0]}, v{T[0]}, 7, s{sT1}
        v_bfe_u32 v{T[1]}, v{vL}, 3, 1
        v_bfe_u32 v{T[2]}, v{vL}, 4, 1
        v_lshl_or_b32 v{T[1]}, v{T[1]}, 1, v{T[2]}
        v_xor_b32 v{T[1]}, s{sR}, v{T[1]}
        v_lshl_add_u32 v{T[0]}, v{T[1]}, 5, v{T[0]}
        v_and_b32 v{T[1]}, 1, v{vL}
        v_lshl_add_u32 v{T[0]}, v{T[1]}, 4, v{T[0]}
        v_bfe_u32 v{T[1]}, v{vL}, 1, 1
        v_lshl_add_u32 v{aW[0]}, v{T[1]}, 3, v{T[0]}
        v_xor_b32 v{aW[1]}, 64, v{aW[0]}
        """)
        win = [1]
        def reads(n):
            u, i = divmod(n, 4); L = []
            base = self.SLOTS[14 + u] * SLOT; w = base // 65536
            hd = Seq()
            if w != win[0]:
                d = (w - win[0]) * 65536; win[0] = w
                for r in aW: hd(f'v_add_u32 v{r}, 0x{d & 0xffffffff:x}, v{r}')
            buf = WF + 8 * (n % 3)
            for c in range(2):
                for t in range(2):
                    s = Seq()
                    if not L: s += hd
                    s(f'ds_read_b64_tr_b16 {vr(buf+4*c+2*t,2)}, v{aW[c]} offset:{base - w*65536 + i*2048 + t*512}')
                    L.append(s)
            return L
        for n in (0, 1):
            for r in reads(n): a += r
        a(f"""
        s_lshl_b32 s{sT1}, s{sC}, 15
        s_add_u32 s{sT0}, s{sT0}, s{sT1}
        v_add_u32 v{eR}, s{sT0}, v{vH}
        v_xor_b32 v{eW[0]}, 0x2000, v{eR}
        v_xor_b32 v{eW[1]}, 0x4000, v{eR}
        v_xor_b32 v{eW[2]}, 0x6000, v{eR}
        v_add_u32 v{T[4]}, {3*SLOT}, v{eW[0]}
        v_add_u32 v{T[5]}, {3*SLOT}, v{eW[1]}
        v_add_u32 v{T[6]}, {3*SLOT}, v{eW[2]}
        v_add_u32 v{T[7]}, {3*SLOT}, v{eR}
        v_and_b32 v{T[0]}, 31, v{vL}
        v_lshrrev_b32 v{T[1]}, 5, v{vL}
        v_lshlrev_b32 v{T[1]}, 4, v{T[1]}
        v_lshl_add_u32 v{vXO}, v{T[0]}, 10, v{T[1]}
        """)
        def bar(s, *tags):
            for t in tags: s.waitvm(t)
            s.waitlgkm0(); s('s_barrier')
        def boundary(u):
            s = Seq(); post = []
            if u == 2:
                bar(s, 'hst2', 'st16', 'st17'); s += self.signal(sFP, 256)
                post = self.stage_dmas(ty, 18)[3:] + self.stage_dmas(ty, 19) + self.stage_dmas(ty, 20)
                x = Seq(); x(f'buffer_load_dwordx4 {vr(XR,4)}, v{vXO}, s[{sX}:{sX+3}], s{sXO} offen'); post.append(x)
            elif u == 4:
                bar(s, 'st18')
                s(f'buffer_load_dword v{vP}, off, s[{sWS}:{sWS+3}], s{sFC} offset:256 sc0 sc1')
                post = self.stage_dmas(ty, 21) + self.stage_dmas(ty, 22)
            elif u == 5:
                self.stamp(s)
                self.poll(s, vP, sFC, 256, 16)
                self.stamp(s)
                for v in (6, 7, 8): s += self.hloads(v)
                bar(s, 'st19', 'st20')
            elif u == 7: bar(s, 'st21', 'st22')
            elif u == 8: bar(s)
            else: return None, []
            if u in (2, 7): self.stamp(s)
            return s, post
        PD, PS, XU = 192, 216, 240
        pend = []
        for n in range(36):
            u, i = divmod(n, 4)
            A = AD if u < 7 else AS
            M = [f'v_mfma_f32_32x32x16_bf16 {vr(A+16*c,16)}, {vr(WF+8*(n%3)+4*c,4)}, {vr(self.HREG[u]+4*i,4)}, {"0" if n in (0, 28) else vr(A+16*c,16)}' for c in range(2)]
            bnd = None
            if n + 2 < 36 and (n + 2) % 4 == 0: bnd, post = boundary((n + 2) // 4)
            R = reads(n + 2) if n + 2 < 36 else [Seq()] * 4
            if n == 28:
                for k in range(3):
                    for h in range(2):
                        x = Seq(); x(f'ds_write_b128 v{T[4+k]}, {vr(AD+8*(k+1)+4*h,4)} offset:{(k+1)*2048 + h*1024}'); pend.append(x)
            if bnd is not None:
                for p in pend: a += p
                a(M[0]); a += bnd; pend = list(post)
                for r in R: a += r
                if n + 2 == 32:
                    for k in range(3):
                        for h in range(2): a(f'ds_read_b128 {vr(PD+8*k+4*h,4)}, v{T[7]} offset:{(k+1)*2048 + h*1024}')
                    z = Seq()
                    for i2 in range(8): z(f'v_add_f32 v{PD+i2}, v{PD+i2}, v{AD+i2}')
                    for i2 in range(8): z(f'v_add_f32 v{PD+8+i2}, v{PD+8+i2}, v{PD+16+i2}')
                    for i2 in range(8): z(f'v_add_f32 v{PD+i2}, v{PD+i2}, v{PD+8+i2}')
                    for i2 in range(8): z(f'v_mul_f32 v{PD+8+i2}, {f2u(-LOG2E)}, v{PD+i2}')
                    for i2 in range(8): z(f'v_exp_f32 v{PD+8+i2}, v{PD+8+i2}')
                    for i2 in range(4): z(f'v_lshlrev_b32 v{XU+2*i2}, 16, v{XR+i2}\nv_and_b32 v{XU+2*i2+1}, 0xffff0000, v{XR+i2}')
                    for i2 in range(8): z(f'v_add_f32 v{PD+8+i2}, 1.0, v{PD+8+i2}')
                    for i2 in range(8): z(f'v_rcp_f32 v{PD+8+i2}, v{PD+8+i2}')
                    for i2 in range(8): z(f'v_mul_f32 v{PD+i2}, v{PD+i2}, v{PD+8+i2}')
                    pend = [Seq()] + [Seq(z[k:k+8]) for k in range(0, len(z), 8)]
                a(M[1])
            else:
                npop = 2 if n >= 28 and n < 30 else 1
                a(M[0]); a += R[0]; a += R[1]
                for _ in range(npop):
                    if pend: a += pend.pop(0)
                a(M[1]); a += R[2]; a += R[3]
                for _ in range(npop):
                    if pend: a += pend.pop(0)
        for p in pend: a += p
        self.stamp(a)
        for k in range(3):
            for h in range(2): a(f'ds_write_b128 v{eW[k]}, {vr(AS+8*(k+1)+4*h,4)} offset:{(k+1)*2048 + h*1024}')
        bar(a)
        for k in range(3):
            for h in range(2): a(f'ds_read_b128 {vr(PS+8*k+4*h,4)}, v{eR} offset:{(k+1)*2048 + h*1024}')
        for i in range(8): a(f'v_add_f32 v{AS+i}, v{AS+i}, v{PS+i}')
        for i in range(8): a(f'v_add_f32 v{AS+i}, v{AS+i}, v{PS+8+i}')
        for i in range(8): a(f'v_add_f32 v{AS+i}, v{AS+i}, v{PS+16+i}')
        for i in range(8): a(f'v_fmac_f32 v{XU+i}, v{AS+i}, v{PD+i}')
        for i in range(4): a(f'v_cvt_pk_bf16_f32 v{XU+i}, v{XU+2*i}, v{XU+2*i+1}')
        self.stamp(a)
        a(f'buffer_store_dwordx4 {vr(XU,4)}, v{vXO}, s[{sOUT}:{sOUT+3}], s{sXO} offen{self.osc}')
        return a

    def gemm2q(self, ty):
        a = Seq()
        AD, AS = 96, 160
        aW = [4, 5]; XR = 8; vXO = 12; eW = [13, 14, 15]; eR = 16
        a(f"""
        v_lshrrev_b32 v{T[0]}, 5, v{vL}
        v_bfe_u32 v{T[1]}, v{vL}, 2, 2
        v_lshl_add_u32 v{T[0]}, v{T[0]}, 3, v{T[1]}
        s_lshl_b32 s{sT0}, s{sR}, 13
        s_add_u32 s{sT1}, s{sT0}, 65536
        v_lshl_add_u32 v{T[0]}, v{T[0]}, 7, s{sT1}
        v_bfe_u32 v{T[1]}, v{vL}, 3, 1
        v_bfe_u32 v{T[2]}, v{vL}, 4, 1
        v_lshl_or_b32 v{T[1]}, v{T[1]}, 1, v{T[2]}
        v_xor_b32 v{T[1]}, s{sR}, v{T[1]}
        v_lshl_add_u32 v{T[0]}, v{T[1]}, 5, v{T[0]}
        v_and_b32 v{T[1]}, 1, v{vL}
        v_lshl_add_u32 v{T[0]}, v{T[1]}, 4, v{T[0]}
        v_bfe_u32 v{T[1]}, v{vL}, 1, 1
        v_lshl_add_u32 v{aW[0]}, v{T[1]}, 3, v{T[0]}
        v_xor_b32 v{aW[1]}, 64, v{aW[0]}
        """)
        win = [1]
        def ci(n):
            u, i = divmod(n, 4)
            if u in self.cord: return [(1 - i // 2, 2 * (i & 1) + k) for k in range(2)]
            return [(0, i), (1, i)]
        def reads(n):
            u, i = divmod(n, 4); L = []
            base = self.SLOTS[14 + u] * SLOT; w = base // 65536
            hd = Seq()
            if w != win[0]:
                d = (w - win[0]) * 65536; win[0] = w
                for r in aW: hd(f'v_add_u32 v{r}, 0x{d & 0xffffffff:x}, v{r}')
            buf = WF + 8 * (n % 3)
            for k, (c, i) in enumerate(ci(n)):
                for t in range(2):
                    s = Seq()
                    if not L: s += hd
                    s(f'ds_read_b64_tr_b16 {vr(buf+4*k+2*t,2)}, v{aW[c]} offset:{base - w*65536 + i*2048 + t*512}')
                    L.append(s)
            return L
        for n in (0, 1):
            for r in reads(n): a += r
        a(f"""
        s_lshl_b32 s{sT1}, s{sC}, 15
        s_add_u32 s{sT0}, s{sT0}, s{sT1}
        v_add_u32 v{eR}, s{sT0}, v{vH}
        v_xor_b32 v{eW[0]}, 0x2000, v{eR}
        v_xor_b32 v{eW[1]}, 0x4000, v{eR}
        v_xor_b32 v{eW[2]}, 0x6000, v{eR}
        v_add_u32 v{T[4]}, {3*SLOT}, v{eW[0]}
        v_add_u32 v{T[5]}, {3*SLOT}, v{eW[1]}
        v_add_u32 v{T[6]}, {3*SLOT}, v{eW[2]}
        v_add_u32 v{T[7]}, {3*SLOT}, v{eR}
        v_and_b32 v{T[0]}, 31, v{vL}
        v_lshrrev_b32 v{T[1]}, 5, v{vL}
        v_lshlrev_b32 v{T[1]}, 4, v{T[1]}
        v_lshl_add_u32 v{vXO}, v{T[0]}, 10, v{T[1]}
        """)
        def bar(s, *tags):
            for t in tags: s.waitvm(t)
            s.waitlgkm0(); s('s_barrier')
        PD, PS, XU = (128, 192, 152) if self.HREG[0] == 128 else (192, 216, 240)
        nB1 = self.nB1
        Q = []
        for w in (self.ko if isinstance(self.ko, str) else self.ko[ty]).split():
            if w[0] == 'h':
                u = int(w[1:])
                if u < 2 + self.f1n[ty]: continue
                h = self.hloads(u)
                Q += [(w, 0, Seq(h[:2]))] + [(w, 0, Seq([x])) for x in h[2:]]
            elif w[0] == 's':
                j = int(w[1:]); L = self.stage_dmas(ty, j)
                Q += [(w, nB1 if j < 21 else 14, d) for d in (L[3:] if j == 18 else L)]
            elif w == 'x':
                x = Seq(); x(f'buffer_load_dwordx4 {vr(XR,4)}, v{vXO}, s[{sX}:{sX+3}], s{sXO} offen'); Q.append((w, nB1, x))
            elif self.sent: continue
            elif w == 'p':
                x = Seq(); x(f'buffer_load_dword v{vP}, off, s[{sWS}:{sWS+3}], s{sFC} offset:256 sc0 sc1'); Q.append((w, nB1, x))
            elif w == 'c': Q.append((w, nB1, None))
        def pop(s):
            w, _, x = Q.pop(0)
            if w == 'c':
                self.stamp(s); self.poll(s, vP, sFC, 256, 16); self.stamp(s)
                return pop(s)
            s += x
            if w == 'p' and Q[0][0] != 'c': return 0
            return 1
        def flush(s, name):
            while any(q[0] == name for q in Q): pop(s)
        credit = 0.0
        order = [(1, 0), (1, 1), (2, 0), (2, 1), (0, 0), (0, 1)]
        DW = [f'ds_write_b128 v{T[4+k]}, {vr(AD+8*(k+1)+4*h,4)} offset:{(k+1)*2048 + h*1024}' for k, h in order]
        SW = [f'ds_write_b128 v{eW[k]}, {vr(AS+8*(k+1)+4*h,4)} offset:{(k+1)*2048 + h*1024}' for k, h in order]
        assert min(self.dw) >= (52 if 6 in self.cord else 56) and min(self.dw[4:]) >= 56 and max(self.dw) <= 2 * self.nb
        assert len(self.sw) <= 4 and (not self.sw or (8 in self.cord and min(self.sw) >= 68))
        pend = []; seen = set()
        for n in range(36):
            u, i = divmod(n, 4)
            A = AD if u < 7 else AS
            M = [f'v_mfma_f32_32x32x16_bf16 {vr(A+16*c,16)}, {vr(WF+8*(n%3)+4*k,4)}, {vr(self.HREG[u]+4*j,4)}, {"0" if n in (0, 28) else vr(A+16*c,16)}' for k, (c, j) in enumerate(ci(n))]
            flush(a, f'h{u}')
            R = reads(n + 2) if n + 2 < 36 else [Seq()] * 4
            if self.sent and n in (16, 24): self.stamp(a)
            for c, j in ci(n):
                if self.sent and u >= (2 if self.sent == 1 else 6) and (u, j) not in seen: self.hcheck(a, u, j, T[0])
                seen.add((u, j))
            a.need(WF + 8 * (n % 3), 8)
            a(M[0])
            if n == 6 and (nB1 > 6 or self.sent):
                bar(a, 'st16', 'st17')
                if self.sent: self.stamp(a)
            if n == nB1 and not self.sent:
                bar(a, 'hst2', 'st16', 'st17'); a += self.signal(sFP, 256); self.stamp(a)
            if n == self.nb:
                flush(a, 'x')
                for k, p in enumerate(self.dw):
                    if p == 2 * n: a(DW[k])
            if n in (14, 18, 22, 26, 30):
                t = 14 + (n + 2) // 4
                flush(a, f's{t}')
                bar(a, f'st{t}')
                if n == 26: self.stamp(a)
            elif n == self.nb: bar(a)
            if n == self.nb:
                for r in R: a += r
                R = [Seq()] * 4
                for k in range(3):
                    for h in range(2): a(f'ds_read_b128 {vr(PD+8*k+4*h,4)}, v{T[7]} offset:{(k+1)*2048 + h*1024}')
                z = Seq()
                for i2 in range(4): z(f'v_lshlrev_b32 v{XU+2*i2}, 16, v{XR+i2}\nv_and_b32 v{XU+2*i2+1}, 0xffff0000, v{XR+i2}')
                for i2 in range(8): z(f'v_add_f32 v{PD+i2}, v{PD+i2}, v{AD+i2}')
                for i2 in range(8): z(f'v_add_f32 v{PD+8+i2}, v{PD+8+i2}, v{PD+16+i2}')
                for i2 in range(8): z(f'v_add_f32 v{PD+i2}, v{PD+i2}, v{PD+8+i2}')
                for i2 in range(8): z(f'v_mul_f32 v{PD+8+i2}, {f2u(-LOG2E)}, v{PD+i2}')
                for i2 in range(8): z(f'v_exp_f32 v{PD+8+i2}, v{PD+8+i2}')
                for i2 in range(8): z(f'v_add_f32 v{PD+8+i2}, 1.0, v{PD+8+i2}')
                for i2 in range(8): z(f'v_rcp_f32 v{PD+8+i2}, v{PD+8+i2}')
                for i2 in range(8): z(f'v_mul_f32 v{PD+i2}, v{PD+i2}, v{PD+8+i2}')
                pend = [Seq()]
                for x in z:
                    if len(pend) == 1 or sum(y.cost for y in pend[-1]) + x.cost > self.zr: pend.append(Seq())
                    pend[-1].append(x)
            kq = self.kq if not isinstance(self.kq[0], list) else self.kq[ty]
            rate = kq[min(u, len(kq) - 1)]
            for c in range(2):
                if c: a(M[1])
                if pend: a += pend.pop(0)
                a += R[2 * c]; a += R[2 * c + 1]
                credit += rate / 2
                while credit >= 1 and Q and Q[0][1] <= n: credit -= pop(a)
                credit = min(credit, 1.99)
                for k, p in enumerate(self.dw):
                    if p == 2 * n + c and p != 2 * self.nb: a(DW[k])
                for k, p in enumerate(self.sw):
                    if p == 2 * n + c: a(SW[k])
        assert not Q
        self.stamp(a)
        z = [x for p in pend for x in p]
        for w in SW[len(self.sw):]:
            c = 0
            while z and c < self.zi: c += z[0].cost; a.append(z.pop(0))
            a(w)
        hp = len(z) * 2 // 3
        a += z[:hp]
        bar(a)
        for k in range(3):
            for h in range(2): a(f'ds_read_b128 {vr(PS+8*k+4*h,4)}, v{eR} offset:{(k+1)*2048 + h*1024}')
        a += z[hp:]
        for i in range(8): a(f'v_add_f32 v{AS+i}, v{AS+i}, v{PS+i}')
        for i in range(8): a(f'v_add_f32 v{AS+i}, v{AS+i}, v{PS+8+i}')
        for i in range(8): a(f'v_add_f32 v{AS+i}, v{AS+i}, v{PS+16+i}')
        for i in range(8): a(f'v_fmac_f32 v{XU+i}, v{AS+i}, v{PD+i}')
        for i in range(4): a(f'v_cvt_pk_bf16_f32 v{XU+i}, v{XU+2*i}, v{XU+2*i+1}')
        self.stamp(a)
        a(f'buffer_store_dwordx4 {vr(XU,4)}, v{vXO}, s[{sOUT}:{sOUT+3}], s{sXO} offen{self.osc}')
        return a

    def phase_end(self, m, ph):
        m.comment('phase end')
        a, t = (20, 24) if ph == 0 else (T[0], T[1])
        if ph: m(f"""
        v_and_b32 v{T[0]}, 15, v{vL}
        v_lshrrev_b32 v{T[1]}, 5, v{vL}
        v_lshl_add_u32 v{T[0]}, v{T[0]}, 2, s{sCSW}
        v_lshl_add_u32 v{T[0]}, v{T[1]}, 8, v{T[0]}
        """)
        m(f"""
        v_cvt_pk_bf16_f32 v{t}, v{CS}, v{CS}
        v_lshlrev_b32 v{t}, 16, v{t}
        v_sub_f32 v{t}, v{CS}, v{t}
        v_cvt_pk_bf16_f32 v{t}, v{CS}, v{t}
        """)
        m(f'ds_write_b32 v{a}, v{t} offset:{ph*1024}', 'xch')
        if ph == 0:
            m(f"""
            v_cndmask_b32 v{SUM+1}, v{GRAM}, v{GRAM+1}, s[{sM_l1}:{sM_l1+1}]
            v_cndmask_b32 v{SUM+1}, v{SUM+1}, v{GRAM+2}, s[{sM_l2}:{sM_l2+1}]
            v_cndmask_b32 v{SUM+1}, v{SUM+1}, v{GRAM+3}, s[{sM_l3}:{sM_l3+1}]
            """)
            m(f'ds_write_b64 v21, v[{SUM}:{SUM+1}]', 'xch')

    def epi_head(self, ph):
        s = Seq()
        s.gap(2)
        s.waitlg('xch')
        s('s_barrier')
        return s

    def ln_consts(self, mid):
        s = Seq()
        s('ds_read_b64 v[24:25], v22\nds_read_b64 v[28:29], v23')
        s += mid
        s.gap(3)
        for rs in range(2):
            c0, c1, ve = LNC[rs], LNC[rs] + 1, LNC[rs] + 2
            S, Q, r = ((24, 25, 25), (28, 29, 27))[rs]; b, t = BX[rs], BX[rs] + 1
            s(f"""
            v_mul_f32 v{S}, {f2u(-1.0/512)}, v{S}
            v_mul_f32 v{Q}, {f2u(1.0/512)}, v{Q}
            v_fma_f32 v{Q}, -v{S}, v{S}, v{Q}
            v_cvt_pk_bf16_f32 v{b}, v{S}, v{S}
            v_max_f32 v{Q}, 0, v{Q}
            v_lshlrev_b32 v{t}, 16, v{b}
            v_add_f32 v{ve}, {f2u(1e-5)}, v{Q}
            v_sub_f32 v{t}, v{S}, v{t}
            v_rsq_f32 v{r}, v{ve}
            v_cvt_pk_bf16_f32 v{t}, v{t}, v{t}
            v_cndmask_b32 v{b}, v{b}, v{t}, s[{sM_hi32}:{sM_hi32+1}]
            v_mov_b32 v{t}, 0
            """)
            if rs == 0: s(f'v_mul_f32 v{c0}, {f2u(C0)}, v{r}\nv_mul_f32 v{c1}, v{r}, v{r}')
            else: s(f'v_mul_f32 v{c1}, v{r}, v{r}\nv_mul_f32 v{c0}, {f2u(C0)}, v{r}')
            s(f'v_mul_f32 v{c1}, {f2u(0.044715)}, v{c1}\nv_mul_f32 v{c1}, v{c1}, v{c0}')
        return s

    def corr(self, ph, tiles):
        r = Seq(); s = Seq(); A = ACC[ph & 1]
        a0, a1 = (26, 27) if ph == 0 else (T[1], T[3])
        if ph:
            r(f"""
            v_and_b32 v{T[1]}, 31, v{vL}
            v_lshl_add_u32 v{T[1]}, v{T[1]}, 2, s{sCSR}
            v_xor_b32 v{T[3]}, 128, v{T[1]}
            """)
            for k in range(2, len(tiles)): r(f'v_mov_b32 v{T[2*k+1]}, 0')
        for k, (blk, sig) in enumerate(tiles):
            r(f'ds_read_b32 v{T[2*k]}, v{a1 if sig else a0} offset:{ph*1024 + blk*256}')
        for k, (blk, sig) in enumerate(tiles):
            for rs in range(2):
                d = A + blk * 16 + sig * 8 + rs * 4
                s(f'v_mfma_f32_16x16x16_bf16 {vr(d,4)}, {vr(T[2*k],2)}, {vr(BX[rs],2)}, {vr(d,4)}')
        if ph == 0: return r, s
        r += s
        return r

    def gelu(self, A, nsig, addr, tag):
        s = Seq()
        for sig in range(nsig):
            for rs in range(2):
                a = A + sig * 8 + rs * 4; b = a + 16; c0, c1, ve = LNC[rs], LNC[rs] + 1, LNC[rs] + 2
                for i in range(4): s(f'v_mul_f32 v{T[i]}, v{a+i}, v{a+i}')
                for i in range(4): s(f'v_fma_f32 v{T[i]}, v{T[i]}, v{c1}, v{c0}')
                for i in range(4):
                    s(f'v_mul_f32 v{b+i}, v{a+i}, v{b+i}')
                    s(f'v_mul_f32 v{a+i}, v{T[i]}, v{a+i}')
                for i in range(4): s(f'v_exp_f32 v{a+i}, v{a+i}')
                for i in range(4): s(f'v_fma_f32 v{a+i}, v{a+i}, v{ve}, v{ve}')
                for i in range(4): s(f'v_rcp_f32 v{a+i}, v{a+i}')
                for i in range(4): s(f'v_mul_f32 v{b+i}, v{b+i}, v{a+i}')
                d = A + sig * 8 + rs * 2
                s(f'v_cvt_pk_bf16_f32 v{d}, v{b}, v{b+1}\nv_cvt_pk_bf16_f32 v{d+1}, v{b+2}, v{b+3}')
            d = A + sig * 8
            s(f'v_permlane16_swap_b32 v{d}, v{d+2}\nv_permlane16_swap_b32 v{d+1}, v{d+3}')
            addr(s, sig)
            s(f'buffer_store_dwordx4 {vr(d,4)}, v{vHS}, s[{sWS}:{sWS+3}], s{sT0} offen{self.sc}', tag)
        return s

    def qk_logits(self, s, K, L, ad):
        for sig in range(2):
            k = K + 8 * sig
            for i in range(4): s(f'v_cvt_pk_bf16_f32 v{k+i}, v{k+2*i}, v{k+2*i+1}')
            if sig == 0: s(f'ds_read_b64_tr_b16 {vr(K+4,2)}, v{ad}\nds_read_b64_tr_b16 {vr(K+6,2)}, v{ad} offset:128')
        for sig in range(2):
            k = K + 8 * sig
            s(f'v_permlane16_swap_b32 v{k}, v{k+2}\nv_permlane16_swap_b32 v{k+1}, v{k+3}')
        for sig, m in ((1, sM_s1), (0, sM_s0)):
            for i in range(4): s(f'v_cndmask_b32 v{K+8*sig+4+i}, 0, v{K+4+i}, s[{m}:{m+1}]')
        s(f'v_mfma_f32_32x32x16_bf16 {vr(L,16)}, {vr(K+12,4)}, {vr(K+8,4)}, 0')
        s(f'v_mfma_f32_32x32x16_bf16 {vr(L,16)}, {vr(K+4,4)}, {vr(K,4)}, {vr(L,16)}')

    def exps(self, s, L, E):
        mx, mn, sc = T[0], T[2], T[4]
        s(f"""
        v_cndmask_b32 v{sc}, v{LNC[0]}, v{LNC[1]}, s[{sM_b4}:{sM_b4+1}]
        v_mul_f32 v{sc}, {f2u(LOG2E / C0)}, v{sc}
        """)
        s(f'v_max3_f32 v{mx}, v{L}, v{L+1}, v{L+2}\nv_min3_f32 v{mn}, v{L}, v{L+1}, v{L+2}')
        for i in range(3, 15, 2):
            s(f'v_max3_f32 v{mx}, v{mx}, v{L+i}, v{L+i+1}\nv_min3_f32 v{mn}, v{mn}, v{L+i}, v{L+i+1}')
        s(f'v_max_f32 v{mx}, v{mx}, v{L+15}\nv_min_f32 v{mn}, v{mn}, v{L+15}')
        s(f'v_mul_f32 v{mx}, v{mx}, v{sc}\nv_mul_f32 v{mn}, v{mn}, v{sc}')
        for i in range(0, 16, 2):
            for u in (i, i + 1):
                s(f'v_fma_f32 v{E+u}, v{L+u}, v{sc}, -v{mx}')
                s(f'v_fma_f32 v{L+u}, -v{L+u}, v{sc}, v{mn}')
            for u in (i, i + 1):
                s(f'v_exp_f32 v{E+u}, v{E+u}\nv_exp_f32 v{L+u}, v{L+u}')

    def epi_kv(self):
        s = Seq(); K = ACC[0]; V = K + 16
        a0, a1 = T[3], T[6]
        s(f"""
        s_mul_i32 s{sT0}, s{sR}, {32*RECP}
        s_mul_i32 s{sT1}, s{sC}, {2*RECH}
        s_add_u32 s{sT0}, s{sT0}, s{sT1}
        s_add_u32 s{sPC}, s{sT0}, {REC}
        s_and_b32 s{sT1}, s{sR}, 1
        s_mul_i32 s{sT1}, s{sT1}, {RECH}
        s_add_u32 s{sT2}, s{sPC}, s{sT1}
        s_sub_u32 s{sT3}, s{sPC}, s{sT1}
        s_add_u32 s{sT3}, s{sT3}, {RECH}
        """)
        q = Seq(); self.qk_logits(q, K, V, T[1])
        km = [i for i, x in enumerate(q) if isinstance(x, I) and x.kind == 'mfma'][0]
        s += q[:km]
        s(f'v_add_u32 v{a1}, s{sT3}, v{a0}\nv_add_u32 v{a0}, s{sT2}, v{a0}')
        for sig in range(2):
            for rs in range(2):
                v = V + sig * 8 + rs * 4
                for i in range(4): s(f'v_mul_f32 v{v+i}, v{v+i}, v{LNC[rs]}')
                s(f'v_cvt_pk_bf16_f32 v{v}, v{v}, v{v+1}\nv_cvt_pk_bf16_f32 v{v+1}, v{v+2}, v{v+3}')
                s(f'ds_write_b64 v{a1 if sig else a0}, {vr(v,2)} offset:{64 + rs*16*RECP}')
        s += q[km:]
        s(f"""
        v_add_u32 v{T[5]}, s{sPC}, v{T[5]}
        s_mul_i32 s{sT1}, s{sR}, {RECH}
        s_add_u32 s{sT1}, s{sT1}, {REC}
        v_add_u32 v{T[7]}, s{sT1}, v{T[7]}
        v_lshl_add_u32 v{T[1]}, s{sC}, 5, v{T[7]}
        """)
        self.exps(s, V, K)
        sp, sm = T[6], T[3]
        b = Seq()
        b(f'v_add_f32 v{sp}, v{K}, v{K+1}\nv_add_f32 v{sm}, v{V}, v{V+1}')
        for i in range(2, 16): b(f'v_add_f32 v{sp}, v{sp}, v{K+i}\nv_add_f32 v{sm}, v{sm}, v{V+i}')
        b(f'v_rcp_f32 v{sp}, v{sp}\nv_rcp_f32 v{sm}, v{sm}')
        for (E, sc, off) in ((K, sp, 0), (V, sm, 32)):
            for h in range(2):
                for i in range(8 * h, 8 * h + 8): b(f'v_mul_f32 v{E+i}, v{E+i}, v{sc}')
                for i in range(4 * h, 4 * h + 4): b(f'v_cvt_pk_bf16_f32 v{E+i}, v{E+2*i}, v{E+2*i+1}')
                b(f'ds_write_b128 v{T[5]}, {vr(E+4*h,4)} offset:{off+16*h}', 'rec')
        if self.burst:
            s.append(P('atom_begin')); s.append(P('burst')); s += b[:self.burst]; s.append(P('atom_end'))
        s += b[self.burst:]
        s.gap(2)
        s.waitlg('rec')
        s('s_barrier')
        for k in range(4):
            for t in range(2):
                o = (32 * k + t) * RECP
                s(f'ds_read_b64_tr_b16 {vr(K+8*k+2*t,2)}, v{T[7]} offset:{o+64}')
                s(f'ds_read_b64_tr_b16 {vr(K+8*k+4+2*t,2)}, v{T[1]} offset:{o}')
        a0 = vP
        s.gap(2)
        for k in range(4):
            s(f'v_mfma_f32_16x16x32_bf16 {vr(T[0],4)}, {vr(K+8*k,4)}, {vr(K+8*k+4,4)}, {"0" if k == 0 else vr(T[0],4)}')
            s(f'v_mfma_f32_16x16x32_bf16 {vr(T[4],4)}, {vr(SEL[0],4)}, {vr(K+8*k+4,4)}, {"0" if k == 0 else vr(T[4],4)}')
        s.gap(2)
        s(f"""
        s_lshl_b32 s{sT1}, s{sC}, 6
        s_add_u32 s{sT1}, s{sT1}, s{sKV}
        s_lshl_b32 s{sT0}, s{sR}, 11
        s_add_u32 s{sPC}, s{sT0}, s{sT1}
        s_lshl_b32 s{sT0}, s{sR}, 7
        s_add_u32 s{sT3}, s{sT0}, s{sT1}
        s_add_u32 s{sT3}, s{sT3}, {KV_Z}
        """)
        for i in range(4):
            s(f'buffer_atomic_add_f32 v{T[i]}, v{a0}, s[{sWS}:{sWS+3}], s{sPC} offen offset:{i*128} sc1', 'kvat')
        s(f'v_mul_f32 v{T[4]}, {f2u(C0)}, v{T[4]}')
        s.atom(f"""
        s_mov_b64 exec, 0xffff
        buffer_atomic_add_f32 v{T[4]}, v{a0}, s[{sWS}:{sWS+3}], s{sT3} offen sc1
        s_mov_b64 exec, -1
        """, 'kvat')
        return s

    def poll(self, s, vd, soff, imm, want):
        l1, l2 = self.lab('poll'), self.lab('ok')
        if 'nopoll' in self.dbg: want = 0
        b = Seq()
        b(f'v_readfirstlane_b32 s{sT1}, v{vd}')
        b(f's_cmp_ge_u32 s{sT1}, {want}\ns_cbranch_scc1 {l2}')
        b.append(P('skip_begin'))
        b(f's_mov_b32 s{sT2}, 0\n{l1}:')
        b(f's_sleep 1')
        b(f'buffer_load_dword v{vd}, off, s[{sWS}:{sWS+3}], s{soff} offset:{imm} sc0 sc1')
        b(f's_waitcnt vmcnt(0)')
        b(f'v_readfirstlane_b32 s{sT1}, v{vd}')
        b(f's_add_u32 s{sT2}, s{sT2}, 1\ns_cmp_ge_u32 s{sT2}, 0x20000\ns_cbranch_scc1 {l2}')
        b(f's_cmp_lt_u32 s{sT1}, {want}\ns_cbranch_scc1 {l1}\n{l2}:')
        b.append(P('skip_end'))
        for x in b: x.cost = 0
        s += b

    def zpoll(self, s):
        l1, l2 = self.lab('poll'), self.lab('ok')
        s(f'v_cmp_eq_u32 vcc, 1, v29')
        s(f's_nop 3\ns_cmp_eq_u32 vcc_lo, 0xff\ns_cbranch_scc1 {l2}')
        s.append(P('skip_begin'))
        s(f's_mov_b32 s{sT2}, 0\n{l1}:')
        s(f's_sleep 1')
        s(f'buffer_load_dword v29, v28, s[{sDB}:{sDB+3}], 0 offen sc0 sc1')
        s(f's_waitcnt vmcnt(0)')
        s(f'v_cmp_eq_u32 vcc, 1, v29')
        s(f's_add_u32 s{sT2}, s{sT2}, 1\ns_cmp_ge_u32 s{sT2}, 0x20000\ns_cbranch_scc1 {l2}')
        s(f's_nop 1\ns_cmp_lg_u32 vcc_lo, 0xff\ns_cbranch_scc1 {l1}\n{l2}:')
        s.append(P('skip_end'))

    def signal(self, soff, imm):
        s = Seq()
        s.atom(f"""
        s_mov_b64 exec, 1
        buffer_atomic_inc v{SEL[0]}, off, s[{sWS}:{sWS+3}], s{soff} offset:{imm} sc1
        s_mov_b64 exec, -1
        """)
        return s

    KVF = 128
    def kv_fetch(self):
        s = Seq(); F = self.KVF
        for i in range(4): s(f'v_mov_b32 v{F+4+i}, 1.0')
        s.append(P('atom_begin'))
        self.poll(s, vP2, sU0, 0, 16)
        s(f"""
        s_add_u32 s{sT0}, s{sKV}, s{sM0}
        buffer_load_dwordx4 {vr(F,4)}, v{vH}, s[{sWS}:{sWS+3}], s{sT0} offen sc0 sc1
        s_add_u32 s{sT0}, s{sKV}, {KV_Z}
        s_mov_b32 exec_hi, 0
        buffer_load_dwordx4 {vr(F+4,4)}, v{vH}, s[{sWS}:{sWS+3}], s{sT0} offen sc0 sc1
        s_mov_b32 exec_hi, -1
        """)
        s.append(P('atom_end'))
        return s

    def kv_stage(self):
        s = Seq(); F = self.KVF; a0, a1 = T[1], T[3]
        s(f"""
        v_lshrrev_b32 v{a0}, 1, v{vH}
        s_lshr_b32 s{sT0}, s{sM0}, 1
        s_add_u32 s{sT0}, s{sT0}, {L_KV}
        v_add_u32 v{a1}, s{sT0}, v{a0}
        v_add_u32 v{a0}, {L_KZ}, v{a0}
        """)
        for i in range(4): s(f'v_cvt_pk_bf16_f32 v{F+i}, v{F+2*i}, v{F+2*i+1}')
        s(f'ds_write_b64 v{a1}, {vr(F,2)}\nds_write_b64 v{a0}, {vr(F+2,2)}', 'kvw')
        s(f"""
        v_and_b32 v{T[4]}, 3, v{vL}
        v_bfe_u32 v{T[7]}, v{vL}, 2, 1
        v_lshl_add_u32 v{T[4]}, v{T[7]}, 3, v{T[4]}
        v_bfe_u32 v{T[7]}, v{vL}, 3, 1
        v_lshl_add_u32 v{T[4]}, v{T[7]}, 2, v{T[4]}
        s_lshl_b32 s{sT0}, s{sC}, 1
        s_and_b32 s{sT1}, s{sR}, 1
        s_or_b32 s{sT0}, s{sT0}, s{sT1}
        s_lshl_b32 s{sT1}, s{sT0}, 10
        s_add_u32 s{sT1}, s{sT1}, {L_KV}
        s_lshl_b32 s{sT0}, s{sT0}, 6
        s_add_u32 s{sT0}, s{sT0}, {L_KZ}
        v_lshl_add_u32 v{T[4]}, v{T[4]}, 6, s{sT1}
        v_and_b32 v{T[7]}, 1, v{vL}
        v_lshl_add_u32 v{T[7]}, v{T[7]}, 8, s{sT0}
        v_cndmask_b32 v{T[4]}, v{T[4]}, v{T[7]}, s[{sM_b4}:{sM_b4+1}]
        v_lshrrev_b32 v{T[7]}, 5, v{vL}
        v_lshl_add_u32 v{T[4]}, v{T[7]}, 4, v{T[4]}
        v_mov_b32 v{T[7]}, 0x400
        v_cndmask_b32 v{T[7]}, v{T[7]}, 64, s[{sM_b4}:{sM_b4+1}]
        v_xor_b32 v{T[7]}, v{T[7]}, v{T[4]}
        """)
        r = Seq()
        r.waitlg('kvw')
        r('s_barrier')
        for sig in range(2):
            for sg in range(2):
                r(f'ds_read_b128 {vr(F+8*sig+4*sg,4)}, v{T[7] if sig else T[4]} offset:{sg*32}')
        return s, r

    def epi_q(self, mid, C):
        s = Seq(); Q = ACC[0]; L = Q + 16; F = self.KVF
        if self.kvpos == 1: s += self.kv_fetch()
        self.phi_addr(s, T[5], T[4])
        self.qk_logits(s, Q, L, T[5])
        if self.kvpos == 2: s += self.kv_fetch()
        self.exps(s, L, Q)
        s += mid
        w, r = self.kv_stage()
        s += w
        for n, E in enumerate((Q, L)):
            for i in range(8): s(f'v_cvt_pk_bf16_f32 v{E+i}, v{E+2*i}, v{E+2*i+1}')
            if n == 0: s += r
            for i in range(4): s(f'v_permlane32_swap_b32 v{E+i}, v{E+4+i}')
        for sig in range(2):
            for sg, E in enumerate((Q, L)):
                s(f'v_mfma_f32_32x32x16_bf16 {vr(C[sig][sg],16)}, {vr(F+8*sig+4*sg,4)}, {vr(E+4*sig,4)}, 0')
        for sig in range(2):
            p, m = C[sig]
            s(f"""
            v_rcp_f32 v{p+9}, v{p+9}
            v_rcp_f32 v{m+9}, v{m+9}
            v_fmaak_f32 v{p+8}, v{p+8}, v{p+9}, {f2u(1e-6 * C0)}
            v_fmac_f32 v{p+8}, v{m+8}, v{m+9}
            v_rcp_f32 v{p+8}, v{p+8}
            v_mul_f32 v{p+9}, v{p+9}, v{p+8}
            v_mul_f32 v{m+9}, v{m+9}, v{p+8}
            """)
            for i in range(8): s(f'v_mul_f32 v{p+i}, v{p+i}, v{p+9}')
            for i in range(8): s(f'v_fmac_f32 v{p+i}, v{m+i}, v{m+9}')
            for i in range(4): s(f'v_cvt_pk_bf16_f32 v{p+i}, v{p+2*i}, v{p+2*i+1}')
            self.had(1, 2)(s, sig)
            s(f'buffer_store_dwordx4 {vr(p,4)}, v{vHS}, s[{sWS}:{sWS+3}], s{sT0} offen{self.sc}', 'hst2')
        return s

    def text(self):
        stats = {}
        pro = self.prologue()
        pro(f's_cmp_eq_u32 s{sTY}, 1')
        pro.waitlgkm0()
        pro('s_cbranch_scc1 K1_TYPEB')
        l0, st = finalize(pro, None, stats)
        n0 = self.nst
        A = self.body(0); A('s_endpgm')
        self.nst = n0
        B = self.body(1)
        if self.ool: B('s_endpgm')
        la, _ = finalize(A, st, stats); lb, _ = finalize(B, st, stats)
        self.stats = stats
        return '\n'.join(l0 + la + ['K1_TYPEB:'] + lb + [x if x.endswith(':') else '    ' + x for x in self.ool]) + '\n'


HEADER = open('cdna_kernels/' + KNAME + '.s.ref').read().split('; Override')[0].rstrip('\n') if __import__('os').path.exists('cdna_kernels/' + KNAME + '.s.ref') else ''

def fused(path, **kw):
    k = KF(**kw)
    txt = kernel_text([dict(name=KNAME + '_kernel', body=k.text(), grid=256, block=512, lds=LDS_BYTES, vgpr=256, accum=256)], HEADER)
    open(path, 'w').write(txt)
    return k

if __name__ == '__main__':
    k = fused(sys.argv[1], **(eval(sys.argv[2]) if len(sys.argv) > 2 else {}))
    print(k.stats, k.left)
```

```python
import math, struct, sys
from g import *
from asmgen import kernel_text, KNAME

def f2u(x): return '0x%08x' % struct.unpack('<I', struct.pack('<f', x))[0]
LOG2E = 1.4426950408889634
C0 = -2.0 * LOG2E * math.sqrt(2.0 / math.pi)

H_TILE = 144 * 1024
KV_OFF = 64 * H_TILE
KV_PITCH = 10240
KV_HEAD = 16 * 128
KV_Z = 64 * 128
KV_CNT = 68 * 128
F_CNT = 70 * 128
WS_SIZE = KV_OFF + 8 * KV_PITCH
STAMP_OFF = 12 << 20
OOB = 0x7ff00000

X = lambda rs, s: 128 + s * 8 + rs * 4
ACC = [96, 64]
WF = 40
vL, vQ, vG, vHS = 0, 1, 2, 3
aT = {(0, 0): 4, (0, 1): 5, (1, 0): 6, (1, 1): 7}
SEL = [8, 12]; CS = 16
BX = [20, 22]
LNC = [24, 27]
vD, vP = 30, 31
T = list(range(32, 40))
vSC, vR32 = T[5], T[6]
vH, vP2 = vG, vQ
vXD = 64; aX = {(0, 0): 66, (0, 1): 67, (1, 0): 68, (1, 1): 69}
ONES = 72; SUM = 88; GRAM = 92
sX, sWQ, sWG, sWU, sWS, sPH, sDB = 4, 8, 12, 16, 20, 24, 28
sW, sR, sC, sRB, sGI, sTY, sM0, sA = 32, 33, 34, 35, 36, 37, 38, 39
sWD, sWO, sOUT = 40, 44, 48
sH0, sH1, sT0, sT1, sT2, sT3 = 68, 69, 70, 71, 72, 73
sCSW, sCSR = 74, 75
sMASK = 76
sM_l1, sM_l2, sM_l3, sM_hi32, sM_b4, sM_s0, sM_s1 = 76, 78, 80, 82, 84, 86, 88
sKV, sPC = 90, 91
sU0, sU1, sHB1, sHB2, sFC, sFP, sXO = 92, 93, 94, 95, 96, 97, 98
sSTL = [52, 54, 56, 58, 60, 62, 64, 66, 100, 24, 26, 8, 10, 12, 14, 16]
SLOT = 32768
REC = 98304; RECP = 112; RECH = 128 * RECP
MISC = 155648
L_ST = MISC; L_DUM = MISC + 1024; L_CS = MISC + 2048; L_PH = MISC + 2048 + 3 * 1024
L_KV = MISC; L_KZ = MISC + 7168
LDS_BYTES = 163840

def srd(a, d, off, size):
    a(f's_load_dwordx2 s[{d}:{d+1}], s[0:1], {off}')
    return f's_mov_b32 s{d+2}, {size}\ns_mov_b32 s{d+3}, 0x20000'

def m64(a, s, val):
    a(f's_mov_b32 s{s}, 0x{val & 0xffffffff:x}\ns_mov_b32 s{s+1}, 0x{val >> 32:x}')

class KF:
    def __init__(self, rate=(8.0, 8.0, 30.0), jE1=13, ls={}, kvpos=1, f0g=4, jK=None, slim=1, burst=0, stamps=False, sc=' sc0 sc1', scl=' sc0 sc1', nfirst=1, jE0=(10, 10), jS0=11, jS1=13, f1pos=1, jW=((10, 11), (10, 11)), jT=99, jT1=99, th=0, kvg=4, spread=10, pace=2, osc='', tch={0:'q',1:'g',2:'u',3:'x',4:'d',5:'o'}, kq=None, ko='h2 h3 h4 s18 s19 h5 s20 x p s21 c h6 s22 h7 h8', nB1=6, f1n=(0, 0), sent=0, jC=6, tsp=(16, 16), tld=(0, 0), zr=8, e1=None, jF=12, cord=(), dw=(56, 56, 57, 57, 58, 58), nb=30, sw=(), zi=0, dens=5, tdm=0, prio={}, late=0, s3=0, dbg=''):
        self.late = late; self.s3 = s3
        self.tdm = tdm; self.prio = prio
        self.dens = dens
        self.cord = cord; self.dw = dw; self.nb = nb; self.sw = sw; self.zi = zi
        self.e1 = e1; self.jF = jF
        self.sent = sent; self.jC = jC; self.tsp = tsp; self.tld = tld; self.zr = zr; self.ool = []
        self.kq = kq; self.ko = ko; self.nB1 = nB1; self.f1n = f1n
        self.tch = tch; self.jE1 = jE1; self.ls = ls; self.kvpos = kvpos; self.f0g = f0g; self.jK = jK or jS0; self.slim = slim; self.burst = burst
        self.osc = osc
        self.pace = pace
        self.jT = jT; self.jT1 = jT1; self.th = th; self.kvg = kvg; self.spread = spread
        self.dbg = dbg
        self.nfirst = nfirst
        self.rate = rate; self.stamps = stamps; self.sc = sc; self.scl = scl
        self.jE0 = jE0; self.jS0 = jS0; self.jS1 = jS1; self.f1pos = f1pos; self.jW = jW
        self.nst = 0; self.left = []
        self.nlab = 0
    def lab(self, b):
        self.nlab += 1
        return f'K1_{b}_{self.nlab}'
    def stamp(self, a):
        if self.stamps:
            a(f'{"s_memtime" if self.stamps == 2 else "s_memrealtime"} s[{sSTL[self.nst]}:{sSTL[self.nst]+1}]'); self.nst += 1

    def prologue(self):
        a = Seq()
        a('s_cmp_lt_u32 s2, 256\ns_cbranch_scc1 K1_GO\ns_endpgm\nK1_GO:')
        post = [srd(a, sX, 0, 2097152), srd(a, sWQ, 8, 1572864), srd(a, sWG, 40, 1835008), srd(a, sWU, 48, 1835008)]
        self.post2 = [srd(a, sWS, 80, (16 << 20) if self.stamps else WS_SIZE), srd(a, sPH, 16, 16384), srd(a, sDB, 72, 256),
                      srd(a, sWD, 56, 1835008), srd(a, sWO, 24, 524288), srd(a, sOUT, 64, 2097152)]
        self.stamp(a)
        a(f'''
        v_lshrrev_b32 v{T[5]}, 6, v0
        v_lshrrev_b32 v{T[0]}, 3, v0
        v_readfirstlane_b32 s{sW}, v{T[5]}
        v_and_b32 v{T[1]}, 7, v0
        v_bfe_u32 v{T[2]}, v0, 4, 3
        s_and_b32 s{sT0}, s2, 3
        s_lshl_b32 s{sT0}, s{sT0}, 2
        s_bfe_u32 s{sT1}, s2, 0x20003
        s_add_u32 s{sRB}, s{sT0}, s{sT1}
        s_and_b32 s{sT0}, s2, 4
        s_lshr_b32 s{sT1}, s2, 6
        s_add_u32 s{sGI}, s{sT0}, s{sT1}
        s_bfe_u32 s{sTY}, s2, 0x10005
        s_lshl_b32 s{sT2}, s{sRB}, 17
        v_xor_b32 v{T[3]}, v{T[2]}, v{T[1]}
        v_lshl_add_u32 v{T[3]}, v{T[3]}, 4, s{sT2}
        v_lshl_add_u32 v{vXD}, v{T[0]}, 10, v{T[3]}
        v_and_b32 v{T[3]}, 4, v{T[2]}
        v_and_b32 v{T[2]}, 1, v{T[2]}
        v_lshl_or_b32 v{T[3]}, v{T[2]}, 1, v{T[3]}
        v_xor_b32 v{T[3]}, v{T[3]}, v{T[1]}
        s_lshl_b32 s{sT0}, s{sGI}, 7
        s_lshl_b32 s{sT1}, s{sGI}, 8
        s_add_u32 s{sT1}, s{sT1}, 1024
        s_cmp_eq_u32 s{sTY}, 0
        s_cselect_b32 s{sT1}, s{sT0}, s{sT1}
        v_lshl_add_u32 v{T[4]}, v{T[3]}, 4, s{sT0}
        v_lshl_add_u32 v{T[3]}, v{T[3]}, 4, s{sT1}
        s_movk_i32 s{sT0}, 3072
        s_movk_i32 s{sT1}, 3584
        v_mad_u32_u24 v{vQ}, v{T[0]}, s{sT0}, v{T[4]}
        v_mad_u32_u24 v{vG}, v{T[0]}, s{sT1}, v{T[3]}
        s_lshl_b32 s{sM0}, s{sW}, 10
        ''')
        for p in post: a(p)
        return a

    def setup1(self, a):
        for p in self.post2: a(p)
        a(f'''
        v_and_b32 v{vL}, 63, v0
        s_and_b32 s{sR}, s{sW}, 3
        s_lshr_b32 s{sC}, s{sW}, 2
        v_lshlrev_b32 v{T[2]}, 2, v{T[2]}
        v_xor_b32 v{T[1]}, v{T[1]}, v{T[2]}
        s_lshr_b32 s{sT0}, s2, 5
        s_lshl_b32 s{sT0}, s{sT0}, 7
        v_lshl_add_u32 v{T[1]}, v{T[1]}, 4, s{sT0}
        v_lshl_add_u32 v{vD}, v{T[0]}, 10, v{T[1]}
        s_mul_i32 s{sKV}, s{sGI}, {KV_PITCH}
        s_add_u32 s{sKV}, s{sKV}, {KV_OFF}
        ''')

    def setup2(self, a):
        a(f'''
        v_lshrrev_b32 v{T[0]}, 4, v{vL}
        v_bfe_u32 v{T[1]}, v{vL}, 2, 2
        v_lshl_add_u32 v{T[2]}, v{T[0]}, 3, v{T[1]}
        v_lshlrev_b32 v{T[2]}, 7, v{T[2]}
        v_bfe_u32 v{T[3]}, v{vL}, 3, 2
        s_lshl_b32 s{sT0}, s{sC}, 1
        s_and_b32 s{sT1}, s{sR}, 1
        s_or_b32 s{sT0}, s{sT0}, s{sT1}
        v_xor_b32 v{T[3]}, s{sT0}, v{T[3]}
        v_lshl_add_u32 v{T[2]}, v{T[3]}, 5, v{T[2]}
        v_and_b32 v{T[3]}, 3, v{vL}
        v_lshl_add_u32 v{T[2]}, v{T[3]}, 3, v{T[2]}
        s_lshr_b32 s{sT1}, s{sR}, 1
        s_lshl_b32 s{sT2}, s{sT1}, 12
        v_add_u32 v{aT[0,0]}, s{sT2}, v{T[2]}
        v_xor_b32 v{aT[0,1]}, 32, v{aT[0,0]}
        v_xor_b32 v{aT[1,0]}, 0x1000, v{aT[0,0]}
        v_xor_b32 v{aT[1,1]}, 0x1020, v{aT[0,0]}
        v_and_b32 v{T[1]}, 15, v{vL}
        s_lshl_b32 s{sT2}, s{sR}, 5
        s_lshl_b32 s{sT3}, s{sC}, 4
        s_add_u32 s{sT2}, s{sT2}, s{sT3}
        v_add_u32 v{T[2]}, s{sT2}, v{T[1]}
        s_lshl_b32 s{sT1}, s{sT1}, 2
        v_or_b32 v{T[3]}, s{sT1}, v{T[0]}
        v_lshrrev_b32 v{T[4]}, 1, v{T[1]}
        v_xor_b32 v{T[3]}, v{T[3]}, v{T[4]}
        v_lshlrev_b32 v{T[3]}, 4, v{T[3]}
        v_lshl_add_u32 v{aX[0,0]}, v{T[2]}, 7, v{T[3]}
        v_xor_b32 v{aX[0,1]}, 64, v{aX[0,0]}
        v_xor_b32 v{aX[1,0]}, 0x800, v{aX[0,0]}
        v_xor_b32 v{aX[1,1]}, 0x840, v{aX[0,0]}
        v_xor_b32 v{vHS}, s{sT3}, v{vL}
        v_lshlrev_b32 v{vHS}, 4, v{vHS}
        ''')
        m64(a, sM_l1, 0x2222222222222222); m64(a, sM_l2, 0x4444444444444444); m64(a, sM_l3, 0x8888888888888888)
        m64(a, sM_hi32, 0xFFFFFFFF00000000); m64(a, sM_b4, 0xFFFF0000FFFF0000)
        m64(a, sM_s0, 0x0F0F0F0F0F0F0F0F); m64(a, sM_s1, 0xF0F0F0F0F0F0F0F0)
        a(f's_mov_b32 vcc_lo, 0x00ff00ff\ns_mov_b32 vcc_hi, 0x00ff00ff')
        a(f'v_mov_b32 v{ONES}, 0x3f803f80')
        for i in range(1, 4): a(f'v_mov_b32 v{ONES+i}, v{ONES}')
        a(f'v_cndmask_b32 v{SEL[0]}, 0, v{ONES}, vcc')
        a(f'v_xor_b32 v{SEL[1]}, v{SEL[0]}, v{ONES}')
        for i in range(1, 4): a(f'v_mov_b32 v{SEL[0]+i}, v{SEL[0]}\nv_mov_b32 v{SEL[1]+i}, v{SEL[1]}')
        a(f'''
        s_lshl_b32 s{sT0}, s{sRB}, 2
        s_add_u32 s{sT0}, s{sT0}, s{sR}
        s_mul_i32 s{sT0}, s{sT0}, {H_TILE}
        s_lshl_b32 s{sT1}, s{sC}, 11
        s_add_u32 s{sT0}, s{sT0}, s{sT1}
        s_and_b32 s{sT1}, s{sR}, 1
        s_lshl_b32 s{sT2}, s{sT1}, 10
        s_add_u32 s{sH0}, s{sT0}, s{sT2}
        s_xor_b32 s{sT2}, s{sT2}, 1024
        s_add_u32 s{sH1}, s{sT0}, s{sT2}
        s_lshl_b32 s{sT0}, s{sC}, 9
        s_lshl_b32 s{sT1}, s{sT1}, 7
        s_add_u32 s{sT0}, s{sT0}, s{sT1}
        s_add_u32 s{sCSR}, s{sT0}, {L_CS}
        s_lshr_b32 s{sT1}, s{sR}, 1
        s_lshl_b32 s{sT1}, s{sT1}, 6
        s_add_u32 s{sCSW}, s{sCSR}, s{sT1}
        s_lshr_b32 s{sT0}, s{sRB}, 1
        s_mul_i32 s{sT0}, s{sT0}, {KV_PITCH}
        s_and_b32 s{sT1}, s{sRB}, 1
        s_mul_i32 s{sT1}, s{sT1}, 384
        s_add_u32 s{sT0}, s{sT0}, s{sT1}
        s_add_u32 s{sFP}, s{sT0}, {KV_OFF + F_CNT}
        s_cmp_eq_u32 s{sW}, 0
        s_cselect_b32 s{sFP}, s{sFP}, {OOB}
        s_and_b32 s{sT0}, s2, 3
        s_lshl_b32 s{sT0}, s{sT0}, 3
        s_and_b32 s{sT1}, s2, 4
        s_add_u32 s{sT0}, s{sT0}, s{sT1}
        s_bfe_u32 s{sT1}, s2, 0x20003
        s_add_u32 s{sT0}, s{sT0}, s{sT1}
        s_lshr_b32 s{sT1}, s{sT0}, 2
        s_mul_i32 s{sT1}, s{sT1}, {KV_PITCH}
        s_bfe_u32 s{sT2}, s{sT0}, 0x10001
        s_mul_i32 s{sT2}, s{sT2}, 384
        s_add_u32 s{sT1}, s{sT1}, s{sT2}
        s_add_u32 s{sFC}, s{sT1}, {KV_OFF + F_CNT}
        s_lshl_b32 s{sT0}, s{sT0}, 1
        s_add_u32 s{sT0}, s{sT0}, s{sC}
        s_mul_i32 s{sT1}, s{sT0}, {H_TILE}
        s_lshl_b32 s{sT2}, s{sR}, 12
        s_add_u32 s{sHB1}, s{sT1}, s{sT2}
        s_add_u32 s{sHB2}, s{sHB1}, s{sT2}
        s_lshl_b32 s{sT0}, s{sT0}, 15
        s_lshr_b32 s{sT1}, s2, 5
        s_lshl_b32 s{sT1}, s{sT1}, 7
        s_add_u32 s{sT0}, s{sT0}, s{sT1}
        s_lshl_b32 s{sT1}, s{sR}, 5
        s_add_u32 s{sXO}, s{sT0}, s{sT1}
        ''')

    def phi_addr(self, s, d, t):
        s(f"""
        v_lshrrev_b32 v{d}, 5, v{vL}
        v_bfe_u32 v{t}, v{vL}, 2, 2
        v_lshl_add_u32 v{d}, v{d}, 3, v{t}
        v_lshlrev_b32 v{d}, 5, v{d}
        v_bfe_u32 v{t}, v{vL}, 4, 1
        v_lshl_add_u32 v{d}, v{t}, 4, v{d}
        v_bfe_u32 v{t}, v{vL}, 1, 1
        v_lshl_add_u32 v{d}, v{t}, 3, v{d}
        v_xor_b32 v{t}, s{sR}, v{vL}
        v_and_b32 v{t}, 1, v{t}
        v_lshl_add_u32 v{d}, v{t}, 9, v{d}
        s_lshl_b32 s{sT0}, s{sC}, 10
        s_add_u32 s{sT0}, s{sT0}, {L_PH}
        v_add_u32 v{d}, s{sT0}, v{d}
        """)

    def setup3(self, a, ty):
        a(f"""
        v_and_b32 v24, 15, v{vL}
        v_lshrrev_b32 v25, 5, v{vL}
        v_lshl_add_u32 v20, v24, 2, s{sCSW}
        v_lshl_add_u32 v20, v25, 8, v20
        s_lshl_b32 s{sT0}, s{sR}, 8
        s_lshl_b32 s{sT1}, s{sC}, 7
        s_add_u32 s{sT0}, s{sT0}, s{sT1}
        s_add_u32 s{sT0}, s{sT0}, {L_ST}
        v_lshl_add_u32 v22, v24, 3, s{sT0}
        s_mov_b32 vcc_lo, 0x00f0000f
        s_mov_b32 vcc_hi, 0xf0000f00
        v_mov_b32 v21, {L_DUM}
        v_cndmask_b32 v21, v21, v22, vcc
        v_xor_b32 v23, 128, v22
        v_and_b32 v28, 31, v{vL}
        v_lshl_add_u32 v26, v28, 2, s{sCSR}
        v_xor_b32 v27, 128, v26
        """)
        if ty == 1:
            for k in range(4): a(f'v_mov_b32 v{T[2*k+1]}, 0')
            return
        self.phi_addr(a, T[1], T[0])
        a(f"""
        v_lshrrev_b32 v29, 4, v{vL}
        v_mul_u32_u24 v{T[3]}, {RECP}, v24
        v_lshl_add_u32 v{T[3]}, v29, 3, v{T[3]}
        v_xor_b32 v25, s{sR}, v25
        v_and_b32 v25, 1, v25
        v_mul_u32_u24 v25, {RECH}, v25
        v_mul_u32_u24 v{T[5]}, {RECP}, v28
        v_add_u32 v{T[5]}, v{T[5]}, v25
        v_lshrrev_b32 v{T[7]}, 2, v{vL}
        v_mul_u32_u24 v{T[7]}, {2*RECP}, v{T[7]}
        v_and_b32 v25, 3, v{vL}
        v_lshl_add_u32 v{T[7]}, v25, 3, v{T[7]}
        v_lshlrev_b32 v29, 9, v29
        v_lshl_add_u32 v{vP}, v24, 2, v29
        """)

    def dma(self, srdreg, voff, soff, lds, tag):
        s = Seq()
        s(f's_add_u32 m0, s{sM0}, {lds}')
        if soff: s(f's_mov_b32 s{sA}, {soff}')
        s(f'buffer_load_dwordx4 v{voff}, s[{srdreg}:{srdreg+3}], {"s%d" % sA if soff else "0"} offen lds', tag)
        return s

    PB = [(8, 2), (16, 2), (9, 2), (17, 2), (0, 1), (4, 1), (24, 1), (28, 1), (32, 1)]
    SLOTS = [j % 4 for j in range(8)] + [0, 1, 2, 0, 1, 2] + [3, 0, 1, 2, 4, 3, 0, 1, 2]
    def stage_dmas(self, ty, j):
        tag = f'st{j}'; L = []; base = self.SLOTS[j] * SLOT
        KQ, KG = 64 * 3072, 64 * 3584
        if 'nodma' in self.dbg and 4 <= j < 14: return L
        if 'samek' in self.dbg and j < 14:
            for d in range(4): L.append(self.dma(sWG, vG, (d + 4 * (j & 1)) * KG, base + d * 8192, tag))
            return L
        if j < 8:
            L.append(self.dma(sX, vXD, j * 128, base, tag))
            if ty == 0: L.append(self.dma(sWQ, vQ, j * KQ + 1024, base + 16384, tag))
            else: L.append(self.dma(sWG, vG, j * KG, base + 16384, tag))
            L.append(self.dma(sX, vXD, j * 128 + 65536, base + 8192, tag))
            if ty == 0: L.append(self.dma(sWQ, vQ, j * KQ + 2048, base + 24576, tag))
            else: L.append(self.dma(sWU, vG, j * KG, base + 24576, tag))
        elif j < 12:
            for h in range(2):
                ch = 2 * (j - 8) + h
                L.append(self.dma(sWG, vG, ch * KG + 128 * ty, base + h * 16384, tag))
                L.append(self.dma(sWU, vG, ch * KG + 128 * ty, base + h * 16384 + 8192, tag))
        elif j < 14:
            if ty == 1:
                for h in range(4):
                    L.append(self.dma(sWQ, vQ, (4 * (j - 12) + h) * KQ, base + h * 8192, tag))
            else:
                for h in range(2):
                    p = 2 * (j - 12) + h
                    L.append(self.dma(sWG, vQ, 2 * p * KG, base + h * 8192, tag))
                    L.append(self.dma(sWU, vQ, 2 * p * KG, base + 16384 + h * 8192, tag))
        else:
            b, m = self.PB[j - 14]
            if 'now2' in self.dbg and j >= 19: return L
            for q in range(4):
                p = b + m * q
                L.append(self.dma(sWD if p < 28 else sWO, vD, (p if p < 28 else p - 28) * 65536, base + q * 8192, tag))
        return L

    def groups(self, ty):
        G = []
        for j in range(8):
            for (blk, sig) in ((0, 0), (1, 0), (0, 1), (1, 1)):
                G.append(dict(stage=j, phase=0, ch=j, blk=blk, sig=sig, off=16384 + blk * 8192, ts=512))
        for j in range(8, 12):
            for h in range(2):
                for (blk, sig) in ((0, 0), (1, 0), (0, 1), (1, 1)):
                    G.append(dict(stage=j, phase=1, ch=2 * (j - 8) + h, blk=blk, sig=sig, off=h * 16384 + blk * 8192, ts=512))
        for j in range(12, 14):
            for h in range(4):
                for u in range(2):
                    if ty == 1: G.append(dict(stage=j, phase=2, ch=4 * (j - 12) + h, blk=0, sig=u, off=h * 8192, ts=512))
                    else: G.append(dict(stage=j, phase=2, ch=4 * (j - 12) + h, blk=u, sig=0, off=u * 16384 + h * 4096, ts=256))
        return G

    def body(self, ty):
        slot = self.SLOTS
        issue_after = {}
        last = {}
        first = []
        for j in range(14):
            if slot[j] in last: issue_after.setdefault(last[slot[j]] + 1, []).extend(self.stage_dmas(ty, j))
            else: first.append(j)
            last[slot[j]] = j
        jW = self.jW[ty]; jE0 = self.jE0[ty]
        assert min(jW) >= jE0 or ty == 1
        if 'noW' not in self.dbg:
            if len(jW) == 2: jW = [jW[0]] * 4 + [jW[1]] * 3
            assert max(jW[:4]) <= 12 and min(jW[:4]) >= 8
            for j, d in zip(jW, self.stage_dmas(ty, 14) + self.stage_dmas(ty, 18)[:3]): issue_after.setdefault(j, []).append(d)
        self.HREG = [128, 144, 160, 176, 192, 208, 64, 224, 240] if self.e1 and ty == 0 else KF.HREG
        jC = self.jC if isinstance(self.jC, int) else self.jC[ty]
        if self.sent and isinstance(jC, tuple):
            assert min(jC) >= jE0 and max(jC) < (self.jF if ty == 0 else self.jS0) and list(jC) == sorted(jC)
            for j, c in reversed(list(zip(jC, self.clears(ty, T[4])))): issue_after.setdefault(j, []).insert(0, c)
        elif self.sent and jC < 9: issue_after.setdefault(jC, []).extend(self.clears(ty))
        if self.sent == 1: self.jS1 = -1
        issue_after.setdefault(12, []).extend(self.stage_dmas(ty, 15))
        issue_after.setdefault(13, []).extend(self.stage_dmas(ty, 16))
        pre = Seq()
        for j in first[:self.nfirst]:
            for d in self.stage_dmas(ty, j): pre += d
        self.setup1(pre)
        if ty == 1:
            pre(f"""
            v_lshl_add_u32 v{T[0]}, v{vL}, 4, s{sM0}
            s_cmp_eq_u32 s{sRB}, 0
            s_cselect_b32 s{sT0}, s{sKV}, {OOB}
            v_mov_b32 v{T[4]}, 0
            v_mov_b32 v{T[5]}, 0
            v_mov_b32 v{T[6]}, 0
            v_mov_b32 v{T[7]}, 0
            """)
            pre(f'buffer_store_dwordx4 v[{T[4]}:{T[7]}], v{T[0]}, s[{sWS}:{sWS+3}], s{sT0} offen sc0 sc1', 'zero')
            pre(f"""
            s_cmp_lt_u32 s{sW}, 2
            s_cselect_b32 s{sT0}, s{sT0}, {OOB}
            s_add_u32 s{sT0}, s{sT0}, 8192
            """)
            pre(f'buffer_store_dwordx4 v[{T[4]}:{T[7]}], v{T[0]}, s[{sWS}:{sWS+3}], s{sT0} offen sc0 sc1', 'zero')
        self.setup2(pre)
        D0 = [d for j in first[self.nfirst:] for d in self.stage_dmas(ty, j)]
        for d in D0[:len(D0) - self.late]: pre += d
        pre(f"""
        v_lshlrev_b32 v{T[0]}, 4, v{vL}
        s_lshl_b32 s{sT0}, s{sGI}, 11
        s_and_b32 s{sT1}, s{sM0}, 1024
        s_add_u32 s{sT0}, s{sT0}, s{sT1}
        s_add_u32 m0, s{sT1}, {L_PH}
        """)
        pre(f'buffer_load_dwordx4 v{T[0]}, s[{sPH}:{sPH+3}], s{sT0} offen lds', 'ph')
        for c in issue_after.get(-1, []): pre += c
        S3 = Seq(); self.setup3(S3, ty)
        if not self.s3: pre += S3
        pre += self.touch(self.tch.get(-1, ''))
        G = self.groups(ty)
        win = {'t': 0, 'x': 0}
        def setwin(s, which, regs, base):
            w = base // 65536
            if win[which] != w:
                d = (w - win[which]) * 65536
                for r in regs: s(f'v_add_u32 v{r}, 0x{d & 0xffffffff:x}, v{r}')
                win[which] = w
            return base - w * 65536
        def reads(gi):
            g = G[gi]; L = []
            hd = Seq()
            if ty == 0 and g['phase'] == 2 and G[gi - 1]['phase'] == 1:
                hd(f"""
                v_lshrrev_b32 v{aT[0,1]}, 4, v{vL}
                v_bfe_u32 v{aT[1,1]}, v{vL}, 2, 2
                v_lshl_add_u32 v{aT[0,0]}, v{aT[0,1]}, 3, v{aT[1,1]}
                v_lshlrev_b32 v{aT[0,0]}, 6, v{aT[0,0]}
                v_and_b32 v{aT[0,1]}, 1, v{aT[0,1]}
                v_xor_b32 v{aT[0,1]}, s{sC}, v{aT[0,1]}
                v_lshl_add_u32 v{aT[0,0]}, v{aT[0,1]}, 5, v{aT[0,0]}
                v_and_b32 v{aT[0,1]}, 3, v{vL}
                v_lshl_add_u32 v{aT[0,0]}, v{aT[0,1]}, 3, v{aT[0,0]}
                s_lshr_b32 s{sU0}, s{sR}, 1
                s_lshl_b32 s{sU0}, s{sU0}, 11
                v_add_u32 v{aT[0,0]}, s{sU0}, v{aT[0,0]}
                v_xor_b32 v{aT[1,0]}, 0x800, v{aT[0,0]}
                """)
                win['t'] = 0
            b = setwin(hd, 't', list(aT.values()), slot[g['stage']] * SLOT) + g['off']
            buf = WF + 8 * (gi % 3)
            for kp in range(2):
                for t in range(2):
                    s = Seq()
                    if not L: s += hd
                    s(f'ds_read_b64_tr_b16 v[{buf+4*kp+2*t}:{buf+4*kp+2*t+1}], v{aT[kp, g["sig"]]} offset:{b + t * g["ts"]}')
                    L.append(s)
            return L
        JZ = 2
        jS0 = self.jK if ty == 0 else self.jS0
        def sig0():
            s = Seq()
            if ty == 0:
                s(f's_cmp_eq_u32 s{sW}, 0\ns_cselect_b32 s{sU0}, s{sKV}, {OOB}\ns_add_u32 s{sU0}, s{sU0}, {KV_CNT}')
                s += self.signal(sU0, 0)
            else: s += self.signal(sFP, 0)
            return s
        xq = []
        def boundary(j):
            s = Seq()
            s.waitvm(f'st{j}')
            if j == JZ and ty == 1: s.waitvm('zero')
            if j == 4: s.waitvm('ph')
            if j == jS0: s.waitvm('kvat' if ty == 0 else 'hst0')
            if j == self.jS1: s.waitvm('hst1')
            if j == (self.jF if ty == 0 else jS0) and self.sent == 1: s.waitvm('clr')
            if 'nolg' not in self.dbg: s.waitlgkm0()
            if not ('nobar' in self.dbg and j > 8): s('s_barrier')
            if j < 8:
                b = setwin(s, 'x', list(aX.values()), slot[j] * SLOT)
                for rs in range(2):
                    for sp in range(2):
                        r = X(rs, 2 * j + sp)
                        x = Seq(); x(f'ds_read_b128 v[{r}:{r+3}], v{aX[rs, sp]} offset:{b}')
                        if self.pace > 1 and j > 0: xq.append(x)
                        elif 'noxr' not in self.dbg: s += x
            if j == JZ and ty == 1:
                s(f"""
                s_lshl_b32 s{sT0}, s{sGI}, 5
                s_or_b32 s{sT1}, s{sRB}, s{sW}
                s_cmp_eq_u32 s{sT1}, 0
                s_cselect_b32 s{sT0}, s{sT0}, {OOB}
                v_lshlrev_b32 v28, 8, v{vL}
                v_mov_b32 v29, 1
                buffer_store_dword v29, v28, s[{sDB}:{sDB+3}], s{sT0} offen sc0 sc1
                """)
            if j == 6:
                s(f'v_lshlrev_b32 v28, 5, v{vL}')
                s(f'buffer_load_dword v29, v28, s[{sDB}:{sDB+3}], 0 offen sc0 sc1')
            if j == 8: self.zpoll(s)
            if j == jS0: s += sig0()
            if j == self.jS1: s += self.signal(sFP, 128)
            if j == self.jF and self.sent == 1 and ty == 0: s += self.signal(sFP, 128)
            if j == 12: s(f'v_lshlrev_b32 v{vH}, 4, v{vL}')
            if j in self.prio:
                l = self.lab('pr')
                s(f's_cmp_eq_u32 s{sC}, 0\ns_cbranch_scc1 {l}\ns_setprio {self.prio[j]}\n{l}:')
            s += self.touch(self.tch.get(j, ''), 70 if j <= 8 else vP)
            if j == self.jT:
                t = 70 if j <= 8 else vP
                assert j <= 8 or j >= jE0 or ty == 1
                s(f"""
                s_and_b32 s{sU0}, s2, 24
                s_add_u32 s{sU0}, s{sU0}, s{sW}
                s_sub_u32 s{sU1}, s{sU0}, 7
                s_max_i32 s{sU1}, s{sU1}, 0
                s_min_i32 s{sU1}, s{sU1}, 4
                s_add_u32 s{sU0}, s{sU0}, s{sU1}
                s_lshl_b32 s{sU0}, s{sU0}, 16
                s_lshr_b32 s{sU1}, s2, 5
                s_lshl_b32 s{sU1}, s{sU1}, 7
                v_lshl_add_u32 v{t}, v{vL}, 10, s{sU1}
                s_mov_b32 m0, {L_DUM}
                s_sub_u32 s{sU1}, s{sU0}, {28 << 16}
                buffer_load_dword v{t}, s[{sWD}:{sWD+3}], s{sU0} offen lds
                s_cselect_b32 s{sU1}, {OOB}, s{sU1}
                buffer_load_dword v{t}, s[{sWO}:{sWO+3}], s{sU1} offen lds
                """)
            return s
        def mfmas(gi):
            g = G[gi]; ph = g['phase']; A = ACC[ph & 1]; buf = WF + 8 * (gi % 3); L = []
            firstk = g['ch'] == 0
            for rs in range(2):
                d = A + g['blk'] * 16 + g['sig'] * 8 + rs * 4
                for kp in range(2):
                    c = '0' if (firstk and kp == 0) else vr(d, 4)
                    x = X(rs, 2 * g['ch'] + kp)
                    L.append(f'v_mfma_f32_16x16x32_bf16 {vr(d,4)}, {vr(buf+4*kp,4)}, {vr(x,4)}, {c}')
            if g['sig'] == 0:
                c = '0' if (firstk and g['blk'] == 0) else vr(CS, 4)
                L.append(f'v_mfma_f32_16x16x32_bf16 {vr(CS,4)}, {vr(SEL[g["blk"]],4)}, {vr(buf,4)}, {c}')
            elif ph == 0:
                d, acc = (SUM, ONES) if g['blk'] == 0 else (GRAM, None)
                for kp in range(2):
                    x = X(0, 2 * g['ch'] + kp)
                    c = '0' if (firstk and kp == 0) else vr(d, 4)
                    L.insert(kp, f'v_mfma_f32_16x16x32_bf16 {vr(d,4)}, {vr(acc if acc else x,4)}, {vr(x,4)}, {c}')
            return L

        phases = [Seq(), Seq(), Seq()]
        head = Seq()
        head += boundary(0)
        self.stamp(head)
        pend = D0[len(D0) - self.late:]
        for gi in (0, 1):
            for r in reads(gi): head += r
        g13 = min(i for i, g in enumerate(G) if g['stage'] == 13)
        n13 = self.e1['n13'][ty] if self.e1 else 0
        f0late = self.e1.get('f0late', (0, 0))[ty] if self.e1 else 0
        assert n13 <= 2
        f0l = Seq(); f0l(f'buffer_load_dword v{vP}, off, s[{sWS}:{sWS+3}], s{sFC} sc0 sc1')
        fcl = Seq(); fcl(f'buffer_load_dword v{vP}, off, s[{sWS}:{sWS+3}], s{sFC} offset:128 sc0 sc1')
        for gi in range(len(G)):
            m = phases[G[gi]['phase']]
            M = mfmas(gi)
            nxt = gi + 2
            R = []; bnd = None
            if nxt < len(G):
                if G[nxt]['stage'] != G[nxt - 1]['stage']:
                    bnd = boundary(G[nxt]['stage'])
                R = reads(nxt)
            if gi == g13 - self.f0g and not f0late: m += f0l
            if gi == g13:
                if f0late:
                    m.comment('E1 here'); L1 = pend + [[]] * f0late + [f0l]
                    self.poll(m, vP, sFC, 0, 8)
                    pend = self.hitems(0, 2 + n13)
                else:
                    self.poll(m, vP, sFC, 0, 8)
                    pend += self.hitems(0, 2)
                    if self.e1:
                        m.comment('E1 here'); L1 = pend
                        pend = self.hitems(2, 2 + n13)
            if gi == len(G) - 2 and self.sent == 1 and (ty == 0 or self.f1n[ty] > 2): m += fcl
            if gi == len(G) - self.kvg and ty == 1:
                m(f's_add_u32 s{sU0}, s{sKV}, {KV_CNT}\nbuffer_load_dword v{vP2}, off, s[{sWS}:{sWS+3}], s{sU0} sc0 sc1')
            if gi == len(G) - 1:
                for p in pend: m += p
                pend = []
            if self.slim: m.need(WF + 8 * (gi % 3), 8)
            if bnd is None and self.slim and G[gi]['phase'] > 0:
                q = []
                if pend: q += pend.pop(0)
                if pend and ((G[gi]['phase'] != 1 and not (self.e1 and gi < g13 - 2)) or len(pend) > self.dens) and not (self.e1 and gi >= g13 and len(pend) < len(G) - gi - 1): q += pend.pop(0)
                per = -(-len(q) // 3) if len(q) <= 3 else -(-len(q) // len(M))
                for k, t in enumerate(M):
                    m(t)
                    if k < len(R): m += R[k]
                    m += q[k * per:(k + 1) * per]
            elif bnd is None:
                for k, t in enumerate(M):
                    m(t)
                    if k < len(R): m += R[k]
                    if k == 1 and pend: m += pend.pop(0)
                    if k == 3 and pend and (G[gi]['phase'] != 1 or len(pend) > 5) and not (self.pace and G[gi]['phase'] == 0 and len(pend) < 3): m += pend.pop(0)
                    if k == 2 and xq: m += xq.pop(0)
                    if k == 4 and xq: m += xq.pop(0)
            else:
                j = G[nxt]['stage']
                if j > 3 or not self.late:
                    for p in pend: m += p
                    pend = []
                assert not any(x.tag == f'st{j}' for p in pend for x in p)
                m(M[0]); m(M[1]); m += bnd
                if ty == 0 and j == 5:
                    m(f"""
                    v_lshrrev_b32 v25, 2, v{vL}
                    s_lshl_b32 s{sT0}, s{sW}, 4
                    v_add_u32 v25, s{sT0}, v25
                    v_lshrrev_b32 v28, 5, v{vL}
                    v_lshlrev_b32 v28, 1, v28
                    v_and_b32 v29, 3, v{vL}
                    v_xor_b32 v28, v28, v29
                    s_lshl_b32 s{sT0}, s{sGI}, 6
                    s_add_u32 s{sT0}, s{sT0}, {24*128}
                    v_lshl_add_u32 v28, v28, 4, s{sT0}
                    s_movk_i32 s{sT0}, 3584
                    v_mad_u32_u24 v{vQ}, v25, s{sT0}, v28
                    """)
                pend += issue_after.get(j, [])
                if self.pace and G[gi]['phase'] == 0:
                    m += R[0]; m(M[2]); m += R[1]
                    if xq: m += xq.pop(0)
                    m(M[3]); m += R[2]
                    if pend: m += pend.pop(0)
                    m(M[4]); m += R[3]
                    if xq: m += xq.pop(0)
                    m(M[5])
                else:
                    m += R[0]; m += R[1]; m(M[2]); m += R[2]; m += R[3]
                    for t in M[3:]: m(t)
            if gi + 1 == len(G) or G[gi + 1]['phase'] != G[gi]['phase']:
                self.phase_end(m, G[gi]['phase'])
        assert not pend
        def weave(ph, E, rate, j):
            mk = f'bnd {j}' if j < 99 else 'phase end'
            k = [i for i, x in enumerate(ph) if isinstance(x, P) and x.kind == 'comment' and x.arg == mk][0]
            o, rest = lsched(ph[:k], E, rate, lead=2, **self.ls)
            self.left.append(len(rest))
            o += rest; o += ph[k:]
            return o
        out = Seq(); out += pre; out += head
        if self.s3:
            ph = phases[0]
            k = [[i for i, x in enumerate(ph) if isinstance(x, P) and x.kind == 'comment' and x.arg == f'bnd {j}'][0] for j in (3, 5)]
            o, rest = lsched(ph[k[0]:k[1]], S3, 2, lead=3, **self.ls)
            out += ph[:k[0]]; out += o; out += rest; out += ph[k[1]:]
        else: out += phases[0]
        self.stamp(out)
        E0 = self.epi_head(0)
        cr, cm = self.corr(0, [(0, 0), (1, 0), (0, 1), (1, 1)] if ty else [(0, 0), (0, 1), (1, 0), (1, 1)])
        E0 += self.ln_consts(cr)
        E0 += cm
        if ty == 0: E0 += self.epi_kv()
        elif self.sent and isinstance(jC, int) and jC > 9: E0 += self.paced(self.gelu(ACC[0], 2, self.had(1, 0), 'hst0'), self.clears(ty, T[4]), jC, 0)
        else: E0 += self.gelu(ACC[0], 2, self.had(1, 0), 'hst0')
        if self.sent and jC == 9:
            for c in self.clears(ty, 112): E0 += c
        if 'noE0' in self.dbg: E0 = Seq()
        for w in self.dbg.split():
            if w.startswith('tag:'): E0 = Seq(x for x in E0 if not (isinstance(x, I) and x.kind == 'vst' and x.tag in w[4:].split(',')))
            if w.startswith('drop:'): E0 = Seq(x for x in E0 if not (isinstance(x, I) and x.kind in w[5:].split(',')))
        self.stamp(E0)
        out += weave(phases[1], E0, self.rate[ty], jE0)
        self.stamp(out)
        E1 = Seq()
        if jS0 == 12.5: E1.waitvm('kvat' if ty == 0 else 'hst0')
        if not self.e1 or self.e1['r12']: E1 += self.epi_head(1)
        if jS0 == 12.5: E1.append(P('fence')); E1 += sig0()
        E1 += self.corr(1, [(0, 0), (1, 0), (0, 1), (1, 1)])
        E1 += self.gelu(ACC[1], 2, self.had(ty, 1), 'hst1')
        self.stamp(E1)
        if self.e1:
            ph = phases[2]
            k = [i for i, x in enumerate(ph) if isinstance(x, P) and x.kind == 'comment' and x.arg == 'E1 here'][0]
            if self.e1['r12']: o, rest = lsched(ph[:k], E1, self.e1['r12'], lead=2, **self.ls)
            else: o, rest = Seq(ph[:k]), E1
            keep = self.e1.get('keep', 0); cut = len(rest)
            while keep > 0: cut -= 1; keep -= rest[cut].cost
            self.left.append(cut)
            out += o; out += self.paced(rest[:cut], L1, self.e1['sp'], 0)
            out += weave(ph[k:], Seq(rest[cut:]), 2, 99)
        else: out += weave(phases[2], E1, self.rate[2], self.jE1)
        self.stamp(out)
        def f1():
            s = Seq()
            self.poll(s, vP2, sFC, 128, 16)
            if self.kq:
                for u in range(2, 2 + self.f1n[ty]): s += self.hloads(u)
            elif self.f1pos == 1 or not self.spread:
                for u in range(2, 6): s += self.hloads(u)
            return s
        E2 = Seq()
        E2.waitvm('st15')
        if self.jS1 == 14: E2.waitvm('hst1')
        E2 += self.epi_head(2)
        if self.jS1 == 14: E2 += self.signal(sFP, 128)
        D17 = self.stage_dmas(ty, 17) + issue_after.get(14, [])
        if not self.tdm:
            for d in D17: E2 += d
        if self.f1pos == 0: E2 += f1()
        self.stamp(E2)
        k0 = len(E2)
        pl = Seq()
        if self.f1pos == 1 and self.sent != 1: pl(f'buffer_load_dword v{vP2}, off, s[{sWS}:{sWS+3}], s{sFC} offset:128 sc0 sc1')
        if self.sent == 1 and ty == 1 and self.f1n[ty] <= 2: pl += fcl
        if ty == 0:
            E2 += self.corr(2, [(0, 0), (1, 0)])
            E2 += pl
            E2 += self.gelu(ACC[0], 1, self.had(0, 2), 'hst2')
        else:
            E2 += self.corr(2, [(0, 0), (0, 1)])
            E2 += self.epi_q(pl, [(64, 80), (40, 144)])
        if self.sent == 1:
            n13 = self.e1['n13'][ty] if self.e1 else 0
            c = Seq(); self.poll(c, vP, sFC, 128, 8)
            L = self.hitems(2 + n13, min(4, 2 + self.f1n[ty]))
            if self.f1n[ty] > 2:
                L2 = self.hitems(4, 2 + self.f1n[ty]); L += [c + L2[0]] + L2[1:]
            else: E2 += c
            if self.tdm: L = D17 + L
            E2 = Seq(E2[:k0]) + self.paced(E2[k0:], L, self.tsp[ty], self.tld[ty])
        elif self.f1pos == 1: E2 += f1()
        elif self.spread:
            L = []
            for u in range(2, 6):
                h = self.hloads(u); L += [h[:2]] + [[x] for x in h[2:]]
            body = E2[k0:]; E2 = Seq(E2[:k0]); n = 0
            for x in body:
                if isinstance(x, I) and x.kind in ('valu', 'trans'):
                    if n % self.spread == 0 and L: E2 += L.pop(0)
                    n += 1
                E2.append(x)
            for p in L: E2 += p
        out += Seq(x for x in E2 if not (isinstance(x, P) and x.kind == 'gap'))
        self.stamp(out)
        out += self.gemm2q(ty) if self.kq else self.gemm2(ty)
        if self.stamps:
            out.waitvm0()
            self.stamp(out)
            out(f'v_mov_b32 v{T[0]}, 0')
            out(f's_lshl_b32 s{sT0}, s2, 3\ns_add_u32 s{sT0}, s{sT0}, s{sW}\ns_lshl_b32 s{sT0}, s{sT0}, 6\ns_add_u32 s{sT0}, s{sT0}, {STAMP_OFF}')
            out.waitlgkm0()
            for i in range(self.nst):
                out(f'v_mov_b32 v{T[1]}, s{sSTL[i]}')
                out(f'buffer_store_dword v{T[1]}, v{T[0]}, s[{sWS}:{sWS+3}], s{sT0} offen offset:{4*i}')
        return out

    def had(self, ty, k):
        if ty == 0 and k == 2:
            return lambda s, sig: s(f"""
                s_min_u32 s{sT0}, s{sH0}, s{sH1}
                s_lshl_b32 s{sT1}, s{sC}, 10
                s_sub_u32 s{sT0}, s{sT0}, s{sT1}
                s_lshl_b32 s{sT1}, s{sGI}, 11
                s_add_u32 s{sT0}, s{sT0}, s{sT1}
                s_add_u32 s{sT0}, s{sT0}, {24*4096}
                """)
        sh, off = {(0, 1): (12, 0), (1, 0): (13, 8 * 4096), (1, 1): (13, 9 * 4096), (1, 2): (12, 28 * 4096)}[ty, k]
        return lambda s, sig: s(f's_lshl_b32 s{sT0}, s{sGI}, {sh}\n' + (f's_add_u32 s{sT0}, s{sT0}, {off}\n' if off else '') + f's_add_u32 s{sT0}, s{sT0}, s{sH1 if sig else sH0}')

    def clears(self, ty, r=76):
        L = []
        for k in ((1, 2) if self.sent == 1 else (2,)):
            for sig in range(1 if (ty, k) == (0, 2) else 2):
                s = Seq()
                if not L:
                    for i in range(4): s(f'v_mov_b32 v{r+i}, -1')
                self.had(ty, k)(s, sig)
                s(f'buffer_store_dwordx4 {vr(r,4)}, v{vHS}, s[{sWS}:{sWS+3}], s{sT0} offen sc0 sc1', 'clr')
                L.append(s)
        return L

    def hcheck(self, a, u, i, t):
        r = self.HREG[u] + 4 * i; b, m = self.PB[u]
        l1, l2, l3 = self.lab('re'), self.lab('lp'), self.lab('bk')
        chk = f'v_max3_u32 v{t}, v{r}, v{r+1}, v{r+2}\nv_max_u32 v{t}, v{t}, v{r+3}\nv_cmp_eq_u32 vcc, -1, v{t}'
        a(chk); a(f's_cbranch_vccnz {l1}\n{l3}:')
        o = [f'{l1}:', f's_mov_b32 s{sT2}, 0', f's_add_u32 s{sT0}, s{sHB2 if m == 2 else sHB1}, {b * 4096}', f'{l2}:']
        for k in range(i, 4):
            o.append(f'buffer_load_dwordx4 {vr(self.HREG[u] + 4*k, 4)}, v{vH}, s[{sWS}:{sWS+3}], s{sT0} offen offset:{k*1024}{self.scl}')
        o += ['s_waitcnt vmcnt(0)'] + chk.split('\n')
        o += [f's_add_u32 s{sT2}, s{sT2}, 1', f's_cmp_ge_u32 s{sT2}, 0x10000', f's_cbranch_scc1 {l3}', f's_cbranch_vccnz {l2}', f's_branch {l3}']
        self.ool += o

    def hitems(self, u0, u1):
        L = []
        for u in range(u0, u1):
            h = self.hloads(u); L += [h[:2]] + [[x] for x in h[2:]]
        return L

    def paced(self, body, L, sp, lead):
        o = Seq(); n = -lead; dep = 0; L = list(L)
        for x in body:
            if isinstance(x, P) and x.kind in ('atom_begin', 'atom_end'): dep = x.kind == 'atom_begin'
            if isinstance(x, I) and x.kind in ('valu', 'trans') and not dep:
                if n >= 0 and L: o += L.pop(0); n -= sp
                n += x.cost
            o.append(x)
        for p in L: o += p
        return o

    HREG = [160, 176, 192, 208, 224, 240, 64, 128, 144]
    def hloads(self, u):
        s = Seq(); b, m = self.PB[u]
        if 'nohall' in self.dbg or ('noh2' in self.dbg and u >= 6): return Seq([I('s_nop 0')] * 5)
        s(f's_add_u32 s{sU1}, s{sHB2 if m == 2 else sHB1}, {b * 4096}')
        for i in range(4):
            s(f'buffer_load_dwordx4 {vr(self.HREG[u] + 4*i, 4)}, v{vH}, s[{sWS}:{sWS+3}], s{sU1} offen offset:{i*1024}{self.scl}')
        return s

    def touch(self, mats, t=70):
        s = Seq()
        if not mats: return s
        s(f"""
        v_lshlrev_b32 v{t}, 7, v{vL}
        s_lshl_b32 s{sU0}, s2, 3
        s_add_u32 s{sU0}, s{sU0}, s{sW}
        s_mov_b32 m0, {L_DUM}
        """)
        for c in mats:
            r, n = dict(q=(sWQ, 6), g=(sWG, 7), u=(sWU, 7), d=(sWD, 7), o=(sWO, 2), x=(sX, 8))[c]
            s(f's_mul_i32 s{sU1}, s{sU0}, {n * 128}\ns_mov_b64 exec, {(1 << n) - 1}')
            s(f'buffer_load_dword v{t}, s[{r}:{r+3}], s{sU1} offen lds')
        s('s_mov_b64 exec, -1')
        return s

    def gemm2(self, ty):
        a = Seq()
        AD, AS = 96, 160
        aW = [4, 5]; XR = 8; vXO = 12; eW = [13, 14, 15]; eR = 16
        a(f"""
        v_lshrrev_b32 v{T[0]}, 5, v{vL}
        v_bfe_u32 v{T[1]}, v{vL}, 2, 2
        v_lshl_add_u32 v{T[0]}, v{T[0]}, 3, v{T[1]}
        s_lshl_b32 s{sT0}, s{sR}, 13
        s_add_u32 s{sT1}, s{sT0}, 65536
        v_lshl_add_u32 v{T[0]}, v{T[0]}, 7, s{sT1}
        v_bfe_u32 v{T[1]}, v{vL}, 3, 1
        v_bfe_u32 v{T[2]}, v{vL}, 4, 1
        v_lshl_or_b32 v{T[1]}, v{T[1]}, 1, v{T[2]}
        v_xor_b32 v{T[1]}, s{sR}, v{T[1]}
        v_lshl_add_u32 v{T[0]}, v{T[1]}, 5, v{T[0]}
        v_and_b32 v{T[1]}, 1, v{vL}
        v_lshl_add_u32 v{T[0]}, v{T[1]}, 4, v{T[0]}
        v_bfe_u32 v{T[1]}, v{vL}, 1, 1
        v_lshl_add_u32 v{aW[0]}, v{T[1]}, 3, v{T[0]}
        v_xor_b32 v{aW[1]}, 64, v{aW[0]}
        """)
        win = [1]
        def reads(n):
            u, i = divmod(n, 4); L = []
            base = self.SLOTS[14 + u] * SLOT; w = base // 65536
            hd = Seq()
            if w != win[0]:
                d = (w - win[0]) * 65536; win[0] = w
                for r in aW: hd(f'v_add_u32 v{r}, 0x{d & 0xffffffff:x}, v{r}')
            buf = WF + 8 * (n % 3)
            for c in range(2):
                for t in range(2):
                    s = Seq()
                    if not L: s += hd
                    s(f'ds_read_b64_tr_b16 {vr(buf+4*c+2*t,2)}, v{aW[c]} offset:{base - w*65536 + i*2048 + t*512}')
                    L.append(s)
            return L
        for n in (0, 1):
            for r in reads(n): a += r
        a(f"""
        s_lshl_b32 s{sT1}, s{sC}, 15
        s_add_u32 s{sT0}, s{sT0}, s{sT1}
        v_add_u32 v{eR}, s{sT0}, v{vH}
        v_xor_b32 v{eW[0]}, 0x2000, v{eR}
        v_xor_b32 v{eW[1]}, 0x4000, v{eR}
        v_xor_b32 v{eW[2]}, 0x6000, v{eR}
        v_add_u32 v{T[4]}, {3*SLOT}, v{eW[0]}
        v_add_u32 v{T[5]}, {3*SLOT}, v{eW[1]}
        v_add_u32 v{T[6]}, {3*SLOT}, v{eW[2]}
        v_add_u32 v{T[7]}, {3*SLOT}, v{eR}
        v_and_b32 v{T[0]}, 31, v{vL}
        v_lshrrev_b32 v{T[1]}, 5, v{vL}
        v_lshlrev_b32 v{T[1]}, 4, v{T[1]}
        v_lshl_add_u32 v{vXO}, v{T[0]}, 10, v{T[1]}
        """)
        def bar(s, *tags):
            for t in tags: s.waitvm(t)
            s.waitlgkm0(); s('s_barrier')
        def boundary(u):
            s = Seq(); post = []
            if u == 2:
                bar(s, 'hst2', 'st16', 'st17'); s += self.signal(sFP, 256)
                post = self.stage_dmas(ty, 18)[3:] + self.stage_dmas(ty, 19) + self.stage_dmas(ty, 20)
                x = Seq(); x(f'buffer_load_dwordx4 {vr(XR,4)}, v{vXO}, s[{sX}:{sX+3}], s{sXO} offen'); post.append(x)
            elif u == 4:
                bar(s, 'st18')
                s(f'buffer_load_dword v{vP}, off, s[{sWS}:{sWS+3}], s{sFC} offset:256 sc0 sc1')
                post = self.stage_dmas(ty, 21) + self.stage_dmas(ty, 22)
            elif u == 5:
                self.stamp(s)
                self.poll(s, vP, sFC, 256, 16)
                self.stamp(s)
                for v in (6, 7, 8): s += self.hloads(v)
                bar(s, 'st19', 'st20')
            elif u == 7: bar(s, 'st21', 'st22')
            elif u == 8: bar(s)
            else: return None, []
            if u in (2, 7): self.stamp(s)
            return s, post
        PD, PS, XU = 192, 216, 240
        pend = []
        for n in range(36):
            u, i = divmod(n, 4)
            A = AD if u < 7 else AS
            M = [f'v_mfma_f32_32x32x16_bf16 {vr(A+16*c,16)}, {vr(WF+8*(n%3)+4*c,4)}, {vr(self.HREG[u]+4*i,4)}, {"0" if n in (0, 28) else vr(A+16*c,16)}' for c in range(2)]
            bnd = None
            if n + 2 < 36 and (n + 2) % 4 == 0: bnd, post = boundary((n + 2) // 4)
            R = reads(n + 2) if n + 2 < 36 else [Seq()] * 4
            if n == 28:
                for k in range(3):
                    for h in range(2):
                        x = Seq(); x(f'ds_write_b128 v{T[4+k]}, {vr(AD+8*(k+1)+4*h,4)} offset:{(k+1)*2048 + h*1024}'); pend.append(x)
            if bnd is not None:
                for p in pend: a += p
                a(M[0]); a += bnd; pend = list(post)
                for r in R: a += r
                if n + 2 == 32:
                    for k in range(3):
                        for h in range(2): a(f'ds_read_b128 {vr(PD+8*k+4*h,4)}, v{T[7]} offset:{(k+1)*2048 + h*1024}')
                    z = Seq()
                    for i2 in range(8): z(f'v_add_f32 v{PD+i2}, v{PD+i2}, v{AD+i2}')
                    for i2 in range(8): z(f'v_add_f32 v{PD+8+i2}, v{PD+8+i2}, v{PD+16+i2}')
                    for i2 in range(8): z(f'v_add_f32 v{PD+i2}, v{PD+i2}, v{PD+8+i2}')
                    for i2 in range(8): z(f'v_mul_f32 v{PD+8+i2}, {f2u(-LOG2E)}, v{PD+i2}')
                    for i2 in range(8): z(f'v_exp_f32 v{PD+8+i2}, v{PD+8+i2}')
                    for i2 in range(4): z(f'v_lshlrev_b32 v{XU+2*i2}, 16, v{XR+i2}\nv_and_b32 v{XU+2*i2+1}, 0xffff0000, v{XR+i2}')
                    for i2 in range(8): z(f'v_add_f32 v{PD+8+i2}, 1.0, v{PD+8+i2}')
                    for i2 in range(8): z(f'v_rcp_f32 v{PD+8+i2}, v{PD+8+i2}')
                    for i2 in range(8): z(f'v_mul_f32 v{PD+i2}, v{PD+i2}, v{PD+8+i2}')
                    pend = [Seq()] + [Seq(z[k:k+8]) for k in range(0, len(z), 8)]
                a(M[1])
            else:
                npop = 2 if n >= 28 and n < 30 else 1
                a(M[0]); a += R[0]; a += R[1]
                for _ in range(npop):
                    if pend: a += pend.pop(0)
                a(M[1]); a += R[2]; a += R[3]
                for _ in range(npop):
                    if pend: a += pend.pop(0)
        for p in pend: a += p
        self.stamp(a)
        for k in range(3):
            for h in range(2): a(f'ds_write_b128 v{eW[k]}, {vr(AS+8*(k+1)+4*h,4)} offset:{(k+1)*2048 + h*1024}')
        bar(a)
        for k in range(3):
            for h in range(2): a(f'ds_read_b128 {vr(PS+8*k+4*h,4)}, v{eR} offset:{(k+1)*2048 + h*1024}')
        for i in range(8): a(f'v_add_f32 v{AS+i}, v{AS+i}, v{PS+i}')
        for i in range(8): a(f'v_add_f32 v{AS+i}, v{AS+i}, v{PS+8+i}')
        for i in range(8): a(f'v_add_f32 v{AS+i}, v{AS+i}, v{PS+16+i}')
        for i in range(8): a(f'v_fmac_f32 v{XU+i}, v{AS+i}, v{PD+i}')
        for i in range(4): a(f'v_cvt_pk_bf16_f32 v{XU+i}, v{XU+2*i}, v{XU+2*i+1}')
        self.stamp(a)
        a(f'buffer_store_dwordx4 {vr(XU,4)}, v{vXO}, s[{sOUT}:{sOUT+3}], s{sXO} offen{self.osc}')
        return a

    def gemm2q(self, ty):
        a = Seq()
        AD, AS = 96, 160
        aW = [4, 5]; XR = 8; vXO = 12; eW = [13, 14, 15]; eR = 16
        a(f"""
        v_lshrrev_b32 v{T[0]}, 5, v{vL}
        v_bfe_u32 v{T[1]}, v{vL}, 2, 2
        v_lshl_add_u32 v{T[0]}, v{T[0]}, 3, v{T[1]}
        s_lshl_b32 s{sT0}, s{sR}, 13
        s_add_u32 s{sT1}, s{sT0}, 65536
        v_lshl_add_u32 v{T[0]}, v{T[0]}, 7, s{sT1}
        v_bfe_u32 v{T[1]}, v{vL}, 3, 1
        v_bfe_u32 v{T[2]}, v{vL}, 4, 1
        v_lshl_or_b32 v{T[1]}, v{T[1]}, 1, v{T[2]}
        v_xor_b32 v{T[1]}, s{sR}, v{T[1]}
        v_lshl_add_u32 v{T[0]}, v{T[1]}, 5, v{T[0]}
        v_and_b32 v{T[1]}, 1, v{vL}
        v_lshl_add_u32 v{T[0]}, v{T[1]}, 4, v{T[0]}
        v_bfe_u32 v{T[1]}, v{vL}, 1, 1
        v_lshl_add_u32 v{aW[0]}, v{T[1]}, 3, v{T[0]}
        v_xor_b32 v{aW[1]}, 64, v{aW[0]}
        """)
        win = [1]
        def ci(n):
            u, i = divmod(n, 4)
            if u in self.cord: return [(1 - i // 2, 2 * (i & 1) + k) for k in range(2)]
            return [(0, i), (1, i)]
        def reads(n):
            u, i = divmod(n, 4); L = []
            base = self.SLOTS[14 + u] * SLOT; w = base // 65536
            hd = Seq()
            if w != win[0]:
                d = (w - win[0]) * 65536; win[0] = w
                for r in aW: hd(f'v_add_u32 v{r}, 0x{d & 0xffffffff:x}, v{r}')
            buf = WF + 8 * (n % 3)
            for k, (c, i) in enumerate(ci(n)):
                for t in range(2):
                    s = Seq()
                    if not L: s += hd
                    s(f'ds_read_b64_tr_b16 {vr(buf+4*k+2*t,2)}, v{aW[c]} offset:{base - w*65536 + i*2048 + t*512}')
                    L.append(s)
            return L
        for n in (0, 1):
            for r in reads(n): a += r
        a(f"""
        s_lshl_b32 s{sT1}, s{sC}, 15
        s_add_u32 s{sT0}, s{sT0}, s{sT1}
        v_add_u32 v{eR}, s{sT0}, v{vH}
        v_xor_b32 v{eW[0]}, 0x2000, v{eR}
        v_xor_b32 v{eW[1]}, 0x4000, v{eR}
        v_xor_b32 v{eW[2]}, 0x6000, v{eR}
        v_add_u32 v{T[4]}, {3*SLOT}, v{eW[0]}
        v_add_u32 v{T[5]}, {3*SLOT}, v{eW[1]}
        v_add_u32 v{T[6]}, {3*SLOT}, v{eW[2]}
        v_add_u32 v{T[7]}, {3*SLOT}, v{eR}
        v_and_b32 v{T[0]}, 31, v{vL}
        v_lshrrev_b32 v{T[1]}, 5, v{vL}
        v_lshlrev_b32 v{T[1]}, 4, v{T[1]}
        v_lshl_add_u32 v{vXO}, v{T[0]}, 10, v{T[1]}
        """)
        def bar(s, *tags):
            for t in tags: s.waitvm(t)
            s.waitlgkm0(); s('s_barrier')
        PD, PS, XU = (128, 192, 152) if self.HREG[0] == 128 else (192, 216, 240)
        nB1 = self.nB1
        Q = []
        for w in (self.ko if isinstance(self.ko, str) else self.ko[ty]).split():
            if w[0] == 'h':
                u = int(w[1:])
                if u < 2 + self.f1n[ty]: continue
                h = self.hloads(u)
                Q += [(w, 0, Seq(h[:2]))] + [(w, 0, Seq([x])) for x in h[2:]]
            elif w[0] == 's':
                j = int(w[1:]); L = self.stage_dmas(ty, j)
                Q += [(w, nB1 if j < 21 else 14, d) for d in (L[3:] if j == 18 else L)]
            elif w == 'x':
                x = Seq(); x(f'buffer_load_dwordx4 {vr(XR,4)}, v{vXO}, s[{sX}:{sX+3}], s{sXO} offen'); Q.append((w, nB1, x))
            elif self.sent: continue
            elif w == 'p':
                x = Seq(); x(f'buffer_load_dword v{vP}, off, s[{sWS}:{sWS+3}], s{sFC} offset:256 sc0 sc1'); Q.append((w, nB1, x))
            elif w == 'c': Q.append((w, nB1, None))
        def pop(s):
            w, _, x = Q.pop(0)
            if w == 'c':
                self.stamp(s); self.poll(s, vP, sFC, 256, 16); self.stamp(s)
                return pop(s)
            s += x
            if w == 'p' and Q[0][0] != 'c': return 0
            return 1
        def flush(s, name):
            while any(q[0] == name for q in Q): pop(s)
        credit = 0.0
        order = [(1, 0), (1, 1), (2, 0), (2, 1), (0, 0), (0, 1)]
        DW = [f'ds_write_b128 v{T[4+k]}, {vr(AD+8*(k+1)+4*h,4)} offset:{(k+1)*2048 + h*1024}' for k, h in order]
        SW = [f'ds_write_b128 v{eW[k]}, {vr(AS+8*(k+1)+4*h,4)} offset:{(k+1)*2048 + h*1024}' for k, h in order]
        assert min(self.dw) >= (52 if 6 in self.cord else 56) and min(self.dw[4:]) >= 56 and max(self.dw) <= 2 * self.nb
        assert len(self.sw) <= 4 and (not self.sw or (8 in self.cord and min(self.sw) >= 68))
        pend = []; seen = set()
        for n in range(36):
            u, i = divmod(n, 4)
            A = AD if u < 7 else AS
            M = [f'v_mfma_f32_32x32x16_bf16 {vr(A+16*c,16)}, {vr(WF+8*(n%3)+4*k,4)}, {vr(self.HREG[u]+4*j,4)}, {"0" if n in (0, 28) else vr(A+16*c,16)}' for k, (c, j) in enumerate(ci(n))]
            flush(a, f'h{u}')
            R = reads(n + 2) if n + 2 < 36 else [Seq()] * 4
            if self.sent and n in (16, 24): self.stamp(a)
            for c, j in ci(n):
                if self.sent and u >= (2 if self.sent == 1 else 6) and (u, j) not in seen: self.hcheck(a, u, j, T[0])
                seen.add((u, j))
            a.need(WF + 8 * (n % 3), 8)
            a(M[0])
            if n == 6 and (nB1 > 6 or self.sent):
                bar(a, 'st16', 'st17')
                if self.sent: self.stamp(a)
            if n == nB1 and not self.sent:
                bar(a, 'hst2', 'st16', 'st17'); a += self.signal(sFP, 256); self.stamp(a)
            if n == self.nb:
                flush(a, 'x')
                for k, p in enumerate(self.dw):
                    if p == 2 * n: a(DW[k])
            if n in (14, 18, 22, 26, 30):
                t = 14 + (n + 2) // 4
                flush(a, f's{t}')
                bar(a, f'st{t}')
                if n == 26: self.stamp(a)
            elif n == self.nb: bar(a)
            if n == self.nb:
                for r in R: a += r
                R = [Seq()] * 4
                for k in range(3):
                    for h in range(2): a(f'ds_read_b128 {vr(PD+8*k+4*h,4)}, v{T[7]} offset:{(k+1)*2048 + h*1024}')
                z = Seq()
                for i2 in range(4): z(f'v_lshlrev_b32 v{XU+2*i2}, 16, v{XR+i2}\nv_and_b32 v{XU+2*i2+1}, 0xffff0000, v{XR+i2}')
                for i2 in range(8): z(f'v_add_f32 v{PD+i2}, v{PD+i2}, v{AD+i2}')
                for i2 in range(8): z(f'v_add_f32 v{PD+8+i2}, v{PD+8+i2}, v{PD+16+i2}')
                for i2 in range(8): z(f'v_add_f32 v{PD+i2}, v{PD+i2}, v{PD+8+i2}')
                for i2 in range(8): z(f'v_mul_f32 v{PD+8+i2}, {f2u(-LOG2E)}, v{PD+i2}')
                for i2 in range(8): z(f'v_exp_f32 v{PD+8+i2}, v{PD+8+i2}')
                for i2 in range(8): z(f'v_add_f32 v{PD+8+i2}, 1.0, v{PD+8+i2}')
                for i2 in range(8): z(f'v_rcp_f32 v{PD+8+i2}, v{PD+8+i2}')
                for i2 in range(8): z(f'v_mul_f32 v{PD+i2}, v{PD+i2}, v{PD+8+i2}')
                pend = [Seq()]
                for x in z:
                    if len(pend) == 1 or sum(y.cost for y in pend[-1]) + x.cost > self.zr: pend.append(Seq())
                    pend[-1].append(x)
            kq = self.kq if not isinstance(self.kq[0], list) else self.kq[ty]
            rate = kq[min(u, len(kq) - 1)]
            for c in range(2):
                if c: a(M[1])
                if pend: a += pend.pop(0)
                a += R[2 * c]; a += R[2 * c + 1]
                credit += rate / 2
                while credit >= 1 and Q and Q[0][1] <= n: credit -= pop(a)
                credit = min(credit, 1.99)
                for k, p in enumerate(self.dw):
                    if p == 2 * n + c and p != 2 * self.nb: a(DW[k])
                for k, p in enumerate(self.sw):
                    if p == 2 * n + c: a(SW[k])
        assert not Q
        self.stamp(a)
        z = [x for p in pend for x in p]
        for w in SW[len(self.sw):]:
            c = 0
            while z and c < self.zi: c += z[0].cost; a.append(z.pop(0))
            a(w)
        hp = len(z) * 2 // 3
        a += z[:hp]
        bar(a)
        for k in range(3):
            for h in range(2): a(f'ds_read_b128 {vr(PS+8*k+4*h,4)}, v{eR} offset:{(k+1)*2048 + h*1024}')
        a += z[hp:]
        for i in range(8): a(f'v_add_f32 v{AS+i}, v{AS+i}, v{PS+i}')
        for i in range(8): a(f'v_add_f32 v{AS+i}, v{AS+i}, v{PS+8+i}')
        for i in range(8): a(f'v_add_f32 v{AS+i}, v{AS+i}, v{PS+16+i}')
        for i in range(8): a(f'v_fmac_f32 v{XU+i}, v{AS+i}, v{PD+i}')
        for i in range(4): a(f'v_cvt_pk_bf16_f32 v{XU+i}, v{XU+2*i}, v{XU+2*i+1}')
        self.stamp(a)
        a(f'buffer_store_dwordx4 {vr(XU,4)}, v{vXO}, s[{sOUT}:{sOUT+3}], s{sXO} offen{self.osc}')
        return a

    def phase_end(self, m, ph):
        m.comment('phase end')
        a, t = (20, 24) if ph == 0 else (T[0], T[1])
        if ph: m(f"""
        v_and_b32 v{T[0]}, 15, v{vL}
        v_lshrrev_b32 v{T[1]}, 5, v{vL}
        v_lshl_add_u32 v{T[0]}, v{T[0]}, 2, s{sCSW}
        v_lshl_add_u32 v{T[0]}, v{T[1]}, 8, v{T[0]}
        """)
        m(f"""
        v_cvt_pk_bf16_f32 v{t}, v{CS}, v{CS}
        v_lshlrev_b32 v{t}, 16, v{t}
        v_sub_f32 v{t}, v{CS}, v{t}
        v_cvt_pk_bf16_f32 v{t}, v{CS}, v{t}
        """)
        m(f'ds_write_b32 v{a}, v{t} offset:{ph*1024}', 'xch')
        if ph == 0:
            m(f"""
            v_cndmask_b32 v{SUM+1}, v{GRAM}, v{GRAM+1}, s[{sM_l1}:{sM_l1+1}]
            v_cndmask_b32 v{SUM+1}, v{SUM+1}, v{GRAM+2}, s[{sM_l2}:{sM_l2+1}]
            v_cndmask_b32 v{SUM+1}, v{SUM+1}, v{GRAM+3}, s[{sM_l3}:{sM_l3+1}]
            """)
            m(f'ds_write_b64 v21, v[{SUM}:{SUM+1}]', 'xch')

    def epi_head(self, ph):
        s = Seq()
        s.gap(2)
        s.waitlg('xch')
        s('s_barrier')
        return s

    def ln_consts(self, mid):
        s = Seq()
        s('ds_read_b64 v[24:25], v22\nds_read_b64 v[28:29], v23')
        s += mid
        s.gap(3)
        for rs in range(2):
            c0, c1, ve = LNC[rs], LNC[rs] + 1, LNC[rs] + 2
            S, Q, r = ((24, 25, 25), (28, 29, 27))[rs]; b, t = BX[rs], BX[rs] + 1
            s(f"""
            v_mul_f32 v{S}, {f2u(-1.0/512)}, v{S}
            v_mul_f32 v{Q}, {f2u(1.0/512)}, v{Q}
            v_fma_f32 v{Q}, -v{S}, v{S}, v{Q}
            v_cvt_pk_bf16_f32 v{b}, v{S}, v{S}
            v_max_f32 v{Q}, 0, v{Q}
            v_lshlrev_b32 v{t}, 16, v{b}
            v_add_f32 v{ve}, {f2u(1e-5)}, v{Q}
            v_sub_f32 v{t}, v{S}, v{t}
            v_rsq_f32 v{r}, v{ve}
            v_cvt_pk_bf16_f32 v{t}, v{t}, v{t}
            v_cndmask_b32 v{b}, v{b}, v{t}, s[{sM_hi32}:{sM_hi32+1}]
            v_mov_b32 v{t}, 0
            """)
            if rs == 0: s(f'v_mul_f32 v{c0}, {f2u(C0)}, v{r}\nv_mul_f32 v{c1}, v{r}, v{r}')
            else: s(f'v_mul_f32 v{c1}, v{r}, v{r}\nv_mul_f32 v{c0}, {f2u(C0)}, v{r}')
            s(f'v_mul_f32 v{c1}, {f2u(0.044715)}, v{c1}\nv_mul_f32 v{c1}, v{c1}, v{c0}')
        return s

    def corr(self, ph, tiles):
        r = Seq(); s = Seq(); A = ACC[ph & 1]
        a0, a1 = (26, 27) if ph == 0 else (T[1], T[3])
        if ph:
            r(f"""
            v_and_b32 v{T[1]}, 31, v{vL}
            v_lshl_add_u32 v{T[1]}, v{T[1]}, 2, s{sCSR}
            v_xor_b32 v{T[3]}, 128, v{T[1]}
            """)
            for k in range(2, len(tiles)): r(f'v_mov_b32 v{T[2*k+1]}, 0')
        for k, (blk, sig) in enumerate(tiles):
            r(f'ds_read_b32 v{T[2*k]}, v{a1 if sig else a0} offset:{ph*1024 + blk*256}')
        for k, (blk, sig) in enumerate(tiles):
            for rs in range(2):
                d = A + blk * 16 + sig * 8 + rs * 4
                s(f'v_mfma_f32_16x16x16_bf16 {vr(d,4)}, {vr(T[2*k],2)}, {vr(BX[rs],2)}, {vr(d,4)}')
        if ph == 0: return r, s
        r += s
        return r

    def gelu(self, A, nsig, addr, tag):
        s = Seq()
        for sig in range(nsig):
            for rs in range(2):
                a = A + sig * 8 + rs * 4; b = a + 16; c0, c1, ve = LNC[rs], LNC[rs] + 1, LNC[rs] + 2
                for i in range(4): s(f'v_mul_f32 v{T[i]}, v{a+i}, v{a+i}')
                for i in range(4): s(f'v_fma_f32 v{T[i]}, v{T[i]}, v{c1}, v{c0}')
                for i in range(4):
                    s(f'v_mul_f32 v{b+i}, v{a+i}, v{b+i}')
                    s(f'v_mul_f32 v{a+i}, v{T[i]}, v{a+i}')
                for i in range(4): s(f'v_exp_f32 v{a+i}, v{a+i}')
                for i in range(4): s(f'v_fma_f32 v{a+i}, v{a+i}, v{ve}, v{ve}')
                for i in range(4): s(f'v_rcp_f32 v{a+i}, v{a+i}')
                for i in range(4): s(f'v_mul_f32 v{b+i}, v{b+i}, v{a+i}')
                d = A + sig * 8 + rs * 2
                s(f'v_cvt_pk_bf16_f32 v{d}, v{b}, v{b+1}\nv_cvt_pk_bf16_f32 v{d+1}, v{b+2}, v{b+3}')
            d = A + sig * 8
            s(f'v_permlane16_swap_b32 v{d}, v{d+2}\nv_permlane16_swap_b32 v{d+1}, v{d+3}')
            addr(s, sig)
            s(f'buffer_store_dwordx4 {vr(d,4)}, v{vHS}, s[{sWS}:{sWS+3}], s{sT0} offen{self.sc}', tag)
        return s

    def qk_logits(self, s, K, L, ad):
        for sig in range(2):
            k = K + 8 * sig
            for i in range(4): s(f'v_cvt_pk_bf16_f32 v{k+i}, v{k+2*i}, v{k+2*i+1}')
            if sig == 0: s(f'ds_read_b64_tr_b16 {vr(K+4,2)}, v{ad}\nds_read_b64_tr_b16 {vr(K+6,2)}, v{ad} offset:128')
        for sig in range(2):
            k = K + 8 * sig
            s(f'v_permlane16_swap_b32 v{k}, v{k+2}\nv_permlane16_swap_b32 v{k+1}, v{k+3}')
        for sig, m in ((1, sM_s1), (0, sM_s0)):
            for i in range(4): s(f'v_cndmask_b32 v{K+8*sig+4+i}, 0, v{K+4+i}, s[{m}:{m+1}]')
        s(f'v_mfma_f32_32x32x16_bf16 {vr(L,16)}, {vr(K+12,4)}, {vr(K+8,4)}, 0')
        s(f'v_mfma_f32_32x32x16_bf16 {vr(L,16)}, {vr(K+4,4)}, {vr(K,4)}, {vr(L,16)}')

    def exps(self, s, L, E):
        mx, mn, sc = T[0], T[2], T[4]
        s(f"""
        v_cndmask_b32 v{sc}, v{LNC[0]}, v{LNC[1]}, s[{sM_b4}:{sM_b4+1}]
        v_mul_f32 v{sc}, {f2u(LOG2E / C0)}, v{sc}
        """)
        s(f'v_max3_f32 v{mx}, v{L}, v{L+1}, v{L+2}\nv_min3_f32 v{mn}, v{L}, v{L+1}, v{L+2}')
        for i in range(3, 15, 2):
            s(f'v_max3_f32 v{mx}, v{mx}, v{L+i}, v{L+i+1}\nv_min3_f32 v{mn}, v{mn}, v{L+i}, v{L+i+1}')
        s(f'v_max_f32 v{mx}, v{mx}, v{L+15}\nv_min_f32 v{mn}, v{mn}, v{L+15}')
        s(f'v_mul_f32 v{mx}, v{mx}, v{sc}\nv_mul_f32 v{mn}, v{mn}, v{sc}')
        for i in range(0, 16, 2):
            for u in (i, i + 1):
                s(f'v_fma_f32 v{E+u}, v{L+u}, v{sc}, -v{mx}')
                s(f'v_fma_f32 v{L+u}, -v{L+u}, v{sc}, v{mn}')
            for u in (i, i + 1):
                s(f'v_exp_f32 v{E+u}, v{E+u}\nv_exp_f32 v{L+u}, v{L+u}')

    def epi_kv(self):
        s = Seq(); K = ACC[0]; V = K + 16
        a0, a1 = T[3], T[6]
        s(f"""
        s_mul_i32 s{sT0}, s{sR}, {32*RECP}
        s_mul_i32 s{sT1}, s{sC}, {2*RECH}
        s_add_u32 s{sT0}, s{sT0}, s{sT1}
        s_add_u32 s{sPC}, s{sT0}, {REC}
        s_and_b32 s{sT1}, s{sR}, 1
        s_mul_i32 s{sT1}, s{sT1}, {RECH}
        s_add_u32 s{sT2}, s{sPC}, s{sT1}
        s_sub_u32 s{sT3}, s{sPC}, s{sT1}
        s_add_u32 s{sT3}, s{sT3}, {RECH}
        """)
        q = Seq(); self.qk_logits(q, K, V, T[1])
        km = [i for i, x in enumerate(q) if isinstance(x, I) and x.kind == 'mfma'][0]
        s += q[:km]
        s(f'v_add_u32 v{a1}, s{sT3}, v{a0}\nv_add_u32 v{a0}, s{sT2}, v{a0}')
        for sig in range(2):
            for rs in range(2):
                v = V + sig * 8 + rs * 4
                for i in range(4): s(f'v_mul_f32 v{v+i}, v{v+i}, v{LNC[rs]}')
                s(f'v_cvt_pk_bf16_f32 v{v}, v{v}, v{v+1}\nv_cvt_pk_bf16_f32 v{v+1}, v{v+2}, v{v+3}')
                s(f'ds_write_b64 v{a1 if sig else a0}, {vr(v,2)} offset:{64 + rs*16*RECP}')
        s += q[km:]
        s(f"""
        v_add_u32 v{T[5]}, s{sPC}, v{T[5]}
        s_mul_i32 s{sT1}, s{sR}, {RECH}
        s_add_u32 s{sT1}, s{sT1}, {REC}
        v_add_u32 v{T[7]}, s{sT1}, v{T[7]}
        v_lshl_add_u32 v{T[1]}, s{sC}, 5, v{T[7]}
        """)
        x = Seq(); self.exps(x, V, K)
        jC = self.jC if isinstance(self.jC, int) else self.jC[0]
        if self.sent and isinstance(jC, int) and jC > 9: x = self.paced(x, self.clears(0, K + 12), jC, 4)
        s += x
        sp, sm = T[6], T[3]
        b = Seq()
        b(f'v_add_f32 v{sp}, v{K}, v{K+1}\nv_add_f32 v{sm}, v{V}, v{V+1}')
        for i in range(2, 16): b(f'v_add_f32 v{sp}, v{sp}, v{K+i}\nv_add_f32 v{sm}, v{sm}, v{V+i}')
        b(f'v_rcp_f32 v{sp}, v{sp}\nv_rcp_f32 v{sm}, v{sm}')
        for (E, sc, off) in ((K, sp, 0), (V, sm, 32)):
            for h in range(2):
                for i in range(8 * h, 8 * h + 8): b(f'v_mul_f32 v{E+i}, v{E+i}, v{sc}')
                for i in range(4 * h, 4 * h + 4): b(f'v_cvt_pk_bf16_f32 v{E+i}, v{E+2*i}, v{E+2*i+1}')
                b(f'ds_write_b128 v{T[5]}, {vr(E+4*h,4)} offset:{off+16*h}', 'rec')
        if self.burst:
            s.append(P('atom_begin')); s.append(P('burst')); s += b[:self.burst]; s.append(P('atom_end'))
        s += b[self.burst:]
        s.gap(2)
        s.waitlg('rec')
        s('s_barrier')
        for k in range(4):
            for t in range(2):
                o = (32 * k + t) * RECP
                s(f'ds_read_b64_tr_b16 {vr(K+8*k+2*t,2)}, v{T[7]} offset:{o+64}')
                s(f'ds_read_b64_tr_b16 {vr(K+8*k+4+2*t,2)}, v{T[1]} offset:{o}')
        a0 = vP
        s.gap(2)
        for k in range(4):
            s(f'v_mfma_f32_16x16x32_bf16 {vr(T[0],4)}, {vr(K+8*k,4)}, {vr(K+8*k+4,4)}, {"0" if k == 0 else vr(T[0],4)}')
            s(f'v_mfma_f32_16x16x32_bf16 {vr(T[4],4)}, {vr(SEL[0],4)}, {vr(K+8*k+4,4)}, {"0" if k == 0 else vr(T[4],4)}')
        s.gap(2)
        s(f"""
        s_lshl_b32 s{sT1}, s{sC}, 6
        s_add_u32 s{sT1}, s{sT1}, s{sKV}
        s_lshl_b32 s{sT0}, s{sR}, 11
        s_add_u32 s{sPC}, s{sT0}, s{sT1}
        s_lshl_b32 s{sT0}, s{sR}, 7
        s_add_u32 s{sT3}, s{sT0}, s{sT1}
        s_add_u32 s{sT3}, s{sT3}, {KV_Z}
        """)
        for i in range(4):
            s(f'buffer_atomic_add_f32 v{T[i]}, v{a0}, s[{sWS}:{sWS+3}], s{sPC} offen offset:{i*128} sc1', 'kvat')
        s(f'v_mul_f32 v{T[4]}, {f2u(C0)}, v{T[4]}')
        s.atom(f"""
        s_mov_b64 exec, 0xffff
        buffer_atomic_add_f32 v{T[4]}, v{a0}, s[{sWS}:{sWS+3}], s{sT3} offen sc1
        s_mov_b64 exec, -1
        """, 'kvat')
        return s

    def poll(self, s, vd, soff, imm, want):
        l1, l2 = self.lab('poll'), self.lab('ok')
        if 'nopoll' in self.dbg: want = 0
        b = Seq()
        b(f'v_readfirstlane_b32 s{sT1}, v{vd}')
        b(f's_cmp_ge_u32 s{sT1}, {want}\ns_cbranch_scc1 {l2}')
        b.append(P('skip_begin'))
        b(f's_mov_b32 s{sT2}, 0\n{l1}:')
        b(f's_sleep 1')
        b(f'buffer_load_dword v{vd}, off, s[{sWS}:{sWS+3}], s{soff} offset:{imm} sc0 sc1')
        b(f's_waitcnt vmcnt(0)')
        b(f'v_readfirstlane_b32 s{sT1}, v{vd}')
        b(f's_add_u32 s{sT2}, s{sT2}, 1\ns_cmp_ge_u32 s{sT2}, 0x20000\ns_cbranch_scc1 {l2}')
        b(f's_cmp_lt_u32 s{sT1}, {want}\ns_cbranch_scc1 {l1}\n{l2}:')
        b.append(P('skip_end'))
        for x in b: x.cost = 0
        s += b

    def zpoll(self, s):
        l1, l2 = self.lab('poll'), self.lab('ok')
        s(f'v_cmp_eq_u32 vcc, 1, v29')
        s(f's_nop 3\ns_cmp_eq_u32 vcc_lo, 0xff\ns_cbranch_scc1 {l2}')
        s.append(P('skip_begin'))
        s(f's_mov_b32 s{sT2}, 0\n{l1}:')
        s(f's_sleep 1')
        s(f'buffer_load_dword v29, v28, s[{sDB}:{sDB+3}], 0 offen sc0 sc1')
        s(f's_waitcnt vmcnt(0)')
        s(f'v_cmp_eq_u32 vcc, 1, v29')
        s(f's_add_u32 s{sT2}, s{sT2}, 1\ns_cmp_ge_u32 s{sT2}, 0x20000\ns_cbranch_scc1 {l2}')
        s(f's_nop 1\ns_cmp_lg_u32 vcc_lo, 0xff\ns_cbranch_scc1 {l1}\n{l2}:')
        s.append(P('skip_end'))

    def signal(self, soff, imm):
        s = Seq()
        s.atom(f"""
        s_mov_b64 exec, 1
        buffer_atomic_inc v{SEL[0]}, off, s[{sWS}:{sWS+3}], s{soff} offset:{imm} sc1
        s_mov_b64 exec, -1
        """)
        return s

    KVF = 128
    def kv_fetch(self):
        s = Seq(); F = self.KVF
        for i in range(4): s(f'v_mov_b32 v{F+4+i}, 1.0')
        s.append(P('atom_begin'))
        self.poll(s, vP2, sU0, 0, 16)
        s(f"""
        s_add_u32 s{sT0}, s{sKV}, s{sM0}
        buffer_load_dwordx4 {vr(F,4)}, v{vH}, s[{sWS}:{sWS+3}], s{sT0} offen sc0 sc1
        s_add_u32 s{sT0}, s{sKV}, {KV_Z}
        s_mov_b32 exec_hi, 0
        buffer_load_dwordx4 {vr(F+4,4)}, v{vH}, s[{sWS}:{sWS+3}], s{sT0} offen sc0 sc1
        s_mov_b32 exec_hi, -1
        """)
        s.append(P('atom_end'))
        return s

    def kv_stage(self):
        s = Seq(); F = self.KVF; a0, a1 = T[1], T[3]
        s(f"""
        v_lshrrev_b32 v{a0}, 1, v{vH}
        s_lshr_b32 s{sT0}, s{sM0}, 1
        s_add_u32 s{sT0}, s{sT0}, {L_KV}
        v_add_u32 v{a1}, s{sT0}, v{a0}
        v_add_u32 v{a0}, {L_KZ}, v{a0}
        """)
        for i in range(4): s(f'v_cvt_pk_bf16_f32 v{F+i}, v{F+2*i}, v{F+2*i+1}')
        s(f'ds_write_b64 v{a1}, {vr(F,2)}\nds_write_b64 v{a0}, {vr(F+2,2)}', 'kvw')
        s(f"""
        v_and_b32 v{T[4]}, 3, v{vL}
        v_bfe_u32 v{T[7]}, v{vL}, 2, 1
        v_lshl_add_u32 v{T[4]}, v{T[7]}, 3, v{T[4]}
        v_bfe_u32 v{T[7]}, v{vL}, 3, 1
        v_lshl_add_u32 v{T[4]}, v{T[7]}, 2, v{T[4]}
        s_lshl_b32 s{sT0}, s{sC}, 1
        s_and_b32 s{sT1}, s{sR}, 1
        s_or_b32 s{sT0}, s{sT0}, s{sT1}
        s_lshl_b32 s{sT1}, s{sT0}, 10
        s_add_u32 s{sT1}, s{sT1}, {L_KV}
        s_lshl_b32 s{sT0}, s{sT0}, 6
        s_add_u32 s{sT0}, s{sT0}, {L_KZ}
        v_lshl_add_u32 v{T[4]}, v{T[4]}, 6, s{sT1}
        v_and_b32 v{T[7]}, 1, v{vL}
        v_lshl_add_u32 v{T[7]}, v{T[7]}, 8, s{sT0}
        v_cndmask_b32 v{T[4]}, v{T[4]}, v{T[7]}, s[{sM_b4}:{sM_b4+1}]
        v_lshrrev_b32 v{T[7]}, 5, v{vL}
        v_lshl_add_u32 v{T[4]}, v{T[7]}, 4, v{T[4]}
        v_mov_b32 v{T[7]}, 0x400
        v_cndmask_b32 v{T[7]}, v{T[7]}, 64, s[{sM_b4}:{sM_b4+1}]
        v_xor_b32 v{T[7]}, v{T[7]}, v{T[4]}
        """)
        r = Seq()
        r.waitlg('kvw')
        r('s_barrier')
        for sig in range(2):
            for sg in range(2):
                r(f'ds_read_b128 {vr(F+8*sig+4*sg,4)}, v{T[7] if sig else T[4]} offset:{sg*32}')
        return s, r

    def epi_q(self, mid, C):
        s = Seq(); Q = ACC[0]; L = Q + 16; F = self.KVF
        if self.kvpos == 1: s += self.kv_fetch()
        self.phi_addr(s, T[5], T[4])
        self.qk_logits(s, Q, L, T[5])
        if self.kvpos == 2: s += self.kv_fetch()
        self.exps(s, L, Q)
        s += mid
        w, r = self.kv_stage()
        s += w
        for n, E in enumerate((Q, L)):
            for i in range(8): s(f'v_cvt_pk_bf16_f32 v{E+i}, v{E+2*i}, v{E+2*i+1}')
            if n == 0: s += r
            for i in range(4): s(f'v_permlane32_swap_b32 v{E+i}, v{E+4+i}')
        for sig in range(2):
            for sg, E in enumerate((Q, L)):
                s(f'v_mfma_f32_32x32x16_bf16 {vr(C[sig][sg],16)}, {vr(F+8*sig+4*sg,4)}, {vr(E+4*sig,4)}, 0')
        for sig in range(2):
            p, m = C[sig]
            s(f"""
            v_rcp_f32 v{p+9}, v{p+9}
            v_rcp_f32 v{m+9}, v{m+9}
            v_fmaak_f32 v{p+8}, v{p+8}, v{p+9}, {f2u(1e-6 * C0)}
            v_fmac_f32 v{p+8}, v{m+8}, v{m+9}
            v_rcp_f32 v{p+8}, v{p+8}
            v_mul_f32 v{p+9}, v{p+9}, v{p+8}
            v_mul_f32 v{m+9}, v{m+9}, v{p+8}
            """)
            for i in range(8): s(f'v_mul_f32 v{p+i}, v{p+i}, v{p+9}')
            for i in range(8): s(f'v_fmac_f32 v{p+i}, v{m+i}, v{m+9}')
            for i in range(4): s(f'v_cvt_pk_bf16_f32 v{p+i}, v{p+2*i}, v{p+2*i+1}')
            self.had(1, 2)(s, sig)
            s(f'buffer_store_dwordx4 {vr(p,4)}, v{vHS}, s[{sWS}:{sWS+3}], s{sT0} offen{self.sc}', 'hst2')
        return s

    def text(self):
        stats = {}
        pro = self.prologue()
        pro(f's_cmp_eq_u32 s{sTY}, 1')
        pro.waitlgkm0()
        pro('s_cbranch_scc1 K1_TYPEB')
        l0, st = finalize(pro, None, stats)
        n0 = self.nst
        A = self.body(0); A('s_endpgm')
        self.nst = n0
        B = self.body(1)
        if self.ool: B('s_endpgm')
        la, _ = finalize(A, st, stats); lb, _ = finalize(B, st, stats)
        self.stats = stats
        return '\n'.join(l0 + la + ['K1_TYPEB:'] + lb + [x if x.endswith(':') else '    ' + x for x in self.ool]) + '\n'


HEADER = open('cdna_kernels/' + KNAME + '.s.ref').read().split('; Override')[0].rstrip('\n') if __import__('os').path.exists('cdna_kernels/' + KNAME + '.s.ref') else ''

def fused(path, **kw):
    k = KF(**kw)
    txt = kernel_text([dict(name=KNAME + '_kernel', body=k.text(), grid=256, block=512, lds=LDS_BYTES, vgpr=256, accum=256)], HEADER)
    open(path, 'w').write(txt)
    return k

if __name__ == '__main__':
    k = fused(sys.argv[1], **(eval(sys.argv[2]) if len(sys.argv) > 2 else {}))
    print(k.stats, k.left)
```
